```python
import torch

def _softmax(x, axis=-1):
    return torch.softmax(x, dim=axis)
def _gelu(x):
    return torch.nn.functional.gelu(x, approximate="tanh")
def _silu(x):
    return torch.nn.functional.silu(x)
def _sigmoid(x):
    return torch.sigmoid(x)
def _layernorm(x, axis=-1, eps=1e-5):
    m = x.mean(dim=axis, keepdim=True)
    v = x.var(dim=axis, keepdim=True, unbiased=False)
    return (x - m) / torch.sqrt(v + eps)
def _scatter_add(tgt, idx, src, axis=0):
    return tgt.clone().index_add_(axis, idx, src)
def _segment_sum(src, seg, n):
    out = torch.zeros((n,) + src.shape[1:], dtype=src.dtype)
    return out.index_add_(0, seg, src)
def _pad(x, pw):
    flat = tuple(v for pair in reversed(pw) for v in pair)
    return torch.nn.functional.pad(x, flat)

kernel_name = 'recurrent_scan__linear_kernel_hedgehog__geglu_ffn__prompt'

def setup_inputs():

    _w = (lambda a: (lambda t: t.to(torch.bfloat16) if t.is_floating_point() else t)(torch.as_tensor(a)))
    def _A_setup():
        B, S, D, H = 1, 2048, 448, 16
        Dh = D // H
        return {
            "x": _w((lambda *s: torch.randn(*s, dtype=torch.bfloat16) * 0.05)(B, S, D)),
            "wqkv": _w((lambda *s: torch.randn(*s, dtype=torch.bfloat16) * 0.4)(D, 3 * D)),
            "w_phi": _w((lambda *s: torch.randn(*s, dtype=torch.bfloat16) * 0.4)(H, Dh, Dh) * (Dh ** -0.5)),
            "wo": _w((lambda *s: torch.randn(*s, dtype=torch.bfloat16) * 0.05)(D, D)),
        }
    _A_in = _A_setup()

    def _B_setup():
        B, S, D, F = 1, 2048, 448, 1792
        return {
            "x": _w((lambda *s: torch.randn(*s, dtype=torch.bfloat16) * 0.05)(B, S, D)),
            "w_gate": _w((lambda *s: torch.randn(*s, dtype=torch.bfloat16) * 0.05)(D, F)),
            "w_up": _w((lambda *s: torch.randn(*s, dtype=torch.bfloat16) * 0.05)(D, F)),
            "w_down": _w((lambda *s: torch.randn(*s, dtype=torch.bfloat16) * 0.05)(F, D)),
        }
    _B_in = _B_setup()

    return {
        "A_x": _A_in["x"],
        "A_wqkv": _A_in["wqkv"],
        "A_w_phi": _A_in["w_phi"],
        "A_wo": _A_in["wo"],
        "B_x": _B_in["x"],
        "B_w_gate": _B_in["w_gate"],
        "B_w_up": _B_in["w_up"],
        "B_w_down": _B_in["w_down"],
    }

def reference(A_x, A_wqkv, A_w_phi, A_wo, B_x, B_w_gate, B_w_up, B_w_down):
    def _A_ref(x, wqkv, w_phi, wo):
        B, S, D = x.shape
        H = 16; Dh = D // H
        qkv = (lambda x, *d: x.permute(*d))((x @ wqkv).reshape(B, S, 3, H, Dh), 2, 0, 3, 1, 4)
        q, k, v = qkv[0], qkv[1], qkv[2]
        pq = torch.einsum("bhsd,hdf->bhsf", q, w_phi)
        pk = torch.einsum("bhsd,hdf->bhsf", k, w_phi)
        phi_q = torch.concatenate([_softmax(pq, axis=-1), _softmax(-pq, axis=-1)], axis=-1)
        phi_k = torch.concatenate([_softmax(pk, axis=-1), _softmax(-pk, axis=-1)], axis=-1)
        kv = torch.einsum("bhsf,bhsd->bhfd", phi_k, v)
        z  = torch.einsum("bhsf->bhf", phi_k)
        num = torch.einsum("bhqf,bhfd->bhqd", phi_q, kv)
        den = torch.einsum("bhqf,bhf->bhq", phi_q, z)[..., None] + 1e-6
        o = num / den
        return (lambda x, *d: x.permute(*d))(o, 0, 2, 1, 3).reshape(B, S, D) @ wo

    def _B_ref(x, w_gate, w_up, w_down):
        return (_gelu(x @ w_gate) * (x @ w_up)) @ w_down

    x = A_x
    xn = _layernorm(x, axis=-1)
    s = _A_ref(xn, A_wqkv, A_w_phi, A_wo)
    g = _silu(_B_ref(xn, B_w_gate, B_w_up, B_w_down))
    return x + s * g
```

```python
import re

REG_RE = re.compile(r'^(-?)(abs\()?([vsa])(\d+|\[(\d+):(\d+)\])\)?$')
def regs_of(tok):
    tok = tok.strip()
    if tok in ('vcc', 'exec'): return [(tok, 0), (tok, 1)]
    if tok in ('vcc_lo',): return [('vcc', 0)]
    if tok in ('vcc_hi',): return [('vcc', 1)]
    if tok in ('exec_lo',): return [('exec', 0)]
    if tok in ('exec_hi',): return [('exec', 1)]
    if tok == 'm0': return [('m0', 0)]
    m = REG_RE.match(tok)
    if not m: return []
    f = m.group(3)
    if m.group(5) is not None:
        return [(f, i) for i in range(int(m.group(5)), int(m.group(6)) + 1)]
    return [(f, int(m.group(4)))]

TRANS = ('v_exp_f32', 'v_log_f32', 'v_rcp_f32', 'v_rsq_f32', 'v_sqrt_f32', 'v_sin_f32', 'v_cos_f32')
FAST = ('v_fma_f32', 'v_fmac_f32', 'v_add_f32', 'v_sub_f32', 'v_mul_f32', 'v_fmaak_f32', 'v_fmamk_f32', 'v_subrev_f32')

class Ins:
    __slots__ = ('text', 'op', 'kind', 'defs', 'uses', 'tok', 'srcC', 'passes', 'wide', 'data', 'note', 'cost')
    def __init__(self, text, tok=None):
        self.text = text.strip(); self.tok = tok; self.srcC = []; self.passes = 0; self.wide = False; self.data = []
        t = self.text.split(';')[0].strip()
        if t.endswith(':'):
            self.op = 'label'; self.kind = 'label'; self.defs = []; self.uses = []; self.cost = 0; return
        if t.startswith('.'):
            self.op = 'dir'; self.kind = 'label'; self.defs = []; self.uses = []; self.cost = 0; return
        parts = t.split(None, 1); op = parts[0]; self.op = op
        rest = parts[1] if len(parts) > 1 else ''
        rest = re.sub(r'\s(op_sel|op_sel_hi|neg_lo|neg_hi):\[[^\]]*\]', '', rest)
        ops = [o.strip() for o in rest.split(',')] if rest else []
        mods = []
        if ops:
            last = ops[-1].split()
            if last:
                ops[-1] = last[0]; mods = last[1:]
        R = [regs_of(o) for o in ops]
        flat = lambda L: [r for x in L for r in x]
        defs, uses = [], []
        if op.startswith('v_mfma'):
            kind = 'mfma'; defs = R[0]; uses = flat(R[1:]); self.srcC = R[3]
            self.passes = 8 if '32x32' in op else 4
            cost = 8
        elif op.startswith('v_'):
            kind = 'valu'
            base = op.replace('_e32', '').replace('_e64', '')
            if base in TRANS: kind = 'trans'
            if base.startswith('v_dot2'): kind = 'dot'
            if base.startswith('v_cmp'):
                defs = R[0]; uses = flat(R[1:])
            elif base.startswith('v_permlane'):
                kind = 'perm'; defs = flat(R); uses = flat(R)
            elif base == 'v_writelane_b32':
                defs = R[0]; uses = flat(R)
            elif base in ('v_readfirstlane_b32', 'v_readlane_b32'):
                kind = 'rdlane'; defs = R[0]; uses = flat(R[1:])
            elif base in ('v_add_co_u32', 'v_sub_co_u32', 'v_addc_co_u32'):
                defs = R[0] + R[1]; uses = flat(R[2:])
            else:
                defs = R[0]; uses = flat(R[1:])
                if base in ('v_fmac_f32', 'v_dot2c_f32_bf16'): uses = uses + R[0]
                if base == 'v_cndmask_b32' and len(ops) == 3: uses = uses + regs_of('vcc')
            uses = uses + regs_of('exec')
            cost = 8 if kind in ('trans', 'perm') else (2 if base in FAST else 4)
        elif op.startswith('ds_'):
            kind = 'ds'
            if op.startswith('ds_read') or op.startswith('ds_bpermute') or op.startswith('ds_swizzle'):
                defs = R[0]; uses = flat(R[1:])
            else:
                uses = flat(R)
            cost = 2
        elif op.startswith('buffer_') or op.startswith('global_'):
            kind = 'vmem'
            if 'lds' in mods or '_lds_' in op:
                uses = flat(R) + regs_of('m0'); kind = 'dma'
            elif '_load_' in op:
                defs = R[0]; uses = flat(R[1:])
            elif op.startswith('buffer_store'):
                uses = flat(R); self.data = R[0]; self.wide = ('x3' in op or 'x4' in op)
            elif op.startswith('global_store'):
                uses = flat(R); self.data = R[1]; self.wide = ('x3' in op or 'x4' in op)
            else:
                uses = flat(R)
            cost = 2
        elif op.startswith('s_'):
            kind = 'salu'
            if op in ('s_waitcnt', 's_barrier', 's_nop', 's_setprio', 's_sleep', 's_endpgm', 's_branch') or op.startswith('s_cbranch'):
                kind = 'sctl'
                if op.startswith('s_cbranch_vcc'): uses = regs_of('vcc')
            elif op.startswith('s_cmp') or op.startswith('s_bitcmp'):
                uses = flat(R)
            elif op.startswith('s_load') or op in ('s_memtime', 's_memrealtime'):
                kind = 'smem'; defs = R[0]; uses = flat(R[1:])
            else:
                defs = R[0]; uses = flat(R[1:])
                if op in ('s_addk_i32', 's_mulk_i32'): uses = uses + R[0]
                if 'saveexec' in op: defs = defs + regs_of('exec'); uses = uses + regs_of('exec')
            cost = 1
        else:
            raise ValueError('unknown instr: ' + text)
        self.kind = kind; self.defs = defs; self.uses = uses; self.cost = cost
    def __repr__(self): return self.text

class Pseudo:
    def __init__(self, kind, arg=None): self.kind = kind; self.arg = arg; self.cost = 0
    def __repr__(self): return f'<{self.kind} {self.arg}>'
def WaitVm(tok): return Pseudo('waitvm', tok)
def WaitDs(tok=None): return Pseudo('waitds', tok)
def Gap(n): return Pseudo('gap', n)
def Reset(): return Pseudo('reset')

def I(text, tok=None): return Ins(text, tok)

def insert_waits(prog):
    out = []; vm = []; ds = []
    def need(q, pred):
        for k in range(len(q) - 1, -1, -1):
            if pred(q[k]): return len(q) - 1 - k
        return None
    for x in prog:
        if isinstance(x, Pseudo):
            if x.kind == 'waitvm':
                toks = x.arg if isinstance(x.arg, (list, tuple, set)) else [x.arg]
                n = need(vm, lambda e: e['tok'] in toks)
                if n is not None:
                    n = min(n, 63); out.append(I(f's_waitcnt vmcnt({n})')); vm = vm[len(vm) - n:] if n else []
            elif x.kind == 'waitds':
                n = need(ds, lambda e: x.arg is None or e['tok'] == x.arg)
                if n is not None:
                    n = min(n, 15); out.append(I(f's_waitcnt lgkmcnt({n})')); ds = ds[len(ds) - n:] if n else []
            elif x.kind == 'reset':
                vm = []; ds = []; out.append(x)
            continue
        if x.kind == 'label': out.append(x); continue
        if x.op == 's_waitcnt':
            m = re.search(r'vmcnt\((\d+)\)', x.text)
            if m: n = int(m.group(1)); vm = vm[len(vm) - n:] if n and n < len(vm) else ([] if n == 0 else vm)
            m = re.search(r'lgkmcnt\((\d+)\)', x.text)
            if m: n = int(m.group(1)); ds = ds[len(ds) - n:] if n and n < len(ds) else ([] if n == 0 else ds)
            out.append(x); continue
        touched = set(x.uses) | set(x.defs)
        nv = need(vm, lambda e: e['regs'] & touched)
        nd = need(ds, lambda e: e['regs'] & touched)
        if nd is not None and any(e.get('smem') for e in ds): nd = 0
        w = []
        if nv is not None:
            nv = min(nv, 63); w.append(f'vmcnt({nv})'); vm = vm[len(vm) - nv:] if nv else []
        if nd is not None:
            nd = min(nd, 15); w.append(f'lgkmcnt({nd})'); ds = ds[len(ds) - nd:] if nd else []
        if w: out.append(I('s_waitcnt ' + ' '.join(w)))
        out.append(x)
        if x.kind in ('vmem', 'dma'):
            vm.append({'regs': set(x.defs), 'tok': x.tok})
            assert len(vm) <= 63 + 40, 'vm queue too deep'
        elif x.kind == 'ds':
            ds.append({'regs': set(x.defs), 'tok': x.tok})
        elif x.kind == 'smem':
            ds.append({'regs': set(x.defs), 'tok': x.tok, 'smem': True})
    return out

def states(x):
    if x.kind == 'label': return 0
    if x.op == 's_nop': return int(x.text.split()[1], 0) + 1
    return 1

VALUISH = ('valu', 'trans', 'dot', 'perm', 'rdlane')
def required(p, c):
    pd = set(p.defs); cu = set(c.uses); cd = set(c.defs); n = 0
    isv = lambda r: r[0] in ('v', 'a')
    iss = lambda r: r[0] in ('s', 'vcc')
    pdv = {r for r in pd if isv(r)}; pds = {r for r in pd if iss(r)}
    if p.kind == 'mfma':
        big = p.passes == 8
        if c.kind == 'mfma':
            if pdv & set(c.srcC):
                if not (c.op == p.op and c.srcC == p.defs): n = max(n, 10 if big else 6)
            ab = cu - set(c.srcC)
            if pdv & ab: n = max(n, 12 if big else 8)
            if pdv & cd and not (pdv & set(c.srcC)): n = max(n, 12 if big else 8)
        elif c.kind in VALUISH or c.kind in ('ds', 'vmem', 'dma'):
            if pdv & (cu | cd): n = max(n, 12 if big else 8)
        if c.kind in VALUISH and set(p.srcC) & cd: n = max(n, 7 if big else 3)
    if p.kind in VALUISH:
        if c.kind == 'mfma' and pdv & cu: n = max(n, 2)
        if c.kind == 'perm' and pdv & cu: n = max(n, 2)
        if c.kind == 'rdlane' and pdv & cu: n = max(n, 1)
        if p.kind == 'trans' and pdv & cu: n = max(n, 1)
        if p.kind == 'dot' and pdv & (cu | cd):
            if not (c.op == p.op and not (pdv & set(c.uses[:len(c.uses)]) - set(c.defs))): n = max(n, 3)
        if pds:
            if c.kind in VALUISH and pds & cu: n = max(n, 4 if c.kind == 'rdlane' else 2)
            if c.kind in ('vmem', 'dma') and pds & cu: n = max(n, 5)
            if c.kind in ('salu', 'smem') and pds & cu: n = max(n, 2)
    if p.kind == 'salu' and ('m0', 0) in pd and c.kind == 'dma': n = max(n, 1)
    if p.kind == 'vmem' and p.wide and set(p.data) & cd: n = max(n, 2 if c.kind in VALUISH else 1)
    return n

def insert_nops(prog):
    out = []; hist = []
    for x in prog:
        if isinstance(x, Pseudo):
            if x.kind == 'reset': hist = []
            continue
        if x.kind == 'label': out.append(x); continue
        need = 0; dist = 0
        for p in reversed(hist):
            r = required(p, x)
            if r > dist: need = max(need, r - dist)
            dist += states(p)
            if dist > 20: break
        while need > 0:
            k = min(need, 16); nop = I(f's_nop {k-1}'); out.append(nop); hist.append(nop); need -= k
        out.append(x); hist.append(x)
        if len(hist) > 40: hist = hist[-40:]
    return out

class Group(list):
    kind = 'group'
    @property
    def cost(self): return sum(x.cost for x in self)
def flat(L):
    out = []
    for x in L:
        if isinstance(x, Group): out.extend(flat(x))
        else: out.append(x)
    return out

def interleave(slots, filler, start, end):
    total = sum(f.cost for f in filler)
    gaps = sum(f.arg for f in filler if isinstance(f, Pseudo) and f.kind == 'gap')
    n = max(1, end - start - gaps)
    per = total / n
    k = 0; acc = 0.0; s = start
    while k < len(filler):
        if s >= end - 1:
            slots[end - 1].extend(f for f in filler[k:] if not (isinstance(f, Pseudo) and f.kind == 'gap')); break
        acc += per
        while k < len(filler) and acc > 0:
            f = filler[k]
            if isinstance(f, Pseudo) and f.kind == 'gap':
                k += 1; s += f.arg - 1; acc = 0; break
            slots[s].append(f); acc -= f.cost; k += 1
        s += 1

def finalize(prog):
    return insert_nops(insert_waits(flat(prog)))
def text(prog):
    return '\n'.join((x.text if x.kind == 'label' else '    ' + x.text) for x in prog) + '\n'
```

```python
import sys, struct, math
sys.path.insert(0, 'work')
from asmlib import *

NAME = 'recurrent_scan__linear_kernel_hedgehog__geglu_ffn__prompt_kernel'
def f2u(x): return struct.unpack('<I', struct.pack('<f', x))[0]
def hx(x): return '0x%08x' % (x & 0xffffffff)
LOG2E = 1.4426950408889634

EP, KVFL, HFL, KVP, HB = 0x0, 0x1000, 0x4000, 0x10000, 0x200000
WS_SIZE = 0xB00000
TBLK = 144 * 1024
SX, SQKV, SG, SU, SWD, SWO, SWS, SOUT, SPHI, SREM = 8, 12, 16, 20, 24, 28, 32, 36, 40, 44
def srd(b): return f's[{b}:{b+3}]'
sW, sRB, sH, sJ, sJM, sCH, sW1K, sREML = 48, 49, 50, 51, 52, 53, 54, 55
sTAG = 56
sTT, sT, sXI, sI = 58, 59, 60, 61
sC = 62
sHST = 63
sT0, sT1, sT2, sT3, sT4, sT5 = 64, 65, 66, 67, 68, 69
sONE2, sSEL0, sSEL1 = 70, 71, 72
sHLD, sOLD, sFLD, sNG, sKQ, sT2K = 73, 74, 75, 76, 77, 78
sSPIN = 79
sPC = 80
sEX = 82
vLANE, vL16, vGM, vR, vCc, vK1, vK2 = 1, 2, 3, 4, 5, 6, 7
vOB = [8, 9, 10]; vOA = [11, 12]; vOW2 = 13
vTB = [14, 15]; vTA = [16, 17]
ACCA, ACCB, XF = 32, 64, 128
AFR = [112, 116, 120, 124, 240, 244]
WPHI = 248
def vr(b, n=1): return f'v{b}' if n == 1 else f'v[{b}:{b+n-1}]'

U = 8192
XU = lambda p: 2 * p * U
BU = [14 * U, 17 * U, 0, 3 * U, 6 * U, 9 * U, 12 * U]
AU = [15 * U, 17 * U, 0, 2 * U, 4 * U, 6 * U, 8 * U]
TRV, TRK = 10 * U, 11 * U
MISC = 19 * U
KVBUF = MISC + 4096
LINES = [L for L in range(28) if L % 7 in (1, 3, 5)] + [L for L in range(28) if L % 7 in (0, 2, 4, 6)]
LU = [13, 14, 15, 16, 17, 18, 0, 1, 2, 3, 10, 11, 12, 4, 5, 6, 7, 8, 9,   13, 14, 15, 16, 17, 18, 0, 1, 2]
WOU = 3 * U
REDY = 10 * U
REDS = 0

DEBUG = False

class P(list):
    def e(self, t, tok=None): self.append(I(t, tok)); return self
    def es(self, *ts):
        for t in ts: self.append(I(t))

def dma(p, s, voff, soff, m0base, m0const, tok):
    p.e(f's_add_u32 m0, s{m0base}, {m0const}')
    p.e(f'buffer_load_dwordx4 v{voff}, {srd(s)}, {soff} offen lds', tok)

def chunk_idx(p, dst, pos):
    p.e(f's_bfe_u32 s{dst}, s{sCH}, {hx((4 << 16) | (4 * pos))}')

def dma_B(p, half, pos):
    tok = f'B{pos}'
    chunk_idx(p, sT0, pos)
    if half == 0:
        p.e(f's_mul_i32 s{sT0}, s{sT0}, {64 * 2688}')
        for m in range(3):
            if m: p.e(f's_add_u32 s{sT0}, s{sT0}, 896')
            dma(p, SQKV, vOB[0], f's{sT0}', sW1K, BU[pos] + m * 4096, tok)
    else:
        p.e(f's_mul_i32 s{sT0}, s{sT0}, {64 * 3584}')
        for n in range(3):
            dma(p, SREM, vOB[n], f's{sT0}', sREML, BU[pos] + 12288 + n * 1024, tok)

def dma_A(p, pos):
    tok = f'A{pos}'
    chunk_idx(p, sT0, pos)
    p.e(f's_mul_i32 s{sT0}, s{sT0}, {64 * 3584}')
    dma(p, SG, vOA[0], f's{sT0}', sW1K, AU[pos], tok)
    dma(p, SU, vOA[1], f's{sT0}', sW1K, AU[pos] + U, tok)

def dma_L(p, n):
    p.e(f's_mov_b32 s{sT0}, {LINES[n] * 64 * 896}')
    dma(p, SWD, vOW2, f's{sT0}', sW1K, LU[n] * U, f'L{n}')

def dma_WO(p):
    for u in range(7):
        p.e(f's_mov_b32 s{sT0}, {u * 64 * 896}')
        dma(p, SWO, vOW2, f's{sT0}', sW1K, WOU + u * U, 'WO')

slow_paths = []
def poll(p, uid, vflag, vaddr, soff):
    p.e(f'v_cmp_ne_u64 vcc, s[{sTAG}:{sTAG+1}], {vr(vflag, 2)}')
    p.e(f's_cbranch_vccnz L_slow_{uid}')
    p.e(f'L_res_{uid}:')
    q = P(); q.append(Reset())
    q.e(f'L_slow_{uid}:')
    q.e(f's_mov_b32 s{sSPIN}, 0x40000')
    q.e(f'L_spin_{uid}:')
    q.e(f'buffer_load_dwordx2 {vr(vflag, 2)}, v{vaddr}, {srd(SWS)}, {soff} offen sc1')
    q.e('s_waitcnt vmcnt(0)')
    q.e(f'v_cmp_ne_u64 vcc, s[{sTAG}:{sTAG+1}], {vr(vflag, 2)}')
    q.e(f's_cbranch_vccz L_res_{uid}')
    q.e('s_sleep 1')
    q.e(f's_sub_u32 s{sSPIN}, s{sSPIN}, 1')
    q.e(f's_cmp_lg_u32 s{sSPIN}, 0')
    q.e(f's_cbranch_scc1 L_spin_{uid}')
    q.e(f's_branch L_res_{uid}')
    slow_paths.append(q)

def set_flag(p, soff, vt):
    p.append(Group([I(f'v_mov_b32 v{vt}, s{sTAG}'), I(f'v_mov_b32 v{vt+1}, s{sTAG+1}'),
        I(f's_mov_b64 exec, 1'),
        I(f'buffer_store_dwordx2 {vr(vt, 2)}, off, {srd(SWS)}, {soff} sc1'),
        I(f's_mov_b64 exec, -1')]))

def prologue():
    p = P()
    p.e('s_cmp_ge_u32 s2, 256')
    p.e('s_cbranch_scc1 L_end')
    p.e(f's_load_dwordx2 s[{SX}:{SX+1}], s[0:1], 0')
    p.e(f's_load_dwordx2 s[{SQKV}:{SQKV+1}], s[0:1], 8')
    p.e(f's_load_dwordx2 s[{SG}:{SG+1}], s[0:1], 40')
    p.e(f's_load_dwordx2 s[{SU}:{SU+1}], s[0:1], 48')
    p.e(f's_load_dwordx2 s[{SPHI}:{SPHI+1}], s[0:1], 16')
    p.e(f's_load_dwordx2 s[{SWO}:{SWO+1}], s[0:1], 24')
    p.e(f's_load_dwordx2 s[{SWD}:{SWD+1}], s[0:1], 56')
    p.e(f's_load_dwordx2 s[{SOUT}:{SOUT+1}], s[0:1], 64')
    p.e(f's_load_dwordx2 s[{SWS}:{SWS+1}], s[0:1], 80')
    p.e(f's_getpc_b64 s[{sPC}:{sPC+1}]')
    p.e('L_pcbase:')
    p.e(f's_lshr_b32 s{sI}, s2, 3')
    p.e(f's_and_b32 s{sXI}, s2, 7')
    p.e(f'v_lshrrev_b32 v18, 6, v0')
    p.e(f'v_and_b32 v19, 1, v0')
    p.e(f'v_lshl_or_b32 v19, v18, 1, v19')
    p.e(f's_lshl_b32 s{sT0}, s{sI}, 4')
    p.e(f'v_add_u32 v19, s{sT0}, v19')
    p.e(f'v_lshlrev_b32 v19, 7, v19')
    p.e(f'v_min_u32 v19, (L_codeend - L_pcbase - 4), v19')
    p.e(f'global_load_dword v31, v19, s[{sPC}:{sPC+1}]')
    p.e(f'v_readfirstlane_b32 s{sW}, v18')
    p.e(f'v_and_b32 v{vLANE}, 63, v0')
    p.e(f's_and_b32 s{sT0}, s{sXI}, 1')
    p.e(f's_lshl_b32 s{sT0}, s{sT0}, 3')
    p.e(f's_and_b32 s{sT1}, s{sI}, 7')
    p.e(f's_add_u32 s{sRB}, s{sT0}, s{sT1}')
    p.e(f's_lshr_b32 s{sT2}, s{sI}, 3')
    p.e(f's_lshr_b32 s{sT0}, s{sXI}, 1')
    p.e(f's_lshl_b32 s{sT0}, s{sT0}, 2')
    p.e(f's_add_u32 s{sH}, s{sT0}, s{sT2}')
    p.e(f's_lshl_b32 s{sT2}, s{sT2}, 1')
    p.e(f's_add_u32 s{sT1}, s{sT1}, s{sT2}')
    p.e(f's_sub_u32 s{sT2}, s{sT1}, 7')
    p.e(f's_cmp_ge_u32 s{sT1}, 7')
    p.e(f's_cselect_b32 s{sT1}, s{sT2}, s{sT1}')
    p.e(f's_lshl_b32 s{sT1}, s{sT1}, 2')
    p.e(f's_mov_b32 s{sT2}, 0x06543210')
    p.e(f's_mov_b32 s{sT3}, 0x00654321')
    p.e(f's_lshr_b64 s[{sT2}:{sT3}], s[{sT2}:{sT3}], s{sT1}')
    p.e(f's_mov_b32 s{sCH}, s{sT2}')
    p.e(f's_lshl_b32 s{sW1K}, s{sW}, 10')
    p.e(f's_lshl_b32 s{sT0}, s{sRB}, 7')
    p.e(f's_lshl_b32 s{sT1}, s{sW}, 3')
    p.e(f's_add_u32 s{sT0}, s{sT0}, s{sT1}')
    p.e(f'v_lshrrev_b32 v20, 3, v{vLANE}')
    p.e(f'v_add_u32 v18, s{sT0}, v20')
    p.e(f'v_mul_u32_u24 v18, 896, v18')
    p.e(f's_and_b32 s{sT1}, s{sW}, 1')
    p.e(f's_lshl_b32 s{sT1}, s{sT1}, 2')
    p.e(f'v_lshrrev_b32 v21, 4, v{vLANE}')
    p.e(f'v_xor_b32 v21, s{sT1}, v21')
    p.e(f'v_and_b32 v22, 7, v{vLANE}')
    p.e(f'v_xor_b32 v21, v21, v22')
    p.e(f'v_lshl_add_u32 v18, v21, 4, v18')
    for b, n in ((SX, 1835008), (SQKV, 448 * 2688), (SG, 448 * 3584), (SU, 448 * 3584), (SPHI, 16 * 1568),
                 (SWO, 448 * 896), (SWD, 1792 * 896), (SOUT, 1835008), (SWS, WS_SIZE)):
        p.e(f's_mov_b32 s{b+2}, {n}')
        p.e(f's_mov_b32 s{b+3}, 0x20000')
    p.e('s_waitcnt lgkmcnt(0)')
    for c in range(7):
        chunk_idx(p, sT0, c)
        p.e(f's_lshl_b32 s{sT0}, s{sT0}, 7')
        dma(p, SX, 18, f's{sT0}', sW1K, XU(c), f'X{c}')
        p.e(f's_add_u32 s{sT0}, s{sT0}, {64 * 896}')
        dma(p, SX, 18, f's{sT0}', sW1K, XU(c) + U, f'X{c}')
    sl = [0, 1, 3, 2, 4, 5, 7, 6, 9, 8, 10, 11, 13, 12, 14, 15]
    lo = sum(sl[k] << (4 * k) for k in range(8)); hi = sum(sl[8 + k] << (4 * k) for k in range(8))
    p.e(f's_mov_b32 s{sT2}, {hx(lo)}')
    p.e(f's_mov_b32 s{sT3}, {hx(hi)}')
    p.e(f's_lshl_b32 s{sT1}, s{sH}, 2')
    p.e(f's_lshr_b64 s[{sT2}:{sT3}], s[{sT2}:{sT3}], s{sT1}')
    p.e(f's_and_b32 s{sJ}, s{sT2}, 15')
    p.e(f's_and_b32 s{sJM}, s{sJ}, 3')
    p.e(f's_and_b32 s{sTT}, s{sW}, 3')
    p.e(f's_cmp_ge_u32 s{sW}, 4')
    p.e('s_cbranch_scc1 L_half1')
    return p

def setup_half(p, half):
    if half == 0:
        p.e(f's_lshl_b32 s{sT0}, s{sW}, 4')
        p.e(f'v_lshrrev_b32 v23, 2, v{vLANE}')
        p.e(f'v_add_u32 v23, s{sT0}, v23')
        p.e(f'v_mul_u32_u24 v{vOB[0]}, 2688, v23')
        p.e(f'v_and_b32 v23, 3, v{vLANE}')
        p.e(f'v_lshlrev_b32 v23, 4, v23')
        p.e(f'v_min_u32 v23, 40, v23')
        p.e(f's_mul_i32 s{sT0}, s{sH}, 56')
        p.e(f'v_add3_u32 v{vOB[0]}, v{vOB[0]}, v23, s{sT0}')
    else:
        p.e(f's_lshr_b32 s{sT1}, s{sTT}, 1')
        p.e(f's_cmp_eq_u32 s{sT1}, 0')
        p.e(f's_cselect_b32 s{SREM}, s{SG}, s{SU}')
        p.e(f's_cselect_b32 s{SREM+1}, s{SG+1}, s{SU+1}')
        p.e(f's_mov_b32 s{SREM+2}, {448 * 3584}')
        p.e(f's_mov_b32 s{SREM+3}, 0x20000')
        p.e(f's_mul_i32 s{sREML}, s{sTT}, 3072')
        p.e(f's_lshl_b32 s{sT1}, s{sT1}, 2')
        p.e(f's_and_b32 s{sT2}, s{sTT}, 1')
        p.e(f's_lshl_b32 s{sT2}, s{sT2}, 5')
        p.e(f's_mul_i32 s{sT3}, s{sJ}, 224')
        for n in range(3):
            p.e(f'v_add_u32 v23, {64 * n}, v{vLANE}')
            p.e(f'v_mul_u32_u24 v24, 171, v23')
            p.e(f'v_lshrrev_b32 v24, 10, v24')
            p.e(f'v_mul_u32_u24 v25, 6, v24')
            p.e(f'v_sub_u32 v25, v23, v25')
            p.e(f'v_xor_b32 v24, s{sT1}, v24')
            p.e(f'v_add_u32 v24, s{sT2}, v24')
            p.e(f'v_mul_u32_u24 v{vOB[n]}, 3584, v24')
            p.e(f'v_lshrrev_b32 v26, 1, v25')
            p.e(f'v_add_u32 v27, 4, v26')
            p.e(f'v_cmp_gt_u32 vcc, s{sJM}, v26')
            p.e(f'v_cndmask_b32 v26, v27, v26, vcc')
            p.e(f'v_and_b32 v25, 1, v25')
            p.e(f'v_lshl_or_b32 v26, v26, 1, v25')
            p.e(f'v_lshlrev_b32 v26, 4, v26')
            p.e(f'v_add3_u32 v{vOB[n]}, v{vOB[n]}, v26, s{sT3}')
    dma_B(p, half, 0)
    dma_B(p, half, 1)
    p.e(f'buffer_load_dwordx2 v[28:29], off, {srd(SWS)}, 0 sc1', 'EP')
    p.e(f's_lshl_b32 s{sT1}, s{sW}, 3')
    p.e(f'v_add_u32 v23, s{sT1}, v20')
    p.e(f'v_bfe_u32 v24, v{vLANE}, 4, 1')
    p.e(f'v_lshlrev_b32 v25, 1, v24')
    p.e(f'v_xor_b32 v25, v25, v22')
    p.e(f's_mul_i32 s{sT2}, s{sJ}, 224')
    p.e(f's_lshl_b32 s{sT3}, s{sJM}, 5')
    p.e(f's_add_u32 s{sT2}, s{sT2}, s{sT3}')
    p.e(f'v_mul_u32_u24 v26, 3584, v23')
    p.e(f'v_add_u32 v26, s{sT2}, v26')
    p.e(f'v_lshl_add_u32 v{vOA[0]}, v25, 4, v26')
    p.e(f'v_xor_b32 v25, 4, v25')
    p.e(f'v_lshl_add_u32 v{vOA[1]}, v25, 4, v26')
    p.e(f's_mul_i32 s{sT2}, s{sI}, 37')
    p.e(f's_lshr_b32 s{sT2}, s{sT2}, 8')
    p.e(f's_mul_i32 s{sT3}, s{sT2}, 7')
    p.e(f's_sub_u32 s{sNG}, s{sI}, s{sT3}')
    p.e(f's_lshl_b32 s{sT3}, s{sXI}, 2')
    p.e(f's_add_u32 s{sT2}, s{sT2}, s{sT3}')
    p.e(f's_lshl_b32 s{sT2}, s{sT2}, 1')
    p.e(f's_add_u32 s{sT2K}, s{sT2}, {half}')
    p.e(f'v_lshlrev_b32 v25, 2, v24')
    p.e(f'v_xor_b32 v25, v25, v22')
    p.e(f'v_mul_u32_u24 v26, 896, v23')
    p.e(f's_lshl_b32 s{sT2}, s{sNG}, 7')
    p.e(f'v_add_u32 v26, s{sT2}, v26')
    p.e(f'v_lshl_add_u32 v{vOW2}, v25, 4, v26')
    p.e(f'v_lshlrev_b32 v{vL16}, 4, v{vLANE}')
    p.e(f'v_cmp_lt_u32 vcc, 31, v{vLANE}')
    p.e(f'v_mov_b32 v{vK1}, {hx(f2u(-2 * math.sqrt(2 / math.pi) * LOG2E))}')
    p.e(f'v_mov_b32 v{vK2}, {hx(f2u(-2 * math.sqrt(2 / math.pi) * LOG2E * 0.044715))}')
    p.e(f'v_cndmask_b32 v{vGM}, 0, 1.0, vcc')
    p.e(f's_mov_b32 s{sC}, {hx(f2u(LOG2E))}')
    p.e(f's_mov_b32 s{sONE2}, 0x3f803f80')
    p.e(f's_mov_b32 s{sSEL0}, 0x00003f80')
    p.e(f's_mov_b32 s{sSEL1}, 0x3f800000')
    p.e(f's_lshl_b32 s{sT}, s{sRB}, 2')
    p.e(f's_add_u32 s{sT}, s{sT}, s{sTT}')
    p.e(f's_mul_i32 s{sHST}, s{sT}, {TBLK}')
    p.e(f's_add_u32 s{sHST}, s{sHST}, {HB}')
    p.e(f'v_bfe_u32 v23, v{vLANE}, 2, 2')
    p.e(f'v_lshrrev_b32 v24, 5, v{vLANE}')
    p.e(f'v_bfe_u32 v25, v{vLANE}, 4, 1')
    p.e(f'v_and_b32 v26, 3, v{vLANE}')
    p.e(f'v_lshl_add_u32 v27, v24, 3, v23')
    if half == 0:
        p.e(f'v_lshlrev_b32 v{vTB[0]}, 6, v27')
        p.e(f'v_lshl_add_u32 v{vTB[0]}, v25, 5, v{vTB[0]}')
        p.e(f'v_lshl_add_u32 v{vTB[0]}, v26, 3, v{vTB[0]}')
        p.e(f'v_add_u32 v{vTB[0]}, {BU[0]}, v{vTB[0]}')
    else:
        for rd in range(2):
            p.e(f'v_xor_b32 v30, {rd}, v25')
            p.e(f'v_lshl_add_u32 v30, v30, 2, v27')
            p.e(f'v_mul_u32_u24 v30, 96, v30')
            p.e(f'v_mul_u32_u24 v{vTB[rd]}, 6144, v25')
            p.e(f'v_lshl_add_u32 v30, v26, 3, v30')
            p.e(f's_mov_b32 s{sT0}, {BU[0] + 12288}')
            p.e(f'v_add3_u32 v{vTB[rd]}, v{vTB[rd]}, v30, s{sT0}')
    p.e(f'v_lshrrev_b32 v30, 1, v23')
    p.e(f'v_lshl_or_b32 v30, v25, 1, v30')
    p.e(f'v_lshlrev_b32 v27, 7, v27')
    p.e(f'v_lshl_add_u32 v27, v25, 13, v27')
    p.e(f'v_lshl_add_u32 v27, v26, 3, v27')
    p.e(f'v_add_u32 v27, {AU[0]}, v27')
    for t in range(2):
        p.e(f'v_xor_b32 v{vTA[t]}, {2 * half + t}, v30')
        p.e(f'v_lshl_add_u32 v{vTA[t]}, v{vTA[t]}, 5, v27')
    p.e(f'v_and_b32 v23, 31, v{vLANE}')
    p.e(f'v_bfe_u32 v30, v{vLANE}, 1, 3')
    p.e(f'v_xor_b32 v30, v30, v24')
    p.e(f'v_lshlrev_b32 v23, 7, v23')
    p.e(f's_lshl_b32 s{sT0}, s{sTT}, 12')
    p.e(f'v_add_u32 v23, s{sT0}, v23')
    for ks in range(4):
        p.e(f'v_xor_b32 v{24 + ks}, {2 * ks}, v30')
        p.e(f'v_lshl_add_u32 v{24 + ks}, v{24 + ks}, 4, v23')

def x_stage(p, half):
    p.e('v_mov_b32 v18, 0'); p.e('v_mov_b32 v19, 0')
    def dots(c):
        for k in range(16):
            r = XF + 16 * c + k
            p.e(f'v_dot2c_f32_bf16 v18, s{sONE2}, v{r}')
            p.e(f'v_dot2c_f32_bf16 v19, v{r}, v{r}')
    refill = {2: 2, 3: 3, 5: 4, 6: 5}
    for c in range(7):
        p.append(WaitVm(f'X{c}'))
        p.e('s_barrier')
        if c == 4:
            for ks in range(4): p.e(f'v_add_u32 v{24 + ks}, 0x10000, v{24 + ks}')
        for ks in range(4):
            p.e(f'ds_read_b128 {vr(XF + 16 * c + 4 * ks, 4)}, v{24 + ks} offset:{XU(c) & 0xffff}')
        if c in refill: dma_B(p, half, refill[c])
        if c: dots(c - 1)
        p.append(WaitDs())
    dots(6)
    p.e(f'v_readfirstlane_b32 s{sTAG}, v28')
    p.e(f'v_readfirstlane_b32 s{sTAG+1}, v29')
    p.e('v_permlane32_swap_b32 v18, v19')
    p.e('v_add_f32 v18, v18, v19')
    p.e(f'v_mul_f32 v18, {hx(f2u(1 / 448))}, v18')
    p.e('v_mov_b32 v19, v18')
    p.e('v_permlane32_swap_b32 v18, v19')
    p.e(f's_add_u32 s{sTAG}, s{sTAG}, 0x9e3779b9')
    p.e(f's_add_u32 s{sTAG+1}, s{sTAG+1}, 0x7f4a7c15')
    p.e('v_fma_f32 v19, -v18, v18, v19')
    p.e('v_max_f32 v19, 0, v19')
    p.e('v_cvt_pk_bf16_f32 v18, v18, v19')
    p.e('v_and_b32 v19, 0xffff0000, v18')
    p.e('v_lshlrev_b32 v18, 16, v18')
    p.e(f'v_add_f32 v19, {hx(f2u(1e-5))}, v19')
    p.e('v_cvt_pk_bf16_f32 v19, v19, v19')
    p.e('v_and_b32 v19, 0xffff0000, v19')
    p.e('v_sqrt_f32 v19, v19')
    p.e('v_cvt_pk_bf16_f32 v19, v19, v19')
    p.e('v_and_b32 v19, 0xffff0000, v19')
    p.e(f'v_rcp_f32 v{vR}, v19')
    p.e(f'v_mul_f32 v{vCc}, v18, v{vR}')
    p.e(f'v_sub_f32 v{vCc}, 0, v{vCc}')

def norm_frag(f):
    q = P()
    for k in range(4):
        r = XF + 4 * f + k; a, b = 18 + 2 * (k & 1), 19 + 2 * (k & 1)
        q.e(f'v_lshlrev_b32 v{a}, 16, v{r}')
        q.e(f'v_and_b32 v{b}, 0xffff0000, v{r}')
        q.e(f'v_fma_f32 v{a}, v{a}, v{vR}, v{vCc}')
        q.e(f'v_fma_f32 v{b}, v{b}, v{vR}, v{vCc}')
        q.e(f'v_cvt_pk_bf16_f32 v{r}, v{a}, v{b}')
    return q

def gelu_tile(acc, tmp, soff_code, tok):
    q = P()
    for h2 in range(0, 8, 2):
        t = [tmp + (h2 & 2), tmp + (h2 & 2) + 1]
        g = [acc + h2, acc + h2 + 1]; u = [acc + 8 + h2, acc + 9 + h2]
        for k in range(2): q.e(f'v_mul_f32 v{t[k]}, v{g[k]}, v{g[k]}')
        for k in range(2): q.e(f'v_fma_f32 v{t[k]}, v{t[k]}, v{vK2}, v{vK1}')
        for k in range(2): q.e(f'v_mul_f32 v{t[k]}, v{t[k]}, v{g[k]}')
        for k in range(2): q.e(f'v_exp_f32 v{t[k]}, v{t[k]}')
        for k in range(2): q.e(f'v_mul_f32 v{u[k]}, v{g[k]}, v{u[k]}')
        for k in range(2): q.e(f'v_add_f32 v{t[k]}, 1.0, v{t[k]}')
        for k in range(2): q.e(f'v_rcp_f32 v{t[k]}, v{t[k]}')
        q.e('s_nop 0') if False else None
        for k in range(2): q.e(f'v_mul_f32 v{u[k]}, v{u[k]}, v{t[k]}')
    for k in range(4): q.e(f'v_cvt_pk_bf16_f32 v{acc + k}, v{acc + 8 + 2 * k}, v{acc + 9 + 2 * k}')
    q.extend(soff_code)
    q.e(f'buffer_store_dwordx4 {vr(acc, 4)}, v{vL16}, {srd(SWS)}, s{sT1} offen sc1', tok)
    return q

def softmax_pm(Pa, E, op, on, s0):
    q = P(); a, b, c, d = s0, s0 + 1, s0 + 2, s0 + 3
    q.e(f'v_max3_f32 v{a}, v{Pa}, v{Pa+1}, v{Pa+2}')
    q.e(f'v_max3_f32 v{b}, -v{Pa}, -v{Pa+1}, -v{Pa+2}')
    for k in range(3, 15, 2):
        q.e(f'v_max3_f32 v{a}, v{a}, v{Pa+k}, v{Pa+k+1}')
        q.e(f'v_max3_f32 v{b}, v{b}, -v{Pa+k}, -v{Pa+k+1}')
    q.e(f'v_max_f32 v{a}, v{a}, v{Pa+15}')
    q.e(f'v_max_f32_e64 v{b}, v{b}, -v{Pa+15}')
    q.e(f'v_permlane32_swap_b32 v{a}, v{b}')
    q.e(f'v_max_f32 v{a}, v{a}, v{b}')
    q.e(f'v_mul_f32 v{a}, {hx(f2u(-LOG2E))}, v{a}')
    q.e(f'v_mov_b32 v{b}, v{a}')
    q.e(f'v_permlane32_swap_b32 v{a}, v{b}')
    for k in range(16):
        q.e(f'v_fma_f32 v{E+k}, v{Pa+k}, s{sC}, v{a}')
        q.e(f'v_fma_f32 v{Pa+k}, -v{Pa+k}, s{sC}, v{b}')
        q.e(f'v_exp_f32 v{E+k}, v{E+k}')
        q.e(f'v_exp_f32 v{Pa+k}, v{Pa+k}')
    q.e(f'v_add_f32 v{a}, v{E}, v{E+1}'); q.e(f'v_add_f32 v{b}, v{Pa}, v{Pa+1}')
    q.e(f'v_add_f32 v{c}, v{E+12}, v{E+13}'); q.e(f'v_add_f32 v{d}, v{Pa+12}, v{Pa+13}')
    for k in range(2, 12):
        q.e(f'v_add_f32 v{a}, v{a}, v{E+k}'); q.e(f'v_add_f32 v{b}, v{b}, v{Pa+k}')
        if k in (2, 3):
            q.e(f'v_add_f32 v{c}, v{c}, v{E+12+k}'); q.e(f'v_add_f32 v{d}, v{d}, v{Pa+12+k}')
    q.e(f'v_fmac_f32 v{a}, v{c}, v{vGM}'); q.e(f'v_fmac_f32 v{b}, v{d}, v{vGM}')
    q.e(f'v_permlane32_swap_b32 v{a}, v{b}')
    q.e(f'v_add_f32 v{a}, v{a}, v{b}')
    q.e(f'v_rcp_f32 v{a}, v{a}')
    q.e(f'v_mov_b32 v{b}, v{a}')
    q.e(f'v_permlane32_swap_b32 v{a}, v{b}')
    q.e(f'v_mul_f32 v{c}, v{a}, v{vGM}'); q.e(f'v_mul_f32 v{d}, v{b}, v{vGM}')
    for k in range(0, 16, 2):
        ra, rb = (a, b) if k < 12 else (c, d)
        q.e(f'v_mul_f32 v{E+k}, v{E+k}, v{ra}'); q.e(f'v_mul_f32 v{E+k+1}, v{E+k+1}, v{ra}')
        q.e(f'v_mul_f32 v{Pa+k}, v{Pa+k}, v{rb}'); q.e(f'v_mul_f32 v{Pa+k+1}, v{Pa+k+1}, v{rb}')
        q.e(f'v_cvt_pk_bf16_f32 v{op + k // 2}, v{E+k}, v{E+k+1}')
        q.e(f'v_cvt_pk_bf16_f32 v{on + k // 2}, v{Pa+k}, v{Pa+k+1}')
    return q

MF32 = 'v_mfma_f32_32x32x16_bf16'
MF16 = 'v_mfma_f32_16x16x32_bf16'

def phase1_main(p, half):
    Q, K, V = ACCB, ACCB + 16, ACCB + 32
    mf = []
    for s in range(7):
        for ks in range(4):
            for t in range(3):
                pre = []
                if ks == 0 and t == 0 and s > 0:
                    for a in (vTB[:1] if half == 0 else vTB):
                        pre.append(I(f'v_add_u32 v{a}, {hx(BU[s] - BU[s-1])}, v{a}'))
                if half == 0: rd = [(vTB[0], t * 4096 + ks * 1024 + r * 256) for r in range(2)]
                else: rd = [(vTB[r], ks * 1536 + t * 32) for r in range(2)]
                mf.append((ACCB + 16 * t, 4 * s + ks, rd, pre, s == 0 and ks == 0))
    for s in range(7):
        for ks in range(4):
            for t in range(2):
                pre = []
                if ks == 0 and s > 0: pre.append(I(f'v_add_u32 v{vTA[t]}, {hx(AU[s] - AU[s-1])}, v{vTA[t]}'))
                rd = [(vTA[t], ks * 2048 + r * 512) for r in range(2)]
                mf.append((ACCA + 16 * t, 4 * s + ks, rd, pre, s == 0 and ks == 0))
    NB = len(AFR); D = NB - 1
    def reads(n):
        q = list(mf[n][3]); b = AFR[n % NB]
        for r, (a, off) in enumerate(mf[n][2]):
            q.append(I(f'ds_read_b64_tr_b16 {vr(b + 2 * r, 2)}, v{a} offset:{off}'))
        return q
    p.append(WaitVm('B0')); p.e('s_barrier')
    for n in range(D): p.extend(reads(n))
    p.extend(norm_frag(0))
    slots = []
    for n, (acc, xf, rd, pre, first) in enumerate(mf):
        sl = [I(f'{MF32} {vr(acc, 16)}, {vr(AFR[n % NB], 4)}, {vr(XF + 4 * xf, 4)}, {"0" if first else vr(acc, 16)}')]
        if n + D < len(mf): sl += reads(n + D)
        slots.append(sl)
    nB = 84
    bsl = lambda s: nB + 8 * s + 2
    def bar(n, tokwait, after, dswait=False):
        q = P()
        if dswait: q.append(WaitDs('tr'))
        if tokwait: q.append(WaitVm(tokwait))
        q.e('s_barrier'); q.extend(after)
        slots[n].extend(q)
    for f in range(27):
        interleave(slots, norm_frag(f + 1), 3 * f, 3 * f + 3)
    for s in range(7):
        q = P()
        if s == 1: dma_B(q, half, 6); dma_A(q, 0)
        if s == 2:
            dma_A(q, 1)
            if half == 0:
                q.e(f's_mul_i32 s{sT0}, s{sH}, 1568')
                q.e(f's_and_b32 s{sT1}, s{sW1K}, 1024')
                q.e(f's_add_u32 s{sT0}, s{sT0}, s{sT1}')
                dma(q, SPHI, vL16, f's{sT0}', sT1, MISC, 'PHI')
        if s == 3: dma_A(q, 2)
        if s == 4: dma_A(q, 3); dma_A(q, 4)
        if s == 5: dma_A(q, 5)
        if s == 6: dma_A(q, 6)
        bar(12 * s + 5, f'B{s+1}' if s < 6 else ['A0', 'PHI'], q)
    if half == 0:
        f1 = P()
        T8 = 24
        f1.e(f'v_bfe_u32 v18, v{vLANE}, 2, 2')
        f1.e(f'v_lshrrev_b32 v19, 5, v{vLANE}')
        f1.e(f'v_bfe_u32 v20, v{vLANE}, 4, 1')
        f1.e(f'v_and_b32 v21, 3, v{vLANE}')
        f1.e(f'v_lshl_or_b32 v20, v20, 2, v21')
        f1.e(f'v_cmp_lt_u32 vcc, 5, v20')
        f1.e(f'v_subrev_u32 v21, 1, v20')
        f1.e(f'v_mul_u32_u24 v22, 56, v18')
        f1.e(f'v_cndmask_b32 v20, v20, v21, vcc')
        f1.e(f'v_lshl_add_u32 v22, v20, 3, v22')
        f1.e(f'v_add_u32 v22, {MISC}, v22')
        f1.e(f'v_mul_u32_u24 v19, 224, v19')
        f1.e(f'v_add_u32 v23, v22, v19')
        f1.e(f'ds_read_b64_tr_b16 {vr(WPHI, 2)}, v23')
        f1.e(f'ds_read_b64_tr_b16 {vr(WPHI + 2, 2)}, v23 offset:{8 * 56}')
        f1.e(f'ds_read_b64_tr_b16 {vr(WPHI + 4, 2)}, v23 offset:{16 * 56}')
        f1.e(f'ds_read_b64_tr_b16 {vr(WPHI + 6, 2)}, v22 offset:{24 * 56}')
        for k in range(8): f1.e(f'v_cvt_pk_bf16_f32 v{T8 + k}, v{K + 2 * k}, v{K + 2 * k + 1}')
        f1.e(f'v_cmp_lt_u32 vcc, 31, v{vLANE}')
        f1.e(f'v_and_b32 v18, 31, v{vLANE}')
        f1.e(f's_lshl_b32 s{sT1}, s{sTT}, 5')
        f1.e(f'v_add_u32 v18, s{sT1}, v18')
        f1.e(f'v_cndmask_b32 v{WPHI + 6}, 0, v{WPHI + 6}, vcc')
        f1.e(f'v_cndmask_b32 v{WPHI + 7}, 0, v{WPHI + 7}, vcc')
        f1.e(f'v_cndmask_b32 v{V + 12}, 1.0, v{V + 12}, vcc')
        for k in range(8): f1.e(f'v_cvt_pk_bf16_f32 v{V + k}, v{V + 2 * k}, v{V + 2 * k + 1}')
        f1.e(f'{MF32} {vr(K, 16)}, {vr(WPHI, 4)}, {vr(T8, 4)}, 0')
        f1.e(f'{MF32} {vr(K, 16)}, {vr(WPHI + 4, 4)}, {vr(T8 + 4, 4)}, {vr(K, 16)}')
        f1.e(f'v_lshrrev_b32 v19, 5, v{vLANE}')
        f1.e(f'v_bfe_u32 v20, v{vLANE}, 1, 3')
        f1.e(f'v_xor_b32 v20, v20, v19')
        f1.e(f'v_lshlrev_b32 v21, 6, v18')
        f1.e(f'v_add_u32 v21, {TRV}, v21')
        for i in range(4):
            f1.e(f'v_xor_b32 v22, {2 * i}, v20')
            f1.e(f'v_lshl_add_u32 v22, v22, 3, v21')
            f1.e(f'ds_write_b64 v22, {vr(V + 2 * i, 2)}', 'tr')
        f1.e(f'v_and_b32 v20, 9, v{vLANE}')
        f1.e(f'v_bfe_u32 v21, v{vLANE}, 1, 1')
        f1.e(f'v_lshl_or_b32 v20, v21, 2, v20')
        f1.e(f'v_bfe_u32 v21, v{vLANE}, 2, 1')
        f1.e(f'v_lshl_or_b32 v20, v21, 1, v20')
        f1.e(f'v_xor_b32 v8, v20, v19')
        f1.e(f'v_lshlrev_b32 v9, 7, v18')
        f1.e(f'v_add_u32 v9, {TRK}, v9')
        f1.extend(softmax_pm(K, V, V, K, 18))
        for ft, src in ((0, V), (1, K)):
            for i in range(4):
                f1.e(f'v_xor_b32 v22, {8 * ft + 2 * i}, v8')
                f1.e(f'v_lshl_add_u32 v22, v22, 3, v9')
                f1.e(f'ds_write_b64 v22, {vr(src + 2 * i, 2)}', 'tr')
        interleave(slots, f1, nB + 1, bsl(2) + 1)
        f2 = P()
        for k in range(8): f2.e(f'v_cvt_pk_bf16_f32 v{T8 + k}, v{Q + 2 * k}, v{Q + 2 * k + 1}')
        f2.e(f'{MF32} {vr(K, 16)}, {vr(WPHI, 4)}, {vr(T8, 4)}, 0')
        f2.e(f'{MF32} {vr(K, 16)}, {vr(WPHI + 4, 4)}, {vr(T8 + 4, 4)}, {vr(K, 16)}')
        f2.append(Gap(2))
        f2.extend(softmax_pm(K, Q, V, V + 8, 18))
        interleave(slots, f2, bsl(2) + 2, bsl(5))
    else:
        def rem_soff(r):
            q = P()
            q.e(f's_cmp_gt_u32 s{sJM}, {r}')
            q.e(f's_cselect_b32 s{sT1}, {r}, {r + 4}')
            q.e(f's_mul_i32 s{sT2}, s{sJ}, 7')
            q.e(f's_add_u32 s{sT1}, s{sT1}, s{sT2}')
            q.e(f's_lshl_b32 s{sT1}, s{sT1}, 10')
            q.e(f's_add_u32 s{sT1}, s{sT1}, s{sHST}')
            return [Group(q)]
        f1 = gelu_tile(ACCB, 18, rem_soff(0), 'HR')
        f1.e(f'v_bfe_u32 v22, v{vLANE}, 2, 2')
        f1.e(f'v_lshrrev_b32 v23, 4, v{vLANE}')
        f1.e(f'v_lshl_add_u32 v24, v23, 3, v22')
        f1.e(f'v_and_b32 v25, 3, v{vLANE}')
        f1.e(f'v_and_b32 v26, 9, v24')
        f1.e(f'v_bfe_u32 v27, v24, 1, 1')
        f1.e(f'v_lshl_or_b32 v26, v27, 2, v26')
        f1.e(f's_lshl_b32 s{sT1}, s{sTT}, 2')
        f1.e(f'v_or_b32 v27, s{sT1}, v25')
        f1.e(f'v_xor_b32 v26, v26, v27')
        f1.e(f'v_lshlrev_b32 v27, 7, v24')
        f1.e(f'v_add_u32 v27, {TRK}, v27')
        f1.e(f'v_lshl_add_u32 v8, v26, 3, v27')
        f1.e(f'v_xor_b32 v26, 2, v26')
        f1.e(f'v_lshl_add_u32 v14, v26, 3, v27')
        f1.e(f'v_bfe_u32 v26, v24, 1, 3')
        f1.e(f'v_xor_b32 v26, v26, v25')
        f1.e(f'v_lshlrev_b32 v27, 6, v24')
        f1.e(f'v_add_u32 v27, {TRV}, v27')
        f1.e(f'v_lshl_add_u32 v9, v26, 3, v27')
        f1.e(f'v_xor_b32 v9, 32, v9') if False else None
        f1.e(f'v_xor_b32 v10, 32, v9')
        f1.e(f'v_xor_b32 v15, 16, v9')
        f1.e(f'v_xor_b32 v23, 16, v10')
        interleave(slots, f1, nB + 1, bsl(2) + 1)
        f2 = P()
        KA, KB0, KB1, KD = ACCB + 4, ACCB + 8, ACCB + 12, 248
        for kk in range(4):
            f2.e(f'ds_read_b64_tr_b16 {vr(KA, 2)}, v8 offset:{kk * 4096}')
            f2.e(f'ds_read_b64_tr_b16 {vr(KA + 2, 2)}, v14 offset:{kk * 4096 + 512}')
            f2.e(f'ds_read_b64_tr_b16 {vr(KB0, 2)}, v9 offset:{kk * 2048}')
            f2.e(f'ds_read_b64_tr_b16 {vr(KB0 + 2, 2)}, v15 offset:{kk * 2048 + 256}')
            f2.e(f'ds_read_b64_tr_b16 {vr(KB1, 2)}, v10 offset:{kk * 2048}')
            f2.e(f'ds_read_b64_tr_b16 {vr(KB1 + 2, 2)}, v23 offset:{kk * 2048 + 256}')
            f2.append(Gap(2))
            f2.e(f'{MF16} {vr(KD, 4)}, {vr(KA, 4)}, {vr(KB0, 4)}, {"0" if kk == 0 else vr(KD, 4)}')
            f2.e(f'{MF16} {vr(KD + 4, 4)}, {vr(KA, 4)}, {vr(KB1, 4)}, {"0" if kk == 0 else vr(KD + 4, 4)}')
        f2.e(f'v_bfe_u32 v22, v{vLANE}, 4, 1')
        f2.e(f'v_and_b32 v24, 15, v{vLANE}')
        f2.e(f'v_lshl_or_b32 v22, v22, 5, v24')
        f2.e(f'v_lshrrev_b32 v24, 5, v{vLANE}')
        f2.e(f'v_lshlrev_b32 v24, 3, v24')
        f2.e(f'v_lshl_or_b32 v22, v22, 4, v24')
        f2.e(f's_lshl_b32 s{sT1}, s{sH}, 4')
        f2.e(f's_add_u32 s{sT1}, s{sT1}, s{sRB}')
        f2.e(f's_lshl_b32 s{sT1}, s{sT1}, 2')
        f2.e(f's_add_u32 s{sT1}, s{sT1}, s{sTT}')
        f2.e(f's_lshl_b32 s{sT2}, s{sT1}, 3')
        f2.e(f's_add_u32 s{sT5}, s{sT2}, {KVFL}')
        f2.e(f's_lshl_b32 s{sT1}, s{sT1}, 10')
        f2.e(f's_add_u32 s{sT1}, s{sT1}, {KVP}')
        f2.append(Gap(2))
        for k in range(4): f2.e(f'v_cvt_pk_bf16_f32 v{24 + k}, v{KD + 2 * k}, v{KD + 2 * k + 1}')
        f2.e(f'buffer_store_dwordx2 v[24:25], v22, {srd(SWS)}, s{sT1} offen sc1', 'KV')
        f2.e(f'buffer_store_dwordx2 v[26:27], v22, {srd(SWS)}, s{sT1} offen offset:256 sc1', 'KV')
        interleave(slots, f2, bsl(2) + 1, bsl(2) + 12)
        f3 = gelu_tile(ACCB + 16, 18, rem_soff(1), 'HR')
        f3.append(WaitVm('KV'))
        set_flag(f3, f's{sT5}', 24)
        f3.extend(gelu_tile(ACCB + 32, 18, rem_soff(2), 'HR'))
        interleave(slots, f3, bsl(2) + 12, nB + 8 * 6)
    lsched = {0: [0, 1], 1: [2, 3], 2: [4, 5], 3: [6, 7], 4: [8, 9], 5: [10, 11, 12, 13, 14], 6: [15, 16]}
    for s in range(7):
        q = P()
        for n in lsched[s]: dma_L(q, n)
        bar(bsl(s), f'A{s+1}' if s < 6 else None, q, dswait=(s == 2 and half == 0))
    q = P()
    q.e(f'v_lshlrev_b32 v30, 3, v{vLANE}')
    q.e(f's_lshl_b32 s{sT4}, s{sH}, 9')
    q.e(f's_add_u32 s{sT4}, s{sT4}, {KVFL}')
    q.e(f'buffer_load_dwordx2 v[28:29], v30, {srd(SWS)}, s{sT4} offen sc1')
    slots[nB + 8 * 6 + 3].extend(q)
    if half == 1:
        q = P(); q.append(WaitVm('HR'))
        q.e(f's_lshl_b32 s{sT1}, s{sT}, 9')
        q.e(f's_lshl_b32 s{sT2}, s{sH}, 3')
        q.e(f's_add_u32 s{sT1}, s{sT1}, s{sT2}')
        q.e(f's_add_u32 s{sT1}, s{sT1}, {HFL}')
        set_flag(q, f's{sT1}', 24)
        slots[nB + 8 * 6 + 6].extend(q)
    for n, sl in enumerate(slots):
        for x in flat(sl):
            if getattr(x, 'tok', None) == 'tr' and isinstance(x, Ins): assert n > bsl(0) and n <= bsl(2), n
    for sl in slots: p.extend(sl)

def phase1_tail(p, half):
    GA = ACCB
    poll(p, f'kv{half}', 28, 30, f's{sT4}')
    p.e(f'v_and_b32 v18, 31, v{vLANE}')
    p.e(f'v_lshlrev_b32 v18, 4, v18')
    p.e(f'v_lshrrev_b32 v19, 5, v{vLANE}')
    p.e(f'v_lshl_add_u32 v20, v19, 12, v18')
    p.e(f's_lshl_b32 s{sT1}, s{sH}, 16')
    p.e(f's_lshl_b32 s{sT2}, s{sW}, 9')
    p.e(f's_add_u32 s{sT1}, s{sT1}, s{sT2}')
    p.e(f's_add_u32 s{sT1}, s{sT1}, {KVP}')
    for e in range(8):
        p.e(f'buffer_load_dwordx4 {vr(GA + 4 * e, 4)}, v20, {srd(SWS)}, s{sT1} offen sc1')
        if e < 7: p.e(f's_add_u32 s{sT1}, s{sT1}, 8192')
    p.e('s_barrier')
    dma_L(p, 17); dma_L(p, 18)
    for t in range(2):
        q = P()
        q.e(f's_mul_i32 s{sT1}, s{sJ}, 7')
        q.e(f's_add_u32 s{sT1}, s{sT1}, s{sJM}')
        q.e(f's_add_u32 s{sT1}, s{sT1}, {2 * half + t}')
        q.e(f's_lshl_b32 s{sT1}, s{sT1}, 10')
        q.e(f's_add_u32 s{sT1}, s{sT1}, s{sHST}')
        p.extend(gelu_tile(ACCA + 16 * t, 22, q, 'HA'))
    S = 128
    for k in range(8): p.e(f'v_mov_b32 v{S + k}, 0')
    for e in range(8):
        for k in range(4):
            p.e(f'v_dot2c_f32_bf16 v{S + 2 * k}, s{sSEL0}, v{GA + 4 * e + k}')
            p.e(f'v_dot2c_f32_bf16 v{S + 2 * k + 1}, s{sSEL1}, v{GA + 4 * e + k}')
    for k in range(4): p.e(f'v_permlane32_swap_b32 v{S + k}, v{S + 4 + k}')
    for k in range(4): p.e(f'v_add_f32 v{S + k}, v{S + k}, v{S + 4 + k}')
    p.e(f'v_cvt_pk_bf16_f32 v{S}, v{S}, v{S + 1}')
    p.e(f'v_cvt_pk_bf16_f32 v{S + 1}, v{S + 2}, v{S + 3}')
    p.e(f'v_lshl_add_u32 v18, v19, 3, v18')
    p.e(f's_lshl_b32 s{sT2}, s{sW}, 9')
    p.e(f'v_add_u32 v18, s{sT2}, v18')
    p.e(f'v_add_u32 v18, {KVBUF}, v18')
    p.e(f'ds_write_b64 v18, {vr(S, 2)}')
    p.append(WaitVm('HA'))
    p.e(f's_lshl_b32 s{sT4}, s{sT}, 9')
    p.e(f's_lshl_b32 s{sT2}, s{sH}, 3')
    p.e(f's_add_u32 s{sT4}, s{sT4}, s{sT2}')
    p.e(f's_add_u32 s{sT4}, s{sT4}, {HFL}')
    p.e(f's_add_u32 s{sT1}, s{sT4}, {128 * (1 + half)}')
    set_flag(p, f's{sT1}', 24)
    p.append(WaitDs())
    p.e('s_barrier')
    if half == 0:
        KVF, NUM, PHQ = 136, 152, ACCB + 32
        p.e(f'v_add_u32 v18, {KVBUF}, v{vL16}')
        for s in range(4): p.e(f'ds_read_b128 {vr(KVF + 4 * s, 4)}, v18 offset:{s * 1024}')
        for s in range(4):
            p.e(f'{MF32} {vr(NUM, 16)}, {vr(KVF + 4 * s, 4)}, {vr(PHQ + 4 * s, 4)}, {"0" if s == 0 else vr(NUM, 16)}')
        p.e(f's_lshl_b32 s{sT1}, s{sH}, 1')
        p.e(f's_add_u32 s{sT1}, s{sT1}, 112')
        p.e(f's_lshl_b32 s{sT1}, s{sT1}, 10')
        p.e(f's_add_u32 s{sT1}, s{sT1}, s{sHST}')
        p.e(f'v_add_f32 v18, {hx(f2u(1e-6))}, v{NUM + 12}')
        p.e(f'v_rcp_f32 v18, v18')
        p.e(f'v_mov_b32 v19, v18')
        p.e(f'v_permlane32_swap_b32 v18, v19')
        p.e(f'v_mul_f32 v19, v18, v{vGM}')
        for k in range(16): p.e(f'v_mul_f32 v{NUM + k}, v{NUM + k}, v{18 if k < 12 else 19}')
        for k in range(8): p.e(f'v_cvt_pk_bf16_f32 v{NUM + k}, v{NUM + 2 * k}, v{NUM + 2 * k + 1}')
        p.e(f'buffer_store_dwordx4 {vr(NUM, 4)}, v{vL16}, {srd(SWS)}, s{sT1} offen sc1', 'O')
        p.e(f'buffer_store_dwordx4 {vr(NUM + 4, 4)}, v{vL16}, {srd(SWS)}, s{sT1} offen offset:1024 sc1', 'O')
        p.append(WaitVm('O'))
        p.e(f's_add_u32 s{sT1}, s{sT4}, {128 * 3}')
        set_flag(p, f's{sT1}', 24)
    p.e(f's_cmp_ge_u32 s{sI}, 28')
    p.e('s_cbranch_scc1 L_end')

def phase2(p, half):
    AY, AS = ACCB, ACCA
    AR = [112, 116, 120, 124, 240, 244, 248, 252]
    BR = [XF + 4 * k for k in range(27)]
    XR = XF + 108
    vW = [[8, 9, 10], [11, 12, 14]]
    vO = [[15, 16], [17, 18]]
    vFL, vOUT = 19, 20
    p.e(f's_mov_b32 s{sKQ}, s{sTT}')
    p.e(f's_mul_i32 s{sHLD}, s{sT2K}, {TBLK}')
    p.e(f's_add_u32 s{sHLD}, s{sHLD}, {HB}')
    p.e(f's_lshl_b32 s{sT1}, s{sKQ}, 10')
    p.e(f's_lshl_b32 s{sOLD}, s{sKQ}, 11')
    p.e(f's_add_u32 s{sOLD}, s{sOLD}, s{sHLD}')
    p.e(f's_add_u32 s{sHLD}, s{sHLD}, s{sT1}')
    p.e(f's_lshl_b32 s{sFLD}, s{sT2K}, 9')
    p.e(f's_add_u32 s{sFLD}, s{sFLD}, {HFL}')
    p.e(f'v_and_b32 v{vFL}, 15, v{vLANE}')
    p.e(f'v_lshlrev_b32 v{vFL}, 3, v{vFL}')
    p.e(f'buffer_load_dwordx2 v[28:29], v{vFL}, {srd(SWS)}, s{sFLD} offen sc1')
    p.e(f'v_and_b32 v21, 31, v{vLANE}')
    p.e(f's_lshl_b32 s{sT1}, s{sT2K}, 5')
    p.e(f'v_add_u32 v21, s{sT1}, v21')
    p.e(f'v_mul_u32_u24 v21, 896, v21')
    p.e(f'v_lshrrev_b32 v22, 5, v{vLANE}')
    p.e(f'v_lshl_add_u32 v21, v22, 4, v21')
    p.e(f's_lshl_b32 s{sT1}, s{sNG}, 7')
    p.e(f's_lshl_b32 s{sT2}, s{sKQ}, 5')
    p.e(f's_add_u32 s{sT1}, s{sT1}, s{sT2}')
    p.e(f'v_add_u32 v{vOUT}, s{sT1}, v21')
    p.e(f'buffer_load_dwordx4 {vr(XR, 4)}, v{vOUT}, {srd(SX)}, 0 offen')
    p.e(f'v_bfe_u32 v23, v{vLANE}, 2, 2')
    p.e(f'v_bfe_u32 v24, v{vLANE}, 4, 1')
    p.e(f'v_and_b32 v25, 3, v{vLANE}')
    p.e(f'v_and_b32 v26, 2, v23')
    p.e(f'v_xor_b32 v24, v24, v26')
    p.e(f'v_lshlrev_b32 v25, 3, v25')
    p.e(f'v_lshl_add_u32 v25, v23, 7, v25')
    p.e(f'v_lshl_add_u32 v25, v24, 5, v25')
    p.e(f'v_lshl_add_u32 v26, v22, 9, v25')
    p.e(f's_lshl_b32 s{sT1}, s{sKQ}, 11')
    p.e(f's_mul_i32 s{sT2}, s{sKQ}, {28 * 128}')
    p.e(f's_add_u32 s{sT2}, s{sT2}, {WOU}')
    p.e(f'v_add_u32 v{vW[0][0]}, s{sT1}, v26')
    p.e(f'v_xor_b32 v{vW[1][0]}, 64, v{vW[0][0]}')
    for nt in range(2):
        p.e(f'v_add_u32 v{vW[nt][1]}, 0x10000, v{vW[nt][0]}')
        p.e(f'v_add_u32 v{vW[nt][2]}, 0x20000, v{vW[nt][0]}')
    p.e(f'v_add_u32 v{vO[0][0]}, s{sT2}, v26')
    p.e(f'v_add_u32 v{vO[0][1]}, s{sT2}, v25')
    p.e(f'v_xor_b32 v{vO[1][0]}, 64, v{vO[0][0]}')
    p.e(f'v_xor_b32 v{vO[1][1]}, 64, v{vO[0][1]}')
    ks = []
    for n in range(28):
        u = LU[n]
        ks.append(dict(b=('H', LINES[n] * 4096), acc=AY, first=(n == 0),
                       rd=[[(vW[nt][u // 8], (u % 8) * U + r * 1024) for r in range(2)] for nt in range(2)]))
    for e in range(4):
        for s in range(2):
            rd = []
            for nt in range(2):
                if s == 0: rd.append([(vO[nt][0], e * 14336 + r * 1024) for r in range(2)])
                else: rd.append([(vO[nt][0], e * 14336 + 2048), (vO[nt][1], e * 14336 + 3072)])
            ks.append(dict(b=('O', (112 + 8 * e + s) * 1024), acc=AS, first=(e == 0 and s == 0), rd=rd))
    def bload(k):
        q = P(); kind, off = ks[k]['b']
        q.e(f's_add_u32 s{sT1}, s{sHLD if kind == "H" else sOLD}, {off}')
        q.e(f'buffer_load_dwordx4 {vr(BR[k % 27], 4)}, v{vL16}, {srd(SWS)}, s{sT1} offen sc1')
        return q
    poll(p, f'R{half}', 28, vFL, f's{sFLD}')
    for k in range(12): p.extend(bload(k))
    p.e(f's_lshr_b32 s{sT3}, s{sKQ}, 1')
    p.e(f's_add_u32 s{sT3}, s{sT3}, 1')
    p.e(f's_lshl_b32 s{sT3}, s{sT3}, 7')
    p.e(f's_add_u32 s{sT3}, s{sT3}, s{sFLD}')
    p.e(f's_add_u32 s{sT4}, s{sFLD}, {128 * 3}')
    p.e(f'buffer_load_dwordx2 v[28:29], v{vFL}, {srd(SWS)}, s{sT3} offen sc1')
    NB = len(AR); D = NB - 2
    mf = [(k, nt) for k in range(36) for nt in range(2)]
    def reads(n):
        k, nt = mf[n]; b = AR[n % NB]
        return [I(f'ds_read_b64_tr_b16 {vr(b + 2 * r, 2)}, v{a} offset:{off}') for r, (a, off) in enumerate(ks[k]['rd'][nt])]
    p.append(WaitVm(['L0', 'L1', 'L2', 'L3'])); p.e('s_barrier')
    for n in range(D): p.extend(reads(n))
    slots = []
    for n, (k, nt) in enumerate(mf):
        acc = ks[k]['acc'] + 16 * nt
        sl = [I(f'{MF32} {vr(acc, 16)}, {vr(AR[n % NB], 4)}, {vr(BR[k % 27], 4)}, {"0" if ks[k]["first"] else vr(acc, 16)}')]
        if n + D < len(mf): sl += reads(n + D)
        slots.append(sl)
    for s in range(8):
        q = P()
        if s < 6: q.append(WaitVm([f'L{4 * (s + 1) + i}' for i in range(4)]))
        if s == 6: q.append(WaitVm('WO'))
        q.e('s_barrier')
        if s == 1:
            for n in range(19, 23): dma_L(q, n)
        if s == 2:
            for n in range(23, 27): dma_L(q, n)
        if s == 3: dma_L(q, 27)
        if s == 5: dma_WO(q)
        if s <= 6: slots[8 * s + 1].extend(q)
    q = P(); poll(q, f'A{half}', 28, vFL, f's{sT3}')
    for k in range(12, 27): q.extend(bload(k))
    q.e(f'buffer_load_dwordx2 v[28:29], v{vFL}, {srd(SWS)}, s{sT4} offen sc1')
    slots[3].extend(q)
    slots[5].extend(bload(27))
    q = P(); poll(q, f'O{half}', 28, vFL, f's{sT4}')
    for k in range(28, 36): q.extend(bload(k))
    slots[8 * 3 + 3].extend(q)
    q = P()
    q.e(f's_lshl_b32 s{sT1}, s{sKQ}, 11')
    q.e(f's_add_u32 s{sT1}, s{sT1}, {REDY + half * 32768}')
    q.e(f'v_add_u32 v21, s{sT1}, v{vL16}')
    for part in range(4):
        for hh in range(2):
            q.e(f'ds_write_b128 v21, {vr(AY + 8 * part + 4 * hh, 4)} offset:{part * 8192 + hh * 1024}', 'red')
    return slots, q

def phase2_emit(p, half):
    AY, AS = ACCB, ACCA
    XR = XF + 108; vOUT = 20
    slots, ywr = phase2(p, half)
    interleave(slots, ywr, 8 * 7 + 2, 8 * 9)
    for sl in slots: p.extend(sl)
    p.append(WaitDs())
    p.e('s_barrier')
    p.e(f's_lshl_b32 s{sT1}, s{sKQ}, 11')
    p.e(f's_add_u32 s{sT1}, s{sT1}, {half * 32768}')
    p.e(f'v_add_u32 v22, s{sT1}, v{vL16}')
    p.e(f's_lshl_b32 s{sT1}, s{sKQ}, 13')
    p.e(f's_add_u32 s{sT1}, s{sT1}, {half * 32768}')
    p.e(f'v_add_u32 v23, s{sT1}, v{vL16}')
    p.e(f'v_add_u32 v21, {REDY}, v23')
    for part in range(4):
        for hh in range(2):
            p.e(f'ds_write_b128 v22, {vr(AS + 8 * part + 4 * hh, 4)} offset:{part * 8192 + hh * 1024}', 'red')
    YR = 128
    for src in range(4):
        for hh in range(2):
            p.e(f'ds_read_b128 {vr(YR + 8 * src + 4 * hh, 4)}, v21 offset:{src * 2048 + hh * 1024}')
    p.append(WaitDs('red'))
    p.e('s_barrier')
    SR = 160
    for src in range(4):
        for hh in range(2):
            p.e(f'ds_read_b128 {vr(SR + 8 * src + 4 * hh, 4)}, v23 offset:{src * 2048 + hh * 1024}')
    p.e(f'v_permlane32_swap_b32 v{XR}, v{XR + 2}')
    p.e(f'v_permlane32_swap_b32 v{XR + 1}, v{XR + 3}')
    for k in range(8):
        p.e(f'v_add_f32 v{YR + k}, v{YR + k}, v{YR + 8 + k}')
        p.e(f'v_add_f32 v{YR + 16 + k}, v{YR + 16 + k}, v{YR + 24 + k}')
    for k in range(8): p.e(f'v_add_f32 v{YR + k}, v{YR + k}, v{YR + 16 + k}')
    G = YR + 8
    for k in range(8): p.e(f'v_mul_f32 v{G + k}, {hx(f2u(-LOG2E))}, v{YR + k}')
    for k in range(8): p.e(f'v_exp_f32 v{G + k}, v{G + k}')
    for k in range(8): p.e(f'v_add_f32 v{G + k}, 1.0, v{G + k}')
    for k in range(8): p.e(f'v_rcp_f32 v{G + k}, v{G + k}')
    for k in range(8): p.e(f'v_mul_f32 v{G + k}, v{G + k}, v{YR + k}')
    XU_ = YR + 16
    for k in range(4):
        p.e(f'v_lshlrev_b32 v{XU_ + 2 * k}, 16, v{XR + k}')
        p.e(f'v_and_b32 v{XU_ + 2 * k + 1}, 0xffff0000, v{XR + k}')
    for k in range(8):
        p.e(f'v_add_f32 v{SR + k}, v{SR + k}, v{SR + 8 + k}')
        p.e(f'v_add_f32 v{SR + 16 + k}, v{SR + 16 + k}, v{SR + 24 + k}')
    for k in range(8): p.e(f'v_add_f32 v{SR + k}, v{SR + k}, v{SR + 16 + k}')
    for k in range(8): p.e(f'v_fmac_f32 v{XU_ + k}, v{SR + k}, v{G + k}')
    for k in range(4): p.e(f'v_cvt_pk_bf16_f32 v{YR + k}, v{XU_ + 2 * k}, v{XU_ + 2 * k + 1}')
    p.e(f'v_permlane32_swap_b32 v{YR}, v{YR + 2}')
    p.e(f'v_permlane32_swap_b32 v{YR + 1}, v{YR + 3}')
    p.e(f'buffer_store_dwordx4 {vr(YR, 4)}, v{vOUT}, {srd(SOUT)}, 0 offen')
    if half == 0:
        p.e(f's_or_b32 s{sT1}, s2, s{sW}')
        p.e(f's_cmp_lg_u32 s{sT1}, 0')
        p.e(f's_cbranch_scc1 L_end')
        set_flag(p, '0', 24)
    p.e('s_endpgm')

def build():
    pro = prologue()
    paths = []
    for half in range(2):
        p = P()
        setup_half(p, half); x_stage(p, half); phase1_main(p, half); phase1_tail(p, half); phase2_emit(p, half)
        paths.append(p)
    pro_f = finalize(list(pro))
    outs = []
    for half in range(2):
        mark = I(f'L_half{half}:')
        full = finalize(list(pro) + [mark] + list(paths[half]))
        k = full.index(mark)
        outs.append(full[k:])
    slow = []
    for q in slow_paths: slow += finalize(list(q))
    hdr = open('recurrent_scan__linear_kernel_hedgehog__geglu_ffn__prompt.s.ref').read().split('\n')
    top = [l for l in hdr if l.startswith(';') and '@launch' not in l and 'Override' not in l and 'grid=ceil' not in l]
    s = '\n'.join(top) + '\n; @launch grid=(256,1,1) block=(512,1,1) lds=163840\n'
    s += f'.amdgcn_target "amdgcn-amd-amdhsa--gfx950"\n.text\n.globl {NAME}\n.p2align 8\n.type {NAME},@function\n{NAME}:\n'
    s += text(pro_f) + text(outs[0]) + text(outs[1]) + text(slow)
    s += 'L_end:\n    s_endpgm\nL_codeend:\n'
    s += f'''.section .rodata,"a"
.p2align 6
.amdhsa_kernel {NAME}
  .amdhsa_next_free_vgpr 256
  .amdhsa_next_free_sgpr 96
  .amdhsa_accum_offset 256
  .amdhsa_group_segment_fixed_size 0
  .amdhsa_kernarg_size 88
  .amdhsa_user_sgpr_count 2
  .amdhsa_user_sgpr_kernarg_segment_ptr 1
  .amdhsa_system_sgpr_workgroup_id_x 1
.end_amdhsa_kernel
'''
    return s

if __name__ == '__main__':
    out = sys.argv[1] if len(sys.argv) > 1 else 'recurrent_scan__linear_kernel_hedgehog__geglu_ffn__prompt.s'
    open(out, 'w').write(build())
```

```python
import sys, struct, math, json
sys.path.insert(0, 'work')
from asmlib import *

NAME = 'recurrent_scan__linear_kernel_hedgehog__geglu_ffn__prompt_kernel'
def f2u(x): return struct.unpack('<I', struct.pack('<f', x))[0]
def hx(x): return '0x%08x' % (x & 0xffffffff)
LOG2E = 1.4426950408889634
ARGS = sys.argv[2:]
DEBUG = 'dbg' in ARGS
def opt(name, default):
    for a in ARGS:
        if a.startswith(name + '='): return int(a.split('=')[1])
    return default

EP, KVFL, HFL, KVP, HB = 0x0, 0x1000, 0x4000, 0x10000, 0x200000
TBLK = 148 * 1024
WS_SIZE = HB + 64 * TBLK
DBGOFF = 0xC00000
if DEBUG: WS_SIZE = 0xD00000
SX, SQKV, SG, SU, SWD, SWO, SWS, SOUT, SPHI, SREM = 8, 12, 16, 20, 24, 28, 32, 36, 40, 44
def srd(b): return f's[{b}:{b+3}]'
sW, sRB, sH, sJ, sJM, sCH, sW1K, sREML = 48, 49, 50, 51, 52, 53, 54, 55
sTAG = 56
sTT, sT, sXI, sI = 58, 59, 60, 61
sC = 62; sHST = 63
sT0, sT1, sT2, sT3, sT4, sT5 = 64, 65, 66, 67, 68, 69
sONE2, sSEL0, sSEL1 = 70, 71, 72
sHLD, sFLD, sNG, sT2K, sFLA, sFLP, sKVFL = 73, 74, 75, 76, 77, 78, 82
sSPIN = 79
sPC = 80
vLANE, vL16, vGM, vR, vCc, vK1, vK2 = 1, 2, 3, 4, 5, 6, 7
vOB = [8, 9, 10]; vOA = [11, 12]; vOW2 = 13
vTB = [14, 15]; vTA = [16, 17]
ACCA, ACCB, XF = 32, 64, 128
AFR = [112, 116, 120, 124, 240, 244]
WPHI = 248
def vr(b, n=1): return f'v{b}' if n == 1 else f'v[{b}:{b+n-1}]'

U = 8192
XU = lambda p: 2 * p * U
BU = [14 * U, 17 * U, 0, 3 * U, 6 * U, 9 * U, 12 * U]
AU = [15 * U, 17 * U, 0, 2 * U, 4 * U, 6 * U, 8 * U]
STAT = 10 * U
TRV, TRK = 10 * U, 11 * U
MISC = 19 * U
KVBUF = MISC + 4096
LINES = [L for L in range(28) if L % 7 in (1, 3, 5)] + [L for L in range(28) if L % 7 in (0, 2, 4, 6)] + list(range(28, 36))
LU = [13, 14, 15, 16, 17, 18, 0, 1, 2, 3, 10, 11, 12, 4, 5, 6, 7, 8, 9,
      13, 14, 15, 16, 17, 18, 0, 1, 2, 3, 10, 11, 12, 4, 5, 6, 7]
REDY = 13 * U
REDS = 0

MF32 = 'v_mfma_f32_32x32x16_bf16'
MF16 = 'v_mfma_f32_16x16x32_bf16'

class P(list):
    def e(self, t, tok=None): self.append(I(t, tok)); return self

STAMPS = {}
def stamp(p, name, rt=False):
    if not DEBUG: return
    k = STAMPS.setdefault(name, len(STAMPS)); assert k < 64
    p.append(Group([I(f'{"s_memrealtime" if rt else "s_memtime"} s[84:85]'), I('s_waitcnt lgkmcnt(0)'), I(f'v_writelane_b32 v0, s84, {k}')]))
def dump(p):
    if not DEBUG: return
    stamp(p, 'rt_end', True)
    p.e(f's_lshl_b32 s84, s2, 3'); p.e(f's_add_u32 s84, s84, s{sW}'); p.e('s_lshl_b32 s84, s84, 8'); p.e(f's_add_u32 s84, s84, {DBGOFF}')
    p.e(f'v_lshlrev_b32 v31, 2, v{vLANE}')
    p.e(f'buffer_store_dword v0, v31, {srd(SWS)}, s84 offen')

def dma(p, s, voff, pre, m0base, m0const, tok):
    p.append(Group([I(f's_add_u32 m0, s{m0base}, {m0const}')] + [I(t) for t in pre] +
                   [I(f'buffer_load_dwordx4 v{voff}, {srd(s)}, s{sT0} offen lds', tok)]))
def cidx(pos): return f's_bfe_u32 s{sT0}, s{sCH}, {hx((4 << 16) | (4 * pos))}'
vOX = 31
def dma_X(p, c):
    dma(p, SX, vOX, [cidx(c), f's_lshl_b32 s{sT0}, s{sT0}, 7'], sW1K, XU(c), f'X{c}')
    dma(p, SX, vOX, [f's_add_u32 s{sT0}, s{sT0}, {64 * 896}'], sW1K, XU(c) + U, f'X{c}')
def dma_B(p, half, pos):
    tok = f'B{pos}'
    if half == 0:
        for m in range(3):
            pre = [cidx(pos), f's_mul_i32 s{sT0}, s{sT0}, {64 * 2688}'] if m == 0 else [f's_add_u32 s{sT0}, s{sT0}, 896']
            dma(p, SQKV, vOB[0], pre, sW1K, BU[pos] + m * 4096, tok)
    else:
        for n in range(3):
            pre = [cidx(pos), f's_mul_i32 s{sT0}, s{sT0}, {64 * 3584}'] if n == 0 else []
            dma(p, SREM, vOB[n], pre, sREML, BU[pos] + 12288 + n * 1024, tok)
def dma_A(p, pos):
    tok = f'A{pos}'
    dma(p, SG, vOA[0], [cidx(pos), f's_mul_i32 s{sT0}, s{sT0}, {64 * 3584}'], sW1K, AU[pos], tok)
    dma(p, SU, vOA[1], [], sW1K, AU[pos] + U, tok)
def dma_L(p, n, both=False):
    L = LINES[n]
    s, row = (SWD, L * 64) if L < 28 else (SWO, (L - 28) * 56)
    dma(p, s, vOW2, [f's_mov_b32 s{sT0}, {row * 896}'], sW1K, LU[n] * U, f'L{n}')
    if both: dma(p, s, vOW2, [f's_mov_b32 s{sT0}, {(row + 32) * 896}'], sW1K, LU[n] * U + 4096, f'L{n}')
def spread(slots, atoms, start, end):
    n = len(atoms)
    for k, x in enumerate(atoms):
        slots[start + (k * (end - start)) // n].append(x)
def mix(code, atoms, lead=0.0, tail=1.0):
    total = sum(x.cost for x in code); out = P(); acc = 0; k = 0; n = len(atoms)
    for x in code:
        while k < n and acc >= total * (lead + (tail - lead) * k / n): out.append(atoms[k]); k += 1
        out.append(x); acc += x.cost
    out.extend(atoms[k:])
    return out

slow_paths = []
def flag_load(p, vflag, vaddr, soff):
    p.e(f'buffer_load_dwordx2 {vr(vflag, 2)}, v{vaddr}, {srd(SWS)}, {soff} offen sc1')
def poll(p, uid, vflag, vaddr, soff):
    p.e(f'v_cmp_ne_u64 vcc, s[{sTAG}:{sTAG+1}], {vr(vflag, 2)}')
    p.e(f's_cbranch_vccnz L_slow_{uid}')
    p.e(f'L_res_{uid}:')
    q = P(); q.append(Reset())
    q.e(f'L_slow_{uid}:')
    q.e(f's_mov_b32 s{sSPIN}, 0x40000')
    q.e(f'L_spin_{uid}:')
    flag_load(q, vflag, vaddr, soff)
    q.e('s_waitcnt vmcnt(0)')
    q.e(f'v_cmp_ne_u64 vcc, s[{sTAG}:{sTAG+1}], {vr(vflag, 2)}')
    q.e(f's_cbranch_vccz L_res_{uid}')
    q.e('s_sleep 1')
    q.e(f's_sub_u32 s{sSPIN}, s{sSPIN}, 1')
    q.e(f's_cmp_lg_u32 s{sSPIN}, 0')
    q.e(f's_cbranch_scc1 L_spin_{uid}')
    q.e(f's_branch L_res_{uid}')
    slow_paths.append(q)
def set_flag(p, soff, vt):
    p.append(Group([I(f'v_mov_b32 v{vt}, s{sTAG}'), I(f'v_mov_b32 v{vt+1}, s{sTAG+1}'),
        I(f's_mov_b64 exec, 1'),
        I(f'buffer_store_dwordx2 {vr(vt, 2)}, off, {srd(SWS)}, {soff} sc1'),
        I(f's_mov_b64 exec, -1')]))

def srd_consts(p, b, n):
    p.e(f's_mov_b32 s{b+2}, {n}'); p.e(f's_mov_b32 s{b+3}, 0x20000')

def prologue():
    p = P()
    p.e('s_cmp_ge_u32 s2, 256')
    p.e('s_cbranch_scc1 L_end')
    if DEBUG: p.e('s_memtime s[86:87]'); p.e('s_memrealtime s[88:89]')
    for b, off in ((SX, 0), (SQKV, 8), (SG, 40), (SU, 48), (SPHI, 16), (SWO, 24), (SWD, 56), (SOUT, 64), (SWS, 80)):
        p.e(f's_load_dwordx2 s[{b}:{b+1}], s[0:1], {off}')
    p.e(f's_getpc_b64 s[{sPC}:{sPC+1}]')
    p.e('L_pcbase:')
    p.e(f's_lshr_b32 s{sI}, s2, 3')
    p.e(f'v_lshrrev_b32 v18, 6, v0')
    p.e(f'v_and_b32 v19, 1, v0')
    p.e(f'v_lshl_or_b32 v19, v18, 1, v19')
    p.e(f's_lshl_b32 s{sT0}, s{sI}, 4')
    p.e(f'v_add_u32 v19, s{sT0}, v19')
    p.e(f'v_lshlrev_b32 v19, 7, v19')
    p.e(f'v_min_u32 v19, (L_codeend - L_pcbase - 4), v19')
    p.e(f'global_load_dword v30, v19, s[{sPC}:{sPC+1}]')
    p.e(f'v_readfirstlane_b32 s{sW}, v18')
    p.e(f's_and_b32 s{sXI}, s2, 7')
    p.e(f'v_and_b32 v{vLANE}, 63, v0')
    p.e(f's_and_b32 s{sT0}, s{sXI}, 1')
    p.e(f's_lshl_b32 s{sT0}, s{sT0}, 3')
    p.e(f's_and_b32 s{sT1}, s{sI}, 7')
    p.e(f's_add_u32 s{sRB}, s{sT0}, s{sT1}')
    p.e(f's_lshr_b32 s{sT2}, s{sI}, 3')
    p.e(f's_lshr_b32 s{sT0}, s{sXI}, 1')
    p.e(f's_lshl_b32 s{sT0}, s{sT0}, 2')
    p.e(f's_add_u32 s{sH}, s{sT0}, s{sT2}')
    p.e(f'v_lshrrev_b32 v20, 3, v{vLANE}')
    p.e(f's_lshl_b32 s{sT2}, s{sT2}, 1')
    p.e(f's_add_u32 s{sT1}, s{sT1}, s{sT2}')
    p.e(f'v_lshrrev_b32 v21, 4, v{vLANE}')
    p.e(f's_sub_u32 s{sT2}, s{sT1}, 7')
    p.e(f's_cmp_ge_u32 s{sT1}, 7')
    p.e(f's_cselect_b32 s{sT1}, s{sT2}, s{sT1}')
    p.e(f'v_and_b32 v22, 7, v{vLANE}')
    p.e(f's_lshl_b32 s{sT1}, s{sT1}, 2')
    p.e(f's_mov_b32 s{sT2}, 0x06543210')
    p.e(f's_mov_b32 s{sT3}, 0x00654321')
    p.e(f's_lshr_b64 s[{sT2}:{sT3}], s[{sT2}:{sT3}], s{sT1}')
    p.e(f's_mov_b32 s{sCH}, s{sT2}')
    p.e(f's_lshl_b32 s{sW1K}, s{sW}, 10')
    p.e(f's_lshl_b32 s{sT0}, s{sRB}, 7')
    p.e(f's_lshl_b32 s{sT1}, s{sW}, 3')
    p.e(f's_add_u32 s{sT0}, s{sT0}, s{sT1}')
    p.e(f'v_add_u32 v{vOX}, s{sT0}, v20')
    p.e(f'v_mul_u32_u24 v{vOX}, 896, v{vOX}')
    p.e(f's_and_b32 s{sT1}, s{sW}, 1')
    p.e(f's_lshl_b32 s{sT1}, s{sT1}, 2')
    p.e(f'v_xor_b32 v21, s{sT1}, v21')
    p.e(f'v_xor_b32 v21, v21, v22')
    p.e(f'v_lshl_add_u32 v{vOX}, v21, 4, v{vOX}')
    srd_consts(p, SX, 1835008)
    p.e('s_waitcnt lgkmcnt(0)')
    if DEBUG:
        STAMPS['start'] = 0; STAMPS['rt_start'] = 1
        p.e('v_writelane_b32 v0, s86, 0'); p.e('v_writelane_b32 v0, s88, 1')
    stamp(p, 'karg')
    dma_X(p, 0)
    p.e(f's_and_b32 s{sTT}, s{sW}, 3')
    p.e(f's_cmp_ge_u32 s{sW}, 4')
    p.e('s_cbranch_scc1 L_half1')
    return p

NUP = opt('nup', 4)

def setup_half(p, half):
    f = P()
    p.e(f'v_and_b32 v23, 31, v{vLANE}')
    p.e(f'v_lshrrev_b32 v18, 5, v{vLANE}')
    p.e(f'v_bfe_u32 v19, v{vLANE}, 1, 3')
    p.e(f'v_xor_b32 v19, v19, v18')
    dma_X(p, 1)
    p.e(f'v_lshlrev_b32 v23, 7, v23')
    p.e(f's_lshl_b32 s{sT1}, s{sTT}, 12')
    p.e(f'v_add_u32 v23, s{sT1}, v23')
    p.e(f's_mov_b32 s{sONE2}, 0x3f803f80')
    for ks in range(4):
        if ks + 2 < NUP: dma_X(p, ks + 2)
        p.e(f'v_xor_b32 v{24 + ks}, {2 * ks}, v19')
        p.e(f'v_lshl_add_u32 v{24 + ks}, v{24 + ks}, 4, v23')
    for b, n in ((SQKV, 448 * 2688), (SG, 448 * 3584), (SU, 448 * 3584), (SPHI, 16 * 1568),
                 (SWO, 448 * 896), (SWD, 1792 * 896), (SOUT, 1835008), (SWS, WS_SIZE)):
        srd_consts(f, b, n)
    sl = [0, 1, 3, 2, 4, 5, 7, 6, 9, 8, 10, 11, 13, 12, 14, 15]
    lo = sum(sl[k] << (4 * k) for k in range(8)); hi = sum(sl[8 + k] << (4 * k) for k in range(8))
    f.e(f's_mov_b32 s{sT2}, {hx(lo)}')
    f.e(f's_mov_b32 s{sT3}, {hx(hi)}')
    f.e(f's_lshl_b32 s{sT1}, s{sH}, 2')
    f.e(f's_lshr_b64 s[{sT2}:{sT3}], s[{sT2}:{sT3}], s{sT1}')
    f.e(f's_and_b32 s{sJ}, s{sT2}, 15')
    f.e(f's_and_b32 s{sJM}, s{sJ}, 3')
    if half == 0:
        f.e(f's_lshl_b32 s{sT1}, s{sW}, 4')
        f.e(f'v_lshrrev_b32 v23, 2, v{vLANE}')
        f.e(f'v_add_u32 v23, s{sT1}, v23')
        f.e(f'v_mul_u32_u24 v{vOB[0]}, 2688, v23')
        f.e(f'v_and_b32 v23, 3, v{vLANE}')
        f.e(f'v_lshlrev_b32 v23, 4, v23')
        f.e(f'v_min_u32 v23, 40, v23')
        f.e(f's_mul_i32 s{sT1}, s{sH}, 56')
        f.e(f'v_add3_u32 v{vOB[0]}, v{vOB[0]}, v23, s{sT1}')
    else:
        f.e(f's_lshr_b32 s{sT1}, s{sTT}, 1')
        f.append(Group([I(f's_cmp_eq_u32 s{sT1}, 0'), I(f's_cselect_b32 s{SREM}, s{SG}, s{SU}'), I(f's_cselect_b32 s{SREM+1}, s{SG+1}, s{SU+1}')]))
        srd_consts(f, SREM, 448 * 3584)
        f.e(f's_mul_i32 s{sREML}, s{sTT}, 3072')
        f.e(f's_lshl_b32 s{sT1}, s{sT1}, 2')
        f.e(f's_and_b32 s{sT2}, s{sTT}, 1')
        f.e(f's_lshl_b32 s{sT2}, s{sT2}, 5')
        f.e(f's_mul_i32 s{sT3}, s{sJ}, 224')
        for n in range(3):
            f.e(f'v_add_u32 v23, {64 * n}, v{vLANE}')
            f.e(f'v_mul_u32_u24 v28, 171, v23')
            f.e(f'v_lshrrev_b32 v28, 10, v28')
            f.e(f'v_mul_u32_u24 v29, 6, v28')
            f.e(f'v_sub_u32 v29, v23, v29')
            f.e(f'v_xor_b32 v28, s{sT1}, v28')
            f.e(f'v_add_u32 v28, s{sT2}, v28')
            f.e(f'v_mul_u32_u24 v{vOB[n]}, 3584, v28')
            f.e(f'v_lshrrev_b32 v28, 1, v29')
            f.e(f'v_add_u32 v23, 4, v28')
            f.e(f'v_cmp_gt_u32 vcc, s{sJM}, v28')
            f.e(f'v_and_b32 v29, 1, v29')
            f.e(f'v_cndmask_b32 v28, v23, v28, vcc')
            f.e(f'v_lshl_or_b32 v28, v28, 1, v29')
            f.e(f'v_lshlrev_b32 v28, 4, v28')
            f.e(f'v_add3_u32 v{vOB[n]}, v{vOB[n]}, v28, s{sT3}')
    g = P()
    g.e(f's_lshl_b32 s{sT1}, s{sW}, 3')
    g.e(f'v_add_u32 v23, s{sT1}, v20')
    g.e(f'v_bfe_u32 v21, v{vLANE}, 4, 1')
    g.e(f'v_lshlrev_b32 v19, 1, v21')
    g.e(f'v_xor_b32 v19, v19, v22')
    g.e(f's_mul_i32 s{sT2}, s{sJ}, 224')
    g.e(f's_lshl_b32 s{sT3}, s{sJM}, 5')
    g.e(f's_add_u32 s{sT2}, s{sT2}, s{sT3}')
    g.e(f'v_mul_u32_u24 v{vOW2}, 3584, v23')
    g.e(f'v_add_u32 v{vOW2}, s{sT2}, v{vOW2}')
    g.e(f'v_lshl_add_u32 v{vOA[0]}, v19, 4, v{vOW2}')
    g.e(f'v_xor_b32 v19, 4, v19')
    g.e(f'v_lshl_add_u32 v{vOA[1]}, v19, 4, v{vOW2}')
    g.e(f's_mul_i32 s{sT2}, s{sI}, 37')
    g.e(f's_lshr_b32 s{sT2}, s{sT2}, 8')
    g.e(f's_mul_i32 s{sT3}, s{sT2}, 7')
    g.e(f's_sub_u32 s{sNG}, s{sI}, s{sT3}')
    g.e(f's_lshl_b32 s{sT3}, s{sXI}, 2')
    g.e(f's_add_u32 s{sT2}, s{sT2}, s{sT3}')
    g.e(f's_lshl_b32 s{sT2}, s{sT2}, 1')
    g.e(f's_add_u32 s{sT2K}, s{sT2}, {half}')
    g.e(f's_and_b32 s{sT2K}, s{sT2K}, 63')
    g.e(f'v_lshlrev_b32 v19, 2, v21')
    g.e(f'v_xor_b32 v19, v19, v22')
    g.e(f'v_mul_u32_u24 v23, 896, v23')
    g.e(f's_lshl_b32 s{sT2}, s{sNG}, 7')
    g.e(f'v_add_u32 v23, s{sT2}, v23')
    g.e(f'v_lshl_add_u32 v{vOW2}, v19, 4, v23')
    g.e(f'v_lshlrev_b32 v{vL16}, 4, v{vLANE}')
    g.e(f'v_cmp_lt_u32 vcc, 31, v{vLANE}')
    g.e(f'v_mov_b32 v{vK1}, {hx(f2u(-2 * math.sqrt(2 / math.pi) * LOG2E))}')
    g.e(f'v_mov_b32 v{vK2}, {hx(f2u(-2 * math.sqrt(2 / math.pi) * LOG2E * 0.044715))}')
    g.e(f'v_cndmask_b32 v{vGM}, 0, 1.0, vcc')
    g.e(f's_mov_b32 s{sC}, {hx(f2u(LOG2E))}')
    g.e(f's_mov_b32 s{sSEL0}, 0x00003f80')
    g.e(f's_mov_b32 s{sSEL1}, 0x3f800000')
    g.e(f's_lshl_b32 s{sT}, s{sRB}, 2')
    g.e(f's_add_u32 s{sT}, s{sT}, s{sTT}')
    g.e(f's_mul_i32 s{sHST}, s{sT}, {TBLK}')
    g.e(f's_add_u32 s{sHST}, s{sHST}, {HB}')
    g.e(f's_lshl_b32 s{sFLP}, s{sT}, 9')
    g.e(f's_lshl_b32 s{sT2}, s{sH}, 3')
    g.e(f's_add_u32 s{sFLP}, s{sFLP}, s{sT2}')
    g.e(f's_add_u32 s{sFLP}, s{sFLP}, {HFL}')
    g.e(f's_mul_i32 s{sHLD}, s{sT2K}, {TBLK}')
    g.e(f's_lshl_b32 s{sT2}, s{sTT}, 10')
    g.e(f's_add_u32 s{sHLD}, s{sHLD}, s{sT2}')
    g.e(f's_add_u32 s{sHLD}, s{sHLD}, {HB}')
    g.e(f's_lshl_b32 s{sFLD}, s{sT2K}, 9')
    g.e(f's_add_u32 s{sFLD}, s{sFLD}, {HFL}')
    g.e(f's_lshr_b32 s{sFLA}, s{sTT}, 1')
    g.e(f's_add_u32 s{sFLA}, s{sFLA}, 1')
    g.e(f's_lshl_b32 s{sFLA}, s{sFLA}, 7')
    g.e(f's_add_u32 s{sFLA}, s{sFLA}, s{sFLD}')
    g.e(f's_lshl_b32 s{sKVFL}, s{sH}, 9')
    g.e(f's_add_u32 s{sKVFL}, s{sKVFL}, {KVFL}')
    g.e(f'v_bfe_u32 v23, v{vLANE}, 2, 2')
    g.e(f'v_lshrrev_b32 v20, 5, v{vLANE}')
    g.e(f'v_and_b32 v22, 3, v{vLANE}')
    g.e(f'v_lshl_add_u32 v20, v20, 3, v23')
    if half == 0:
        g.e(f'v_lshlrev_b32 v{vTB[0]}, 6, v20')
        g.e(f'v_lshl_add_u32 v{vTB[0]}, v21, 5, v{vTB[0]}')
        g.e(f'v_lshl_add_u32 v{vTB[0]}, v22, 3, v{vTB[0]}')
        g.e(f'v_add_u32 v{vTB[0]}, {BU[0]}, v{vTB[0]}')
    else:
        g.e(f's_mov_b32 s{sT2}, {BU[0] + 12288}')
        for rd in range(2):
            g.e(f'v_xor_b32 v19, {rd}, v21')
            g.e(f'v_lshl_add_u32 v19, v19, 2, v20')
            g.e(f'v_mul_u32_u24 v19, 96, v19')
            g.e(f'v_mul_u32_u24 v{vTB[rd]}, 6144, v21')
            g.e(f'v_lshl_add_u32 v19, v22, 3, v19')
            g.e(f'v_add3_u32 v{vTB[rd]}, v{vTB[rd]}, v19, s{sT2}')
    g.e(f'v_lshrrev_b32 v19, 1, v23')
    g.e(f'v_lshl_or_b32 v19, v21, 1, v19')
    g.e(f'v_lshlrev_b32 v20, 7, v20')
    g.e(f'v_lshl_add_u32 v20, v21, 13, v20')
    g.e(f'v_lshl_add_u32 v20, v22, 3, v20')
    g.e(f'v_add_u32 v20, {AU[0]}, v20')
    for t in range(2):
        g.e(f'v_xor_b32 v{vTA[t]}, {2 * half + t}, v19')
        g.e(f'v_lshl_add_u32 v{vTA[t]}, v{vTA[t]}, 5, v20')
    return f, g

def late_loads(half):
    g = P()
    g.e(f'buffer_load_dwordx2 v[28:29], off, {srd(SWS)}, 0 sc1', 'EP')
    if opt('warm', 1):
        nl = 13 if half == 0 else 4
        g.e(f's_lshl_b32 s{sT2}, s2, 2')
        g.e(f's_add_u32 s{sT2}, s{sT2}, s{sTT}')
        g.e(f's_mul_i32 s{sT2}, s{sT2}, {nl * 128}')
        g.e(f'v_min_u32 v23, {nl - 1}, v{vLANE}')
        g.e(f'v_lshlrev_b32 v23, 7, v23')
        g.e(f'buffer_load_dword v30, v23, {srd(SWD if half == 0 else SWO)}, s{sT2} offen')
    return g

def x_stage(p, half, fg):
    p.e('v_mov_b32 v18, 0')
    def dots(q, c):
        for k in range(16):
            r = XF + 16 * c + k
            q.e(f'v_dot2c_f32_bf16 v18, s{sONE2}, v{r}' if half == 0 else f'v_dot2c_f32_bf16 v18, v{r}, v{r}')
    seq = [('X', c) for c in range(NUP, 7)] + [('B', c) for c in range(7)]
    f, g = fg
    nfirstB = 7 - NUP
    post = [[] for _ in range(7)]
    interleave(post, f, 0, max(1, nfirstB))
    interleave(post, g, max(1, nfirstB), 7)
    nb = 0
    for c in range(7):
        if c == 0: stamp(p, 'setup')
        p.append(WaitVm(f'X{c}'))
        p.e('s_barrier')
        if c in (0, 3, 6): stamp(p, f'bX{c}')
        if c == 4:
            for ks in range(4): p.e(f'v_add_u32 v{24 + ks}, 0x10000, v{24 + ks}')
        for ks in range(4):
            p.e(f'ds_read_b128 {vr(XF + 16 * c + 4 * ks, 4)}, v{24 + ks} offset:{XU(c) & 0xffff}')
        kind, k = seq[c]; at = P()
        if kind == 'X': dma_X(at, k)
        else:
            assert k < 2 or c >= {2: 2, 3: 3, 4: 5}[k]
            dma_B(at, half, k); nb = k + 1
        code = P()
        if c: dots(code, c - 1)
        code.extend(post[c])
        if c == 0 and nfirstB == 0: p.extend(code); p.extend(at)
        else: p.extend(mix(code, at))
        p.append(WaitDs())
    p.extend(late_loads(half))
    dots(p, 6)
    p.e(f'v_lshrrev_b32 v20, 2, v{vL16}')
    p.e(f's_lshr_b32 s{sT1}, s{sW1K}, 2')
    p.e(f's_add_u32 s{sT1}, s{sT1}, {STAT}')
    p.e(f'v_add_u32 v20, s{sT1}, v20')
    p.e(f'ds_write_b32 v20, v18')
    p.e(f'v_xor_b32 v20, 1024, v20')
    stamp(p, 'dots')
    p.append(WaitDs()); p.append(WaitVm('B0')); p.e('s_barrier')
    stamp(p, 'bBopen')
    p.e(f'ds_read_b32 v19, v20')
    return nb

def stats_finish(p, half):
    a, b = (18, 19) if half == 0 else (19, 18)
    p.e(f'v_permlane32_swap_b32 v{a}, v{b}')
    p.e(f'v_add_f32 v18, v18, v19')
    p.e(f'v_mul_f32 v18, {hx(f2u(1 / 448))}, v18')
    p.e('v_mov_b32 v19, v18')
    p.e('v_permlane32_swap_b32 v18, v19')
    p.e('v_fma_f32 v19, -v18, v18, v19')
    p.e('v_max_f32 v19, 0, v19')
    p.e('v_cvt_pk_bf16_f32 v18, v18, v19')
    p.e('v_and_b32 v19, 0xffff0000, v18')
    p.e('v_lshlrev_b32 v18, 16, v18')
    p.e(f'v_add_f32 v19, {hx(f2u(1e-5))}, v19')
    p.e('v_cvt_pk_bf16_f32 v19, v19, v19')
    p.e('v_and_b32 v19, 0xffff0000, v19')
    p.e('v_sqrt_f32 v19, v19')
    p.e('v_cvt_pk_bf16_f32 v19, v19, v19')
    p.e('v_and_b32 v19, 0xffff0000, v19')
    p.e(f'v_rcp_f32 v{vR}, v19')
    p.e(f'v_mul_f32 v{vCc}, v18, v{vR}')
    p.e(f'v_sub_f32 v{vCc}, 0, v{vCc}')

def norm_frag(f):
    q = P()
    if opt('nonorm', 0): return q
    for k in range(4):
        r = XF + 4 * f + k; a, b = 18 + 2 * (k & 1), 19 + 2 * (k & 1)
        q.e(f'v_lshlrev_b32 v{a}, 16, v{r}')
        q.e(f'v_and_b32 v{b}, 0xffff0000, v{r}')
        q.e(f'v_fma_f32 v{a}, v{a}, v{vR}, v{vCc}')
        q.e(f'v_fma_f32 v{b}, v{b}, v{vR}, v{vCc}')
        q.e(f'v_cvt_pk_bf16_f32 v{r}, v{a}, v{b}')
    return q

def gelu_tile(acc, tmp, soff_code, tok, pk=False):
    q = P()
    if pk:
        T = lambda k: vr(tmp + 2 * k, 2); G = lambda k: vr(acc + 2 * k, 2); Uu = lambda k: vr(acc + 8 + 2 * k, 2)
        KK = vr(vK1, 2)
        for k in range(4): q.e(f'v_pk_mul_f32 {T(k)}, {G(k)}, {G(k)}')
        for k in range(4): q.e(f'v_pk_fma_f32 {T(k)}, {T(k)}, {KK}, {KK} op_sel:[0,1,0] op_sel_hi:[1,1,0]')
        for k in range(4): q.e(f'v_pk_mul_f32 {T(k)}, {T(k)}, {G(k)}')
        for k in range(8): q.e(f'v_exp_f32 v{tmp + k}, v{tmp + k}')
        for k in range(4): q.e(f'v_pk_mul_f32 {Uu(k)}, {G(k)}, {Uu(k)}')
        for k in range(4): q.e(f'v_pk_add_f32 {T(k)}, {T(k)}, 1.0 op_sel_hi:[1,0]')
        for k in range(8): q.e(f'v_rcp_f32 v{tmp + k}, v{tmp + k}')
        for k in range(4): q.e(f'v_pk_mul_f32 {Uu(k)}, {Uu(k)}, {T(k)}')
    else:
        for h4 in range(0, 8, 4):
            t = [tmp + k for k in range(4)]; g = [acc + h4 + k for k in range(4)]; u = [acc + 8 + h4 + k for k in range(4)]
            for k in range(4): q.e(f'v_mul_f32 v{t[k]}, v{g[k]}, v{g[k]}')
            for k in range(4): q.e(f'v_fma_f32 v{t[k]}, v{t[k]}, v{vK2}, v{vK1}')
            for k in range(4): q.e(f'v_mul_f32 v{t[k]}, v{t[k]}, v{g[k]}')
            for k in range(4): q.e(f'v_exp_f32 v{t[k]}, v{t[k]}')
            for k in range(4): q.e(f'v_mul_f32 v{u[k]}, v{g[k]}, v{u[k]}')
            for k in range(4): q.e(f'v_add_f32 v{t[k]}, 1.0, v{t[k]}')
            for k in range(4): q.e(f'v_rcp_f32 v{t[k]}, v{t[k]}')
            for k in range(4): q.e(f'v_mul_f32 v{u[k]}, v{u[k]}, v{t[k]}')
    q.extend(soff_code)
    for k in range(4): q.e(f'v_cvt_pk_bf16_f32 v{acc + k}, v{acc + 8 + 2 * k}, v{acc + 9 + 2 * k}')
    q.e(f'buffer_store_dwordx4 {vr(acc, 4)}, v{vL16}, {srd(SWS)}, s{sT1} offen sc1', tok)
    return q

def softmax_pm(Pa, E, op, on, s0, pk=False):
    q = P(); a, b, c, d = s0, s0 + 1, s0 + 2, s0 + 3
    q.e(f'v_max3_f32 v{a}, v{Pa}, v{Pa+1}, v{Pa+2}')
    q.e(f'v_max3_f32 v{b}, -v{Pa}, -v{Pa+1}, -v{Pa+2}')
    q.e(f'v_max3_f32 v{c}, v{Pa+3}, v{Pa+4}, v{Pa+5}')
    q.e(f'v_max3_f32 v{d}, -v{Pa+3}, -v{Pa+4}, -v{Pa+5}')
    for k in range(6, 16, 4):
        q.e(f'v_max3_f32 v{a}, v{a}, v{Pa+k}, v{Pa+k+1}')
        q.e(f'v_max3_f32 v{b}, v{b}, -v{Pa+k}, -v{Pa+k+1}')
        if k + 3 < 16:
            q.e(f'v_max3_f32 v{c}, v{c}, v{Pa+k+2}, v{Pa+k+3}')
            q.e(f'v_max3_f32 v{d}, v{d}, -v{Pa+k+2}, -v{Pa+k+3}')
    q.e(f'v_max_f32 v{a}, v{a}, v{c}')
    q.e(f'v_max_f32 v{b}, v{b}, v{d}')
    q.e(f'v_permlane32_swap_b32 v{a}, v{b}')
    q.e(f'v_max_f32 v{a}, v{a}, v{b}')
    q.e(f'v_mul_f32 v{a}, {hx(f2u(-LOG2E))}, v{a}')
    q.e(f'v_mov_b32 v{b}, v{a}')
    q.e(f'v_permlane32_swap_b32 v{a}, v{b}')
    AB = vr(a, 2); CD = vr(c, 2)
    if pk:
        for k in range(0, 16, 2):
            q.e(f'v_pk_fma_f32 {vr(E+k,2)}, {vr(Pa+k,2)}, s[{sC}:{sC+1}], {AB} op_sel_hi:[1,0,0]')
            q.e(f'v_pk_fma_f32 {vr(Pa+k,2)}, {vr(Pa+k,2)}, s[{sC}:{sC+1}], {AB} op_sel:[0,0,1] op_sel_hi:[1,0,1] neg_lo:[1,0,0] neg_hi:[1,0,0]')
        for k in range(16):
            q.e(f'v_exp_f32 v{E+k}, v{E+k}'); q.e(f'v_exp_f32 v{Pa+k}, v{Pa+k}')
        e2, f2, g2, h2 = vr(s0, 2), vr(s0 + 2, 2), vr(s0 + 4, 2), vr(s0 + 6, 2)
        q.e(f'v_pk_add_f32 {e2}, {vr(E,2)}, {vr(E+2,2)}'); q.e(f'v_pk_add_f32 {f2}, {vr(Pa,2)}, {vr(Pa+2,2)}')
        q.e(f'v_pk_add_f32 {g2}, {vr(E+12,2)}, {vr(E+14,2)}'); q.e(f'v_pk_add_f32 {h2}, {vr(Pa+12,2)}, {vr(Pa+14,2)}')
        for k in range(4, 12, 2):
            q.e(f'v_pk_add_f32 {e2}, {e2}, {vr(E+k,2)}'); q.e(f'v_pk_add_f32 {f2}, {f2}, {vr(Pa+k,2)}')
        GM = vr(vGM - 1, 2)
        q.e(f'v_pk_fma_f32 {e2}, {g2}, {GM}, {e2} op_sel:[0,1,0]'); q.e(f'v_pk_fma_f32 {f2}, {h2}, {GM}, {f2} op_sel:[0,1,0]')
        q.e(f'v_add_f32 v{a}, v{s0}, v{s0+1}'); q.e(f'v_add_f32 v{b}, v{s0+2}, v{s0+3}')
    else:
        for k in range(16):
            q.e(f'v_fma_f32 v{E+k}, v{Pa+k}, s{sC}, v{a}')
            q.e(f'v_fma_f32 v{Pa+k}, -v{Pa+k}, s{sC}, v{b}')
            if k:
                q.e(f'v_exp_f32 v{E+k-1}, v{E+k-1}'); q.e(f'v_exp_f32 v{Pa+k-1}, v{Pa+k-1}')
        q.e(f'v_exp_f32 v{E+15}, v{E+15}'); q.e(f'v_exp_f32 v{Pa+15}, v{Pa+15}')
        q.e(f'v_add_f32 v{a}, v{E}, v{E+1}'); q.e(f'v_add_f32 v{b}, v{Pa}, v{Pa+1}')
        q.e(f'v_add_f32 v{c}, v{E+12}, v{E+13}'); q.e(f'v_add_f32 v{d}, v{Pa+12}, v{Pa+13}')
        for k in range(2, 12):
            q.e(f'v_add_f32 v{a}, v{a}, v{E+k}'); q.e(f'v_add_f32 v{b}, v{b}, v{Pa+k}')
            if k in (2, 3):
                q.e(f'v_add_f32 v{c}, v{c}, v{E+12+k}'); q.e(f'v_add_f32 v{d}, v{d}, v{Pa+12+k}')
        q.e(f'v_fmac_f32 v{a}, v{c}, v{vGM}'); q.e(f'v_fmac_f32 v{b}, v{d}, v{vGM}')
    q.e(f'v_permlane32_swap_b32 v{a}, v{b}')
    q.e(f'v_add_f32 v{a}, v{a}, v{b}')
    q.e(f'v_rcp_f32 v{a}, v{a}')
    q.e(f'v_mov_b32 v{b}, v{a}')
    q.e(f'v_permlane32_swap_b32 v{a}, v{b}')
    q.e(f'v_mul_f32 v{c}, v{a}, v{vGM}'); q.e(f'v_mul_f32 v{d}, v{b}, v{vGM}')
    for k in range(0, 16, 2):
        if pk:
            S = AB if k < 12 else CD
            q.e(f'v_pk_mul_f32 {vr(E+k,2)}, {vr(E+k,2)}, {S} op_sel_hi:[1,0]')
            q.e(f'v_pk_mul_f32 {vr(Pa+k,2)}, {vr(Pa+k,2)}, {S} op_sel:[0,1] op_sel_hi:[1,1]')
        else:
            ra, rb = (a, b) if k < 12 else (c, d)
            q.e(f'v_mul_f32 v{E+k}, v{E+k}, v{ra}'); q.e(f'v_mul_f32 v{E+k+1}, v{E+k+1}, v{ra}')
            q.e(f'v_mul_f32 v{Pa+k}, v{Pa+k}, v{rb}'); q.e(f'v_mul_f32 v{Pa+k+1}, v{Pa+k+1}, v{rb}')
        q.e(f'v_cvt_pk_bf16_f32 v{op + k // 2}, v{E+k}, v{E+k+1}')
        q.e(f'v_cvt_pk_bf16_f32 v{on + k // 2}, v{Pa+k}, v{Pa+k+1}')
    return q

Q, K, V = ACCB, ACCB + 16, ACCB + 32
vFLR, vFLK = 22, 23

def phase1_main(p, half, nb):
    mf = []
    for s in range(7):
        for ks in range(4):
            for t in range(3):
                pre = []
                if ks == 0 and t == 0 and s > 0:
                    for a in (vTB[:1] if half == 0 else vTB):
                        pre.append(I(f'v_add_u32 v{a}, {hx(BU[s] - BU[s-1])}, v{a}'))
                if half == 0: rd = [(vTB[0], t * 4096 + ks * 1024 + r * 256) for r in range(2)]
                else: rd = [(vTB[r], ks * 1536 + t * 32) for r in range(2)]
                mf.append((ACCB + 16 * t, 4 * s + ks, rd, pre, s == 0 and ks == 0))
    for s in range(7):
        for ks in range(4):
            for t in range(2):
                pre = []
                if ks == 0 and s > 0: pre.append(I(f'v_add_u32 v{vTA[t]}, {hx(AU[s] - AU[s-1])}, v{vTA[t]}'))
                rd = [(vTA[t], ks * 2048 + r * 512) for r in range(2)]
                mf.append((ACCA + 16 * t, 4 * s + ks, rd, pre, s == 0 and ks == 0))
    NB = len(AFR); D = NB - 1
    def reads(n):
        q = list(mf[n][3]); b = AFR[n % NB]
        for r, (a, off) in enumerate(mf[n][2]):
            q.append(I(f'ds_read_b64_tr_b16 {vr(b + 2 * r, 2)}, v{a} offset:{off}'))
        return q
    for n in range(D): p.extend(reads(n))
    assert nb <= 5
    at = P()
    for k in range(nb, 5): dma_B(at, half, k)
    code = P(); stats_finish(code, half); code.extend(norm_frag(0))
    p.extend(mix(code, at, 0.1))
    slots = []
    for n, (acc, xf, rd, pre, first) in enumerate(mf):
        sl = [I(f'{MF32} {vr(acc, 16)}, {vr(AFR[n % NB], 4)}, {vr(XF + 4 * xf, 4)}, {"0" if first else vr(acc, 16)}')]
        if n + D < len(mf): sl += reads(n + D)
        slots.append(sl)
    nB = 84
    bsl = lambda s: nB + 8 * s + 2
    def bar(n, tokwait, after, span, dswait=False):
        q = P()
        if dswait: q.append(WaitDs('tr'))
        if tokwait: q.append(WaitVm(tokwait))
        q.e('s_barrier'); stamp(q, f'b{n}')
        slots[n].extend(q)
        if after: spread(slots, after, n + 1 + half, n + span)
    for f in range(27):
        interleave(slots, norm_frag(f + 1), 3 * f, 3 * f + 3)
    for s in range(7):
        q = P()
        if s == 0: dma_B(q, half, 5)
        if s == 1: dma_B(q, half, 6); dma_A(q, 0)
        if s == 2:
            dma_A(q, 1)
            if half == 0:
                q.append(Group([I(f's_and_b32 s{sT1}, s{sW1K}, 1024'), I(f's_add_u32 m0, s{sT1}, {MISC}'), I(f's_mul_i32 s{sT0}, s{sH}, 1568'),
                    I(f's_add_u32 s{sT0}, s{sT0}, s{sT1}'), I(f'buffer_load_dwordx4 v{vL16}, {srd(SPHI)}, s{sT0} offen lds', 'PHI')]))
        if s == 3: dma_A(q, 2)
        if s == 4: dma_A(q, 3); dma_A(q, 4)
        if s == 5: dma_A(q, 5)
        if s == 6: dma_A(q, 6)
        bar(12 * s + 5, f'B{s+1}' if s < 6 else ['A0', 'PHI'], q, 12 if s < 6 else 9)
    q = P()
    q.e(f'v_readfirstlane_b32 s{sTAG}, v28'); q.e(f'v_readfirstlane_b32 s{sTAG+1}, v29')
    q.e(f's_add_u32 s{sTAG}, s{sTAG}, 0x9e3779b9'); q.e(f's_add_u32 s{sTAG+1}, s{sTAG+1}, 0x7f4a7c15')
    slots[12 * 5 + 5].extend(q)
    KB = opt('kb', 2)
    if half == 0:
        f1 = P(); T8 = 24
        f1.e(f'v_bfe_u32 v24, v{vLANE}, 2, 2')
        f1.e(f'v_lshrrev_b32 v25, 5, v{vLANE}')
        f1.e(f'v_bfe_u32 v26, v{vLANE}, 4, 1')
        f1.e(f'v_and_b32 v27, 3, v{vLANE}')
        f1.e(f'v_lshl_or_b32 v26, v26, 2, v27')
        f1.e(f'v_cmp_lt_u32 vcc, 5, v26')
        f1.e(f'v_subrev_u32 v27, 1, v26')
        f1.e(f'v_mul_u32_u24 v28, 56, v24')
        f1.e(f'v_cndmask_b32 v26, v26, v27, vcc')
        f1.e(f'v_lshl_add_u32 v28, v26, 3, v28')
        f1.e(f'v_add_u32 v28, {MISC}, v28')
        f1.e(f'v_mul_u32_u24 v25, 224, v25')
        f1.e(f'v_add_u32 v29, v28, v25')
        f1.e(f'ds_read_b64_tr_b16 {vr(WPHI, 2)}, v29')
        f1.e(f'ds_read_b64_tr_b16 {vr(WPHI + 2, 2)}, v29 offset:{8 * 56}')
        f1.e(f'ds_read_b64_tr_b16 {vr(WPHI + 4, 2)}, v29 offset:{16 * 56}')
        f1.e(f'ds_read_b64_tr_b16 {vr(WPHI + 6, 2)}, v28 offset:{24 * 56}')
        f1.e(f'v_cmp_lt_u32 vcc, 31, v{vLANE}')
        f1.e(f'v_and_b32 v24, 31, v{vLANE}')
        f1.e(f's_lshl_b32 s{sT1}, s{sTT}, 5')
        f1.e(f'v_add_u32 v24, s{sT1}, v24')
        f1.e(f'v_lshrrev_b32 v25, 5, v{vLANE}')
        f1.e(f'v_bfe_u32 v26, v{vLANE}, 1, 3')
        f1.e(f'v_xor_b32 v10, v26, v25')
        f1.e(f'v_lshlrev_b32 v14, 6, v24')
        f1.e(f'v_add_u32 v14, {TRV}, v14')
        f1.e(f'v_and_b32 v26, 9, v{vLANE}')
        f1.e(f'v_bfe_u32 v27, v{vLANE}, 1, 1')
        f1.e(f'v_lshl_or_b32 v26, v27, 2, v26')
        f1.e(f'v_bfe_u32 v27, v{vLANE}, 2, 1')
        f1.e(f'v_lshl_or_b32 v26, v27, 1, v26')
        f1.e(f'v_xor_b32 v8, v26, v25')
        f1.e(f'v_lshlrev_b32 v9, 7, v24')
        f1.e(f'v_add_u32 v9, {TRK}, v9')
        f1.e(f'v_cndmask_b32 v{WPHI + 6}, 0, v{WPHI + 6}, vcc')
        f1.e(f'v_cndmask_b32 v{WPHI + 7}, 0, v{WPHI + 7}, vcc')
        interleave(slots, f1, 12 * 6 + 6, nB)
        f1 = P()
        for k in range(8): f1.e(f'v_cvt_pk_bf16_f32 v{T8 + k}, v{K + 2 * k}, v{K + 2 * k + 1}')
        f1.e(f'v_cndmask_b32 v{V + 12}, 1.0, v{V + 12}, vcc')
        f1.e(f'{MF32} {vr(K, 16)}, {vr(WPHI, 4)}, {vr(T8, 4)}, 0')
        f1.e(f'{MF32} {vr(K, 16)}, {vr(WPHI + 4, 4)}, {vr(T8 + 4, 4)}, {vr(K, 16)}')
        for k in range(8): f1.e(f'v_cvt_pk_bf16_f32 v{V + k}, v{V + 2 * k}, v{V + 2 * k + 1}')
        for i in range(4):
            f1.e(f'v_xor_b32 v22, {2 * i}, v10')
            f1.e(f'v_lshl_add_u32 v22, v22, 3, v14')
            f1.e(f'ds_write_b64 v22, {vr(V + 2 * i, 2)}', 'trv')
        f1.extend(softmax_pm(K, V, V, K, 18))
        for ft, src in ((0, V), (1, K)):
            for i in range(4):
                f1.e(f'v_xor_b32 v22, {8 * ft + 2 * i}, v8')
                f1.e(f'v_lshl_add_u32 v22, v22, 3, v9')
                f1.e(f'ds_write_b64 v22, {vr(src + 2 * i, 2)}', 'tr')
        interleave(slots, f1, nB + 2, bsl(KB) + 1)
        f2 = P()
        for k in range(8): f2.e(f'v_cvt_pk_bf16_f32 v{T8 + k}, v{Q + 2 * k}, v{Q + 2 * k + 1}')
        f2.e(f'{MF32} {vr(K, 16)}, {vr(WPHI, 4)}, {vr(T8, 4)}, 0')
        f2.e(f'{MF32} {vr(K, 16)}, {vr(WPHI + 4, 4)}, {vr(T8 + 4, 4)}, {vr(K, 16)}')
        interleave(slots, f2, bsl(5) + 1, bsl(6))
    else:
        def rem_soff(r):
            q = P()
            q.e(f's_cmp_gt_u32 s{sJM}, {r}')
            q.e(f's_cselect_b32 s{sT1}, {r}, {r + 4}')
            q.e(f's_mul_i32 s{sT2}, s{sJ}, 7')
            q.e(f's_add_u32 s{sT1}, s{sT1}, s{sT2}')
            q.e(f's_lshl_b32 s{sT1}, s{sT1}, 10')
            q.e(f's_add_u32 s{sT1}, s{sT1}, s{sHST}')
            return [Group(q)]
        f0 = P()
        f0.e(f'v_bfe_u32 v22, v{vLANE}, 2, 2')
        f0.e(f'v_lshrrev_b32 v23, 4, v{vLANE}')
        f0.e(f'v_lshl_add_u32 v24, v23, 3, v22')
        f0.e(f'v_and_b32 v25, 3, v{vLANE}')
        f0.e(f'v_and_b32 v26, 9, v24')
        f0.e(f'v_bfe_u32 v27, v24, 1, 1')
        f0.e(f'v_lshl_or_b32 v26, v27, 2, v26')
        f0.e(f's_lshl_b32 s{sT1}, s{sTT}, 2')
        f0.e(f'v_or_b32 v27, s{sT1}, v25')
        f0.e(f'v_xor_b32 v26, v26, v27')
        f0.e(f'v_lshlrev_b32 v27, 7, v24')
        f0.e(f'v_add_u32 v27, {TRK}, v27')
        f0.e(f'v_lshl_add_u32 v8, v26, 3, v27')
        f0.e(f'v_xor_b32 v28, 16, v8')
        f0.e(f'v_bfe_u32 v26, v24, 1, 3')
        f0.e(f'v_xor_b32 v26, v26, v25')
        f0.e(f'v_lshlrev_b32 v27, 6, v24')
        f0.e(f'v_add_u32 v27, {TRV}, v27')
        f0.e(f'v_lshl_add_u32 v9, v26, 3, v27')
        f0.e(f'v_xor_b32 v10, 32, v9')
        f0.e(f'v_xor_b32 v29, 16, v9')
        f0.e(f'v_xor_b32 v30, 16, v10')
        f0.e(f'v_bfe_u32 v22, v{vLANE}, 4, 1')
        f0.e(f'v_and_b32 v24, 15, v{vLANE}')
        f0.e(f'v_lshl_or_b32 v22, v22, 5, v24')
        f0.e(f'v_lshrrev_b32 v24, 5, v{vLANE}')
        f0.e(f'v_lshlrev_b32 v24, 3, v24')
        f0.e(f'v_lshl_or_b32 v31, v22, 4, v24')
        f0.e(f's_lshl_b32 s{sT4}, s{sH}, 4')
        f0.e(f's_add_u32 s{sT4}, s{sT4}, s{sRB}')
        f0.e(f's_lshl_b32 s{sT4}, s{sT4}, 2')
        f0.e(f's_add_u32 s{sT4}, s{sT4}, s{sTT}')
        f0.e(f's_lshl_b32 s{sT5}, s{sT4}, 3')
        f0.e(f's_add_u32 s{sT5}, s{sT5}, {KVFL}')
        f0.e(f's_lshl_b32 s{sT4}, s{sT4}, 10')
        f0.e(f's_add_u32 s{sT4}, s{sT4}, {KVP}')
        interleave(slots, f0, 12 * 6 + 6, nB)
        f1 = gelu_tile(ACCB, 18, rem_soff(0), 'HR')
        interleave(slots, f1, nB + 2, bsl(KB) + 1)
        f2 = P()
        KA, KB0, KB1, KD = ACCB + 4, ACCB + 8, ACCB + 12, 248
        for kk in range(4):
            f2.e(f'ds_read_b64_tr_b16 {vr(KA, 2)}, v8 offset:{kk * 4096}')
            f2.e(f'ds_read_b64_tr_b16 {vr(KA + 2, 2)}, v28 offset:{kk * 4096 + 512}')
            f2.e(f'ds_read_b64_tr_b16 {vr(KB0, 2)}, v9 offset:{kk * 2048}')
            f2.e(f'ds_read_b64_tr_b16 {vr(KB0 + 2, 2)}, v29 offset:{kk * 2048 + 256}')
            f2.e(f'ds_read_b64_tr_b16 {vr(KB1, 2)}, v10 offset:{kk * 2048}')
            f2.e(f'ds_read_b64_tr_b16 {vr(KB1 + 2, 2)}, v30 offset:{kk * 2048 + 256}')
            f2.append(Gap(2))
            f2.e(f'{MF16} {vr(KD, 4)}, {vr(KA, 4)}, {vr(KB0, 4)}, {"0" if kk == 0 else vr(KD, 4)}')
            f2.e(f'{MF16} {vr(KD + 4, 4)}, {vr(KA, 4)}, {vr(KB1, 4)}, {"0" if kk == 0 else vr(KD + 4, 4)}')
        f2.append(Gap(2))
        for k in range(4): f2.e(f'v_cvt_pk_bf16_f32 v{24 + k}, v{KD + 2 * k}, v{KD + 2 * k + 1}')
        f2.e(f'buffer_store_dwordx2 v[24:25], v31, {srd(SWS)}, s{sT4} offen sc1', 'KV')
        f2.e(f'buffer_store_dwordx2 v[26:27], v31, {srd(SWS)}, s{sT4} offen offset:256 sc1', 'KV')
        interleave(slots, f2, bsl(KB) + 1, bsl(KB) + 12)
        f3 = gelu_tile(ACCB + 16, 18, rem_soff(1), 'HR')
        f3.extend(gelu_tile(ACCB + 32, 18, rem_soff(2), 'HR'))
        interleave(slots, f3, bsl(KB) + 1, nB + opt('f3end', 46))
        q = P(); q.append(WaitVm('KV')); set_flag(q, f's{sT5}', 24)
        slots[min(bsl(KB) + 12 + opt('kvf', 8), nB + 54)].extend(q)
    trfree = KB + 2
    lsched = {0: [0, 1], 1: [2, 3], 2: [4, 5], 3: [6, 7], 4: [8, 9], 5: [13, 14], 6: [15, 16]}
    lsched[trfree] = lsched[trfree] + [10, 11, 12]
    lsched[trfree].sort()
    order = [n for s in range(7) for n in lsched[s]]
    for s in range(7):
        q = P()
        if half == 0:
            for n in lsched[s]: dma_L(q, n, both=True)
        bar(bsl(s), f'A{s+1}' if s < 6 else None, q, 8 if s < 6 else 5, dswait=(s == KB and half == 0))
    q = P()
    q.e(f'v_and_b32 v{vFLR}, 15, v{vLANE}')
    q.e(f'v_lshlrev_b32 v{vFLR}, 3, v{vFLR}')
    if half == 1:
        q.e(f'v_lshlrev_b32 v{vFLK}, 3, v{vLANE}')
        flag_load(q, 28, vFLK, f's{sKVFL}')
        q.append(WaitVm('HR')); set_flag(q, f's{sFLP}', 24)
    slots[nB + 55].extend(q)
    for n, sl in enumerate(slots):
        for x in flat(sl):
            if isinstance(x, Ins) and x.tok == 'tr': assert n > bsl(0) and n <= bsl(KB), n
    for sl in slots: p.extend(sl)

BR = [XF + 4 * k for k in range(27)]
XR = XF + 108
def bload(k):
    q = P()
    q.e(f's_add_u32 s{sT1}, s{sHLD}, {LINES[k] * 4096}')
    q.e(f'buffer_load_dwordx4 {vr(BR[k % 27], 4)}, v{vL16}, {srd(SWS)}, s{sT1} offen sc1')
    return q

def phase1_tail(p, half):
    GA = ACCB
    stamp(p, 'endA')
    at = P()
    gdst = lambda e: GA + 4 * e if e < 12 else XF + 48 + 4 * (e - 12)
    if half == 1:
        p.e(f's_lshl_b32 s{sT4}, s{sH}, 16')
        p.e(f's_lshl_b32 s{sT2}, s{sTT}, 10')
        p.e(f's_add_u32 s{sT4}, s{sT4}, s{sT2}')
        p.e(f's_add_u32 s{sT4}, s{sT4}, {KVP}')
    flag_load(p, 26, vFLR, f's{sFLD}')
    p.e('s_barrier')
    code = []
    for t in range(2):
        q = P()
        q.e(f's_mul_i32 s{sT1}, s{sJ}, 7')
        q.e(f's_add_u32 s{sT1}, s{sT1}, s{sJM}')
        q.e(f's_add_u32 s{sT1}, s{sT1}, {2 * half + t}')
        q.e(f's_lshl_b32 s{sT1}, s{sT1}, 10')
        q.e(f's_add_u32 s{sT1}, s{sT1}, s{sHST}')
        code.append(gelu_tile(ACCA + 16 * t, 112, [Group(q)], 'HA', pk=True))
    if half == 1:
        p.extend(code[0])
        poll(p, 'kv', 28, vFLK, f's{sKVFL}')
        stamp(p, 'kvpoll')
        for e in range(16):
            at.append(Group([I(f'buffer_load_dwordx4 {vr(gdst(e), 4)}, v{vL16}, {srd(SWS)}, s{sT4} offen sc1'), I(f's_add_u32 s{sT4}, s{sT4}, 4096')]))
        p.extend(mix(code[1], at, 0.0, 0.9))
    else:
        dma_L(at, 17, both=True); dma_L(at, 18, both=True)
        p.extend(mix(code[0] + code[1], at, 0.0, 0.8))
    stamp(p, 'gelu')
    poll(p, f'R{half}', 26, vFLR, f's{sFLD}')
    stamp(p, 'Rpoll')
    at = [Group(bload(k)) for k in range(12)]
    code = P()
    if half == 0:
        code.extend(softmax_pm(K, Q, V, V + 8, 112, pk=True))
    else:
        S = 112
        for k in range(8): code.e(f'v_mov_b32 v{S + k}, 0')
        for e in range(16):
            for k in range(4):
                code.e(f'v_dot2c_f32_bf16 v{S + 2 * k}, s{sSEL0}, v{gdst(e) + k}')
                code.e(f'v_dot2c_f32_bf16 v{S + 2 * k + 1}, s{sSEL1}, v{gdst(e) + k}')
        for k in range(4): code.e(f'v_cvt_pk_bf16_f32 v{S + k}, v{S + 2 * k}, v{S + 2 * k + 1}')
        code.e(f's_lshl_b32 s{sT2}, s{sTT}, 10')
        code.e(f's_add_u32 s{sT2}, s{sT2}, {KVBUF}')
        code.e(f'v_add_u32 v18, s{sT2}, v{vL16}')
        code.e(f'ds_write_b128 v18, {vr(S, 4)}')
    p.extend(mix(code, at))
    stamp(p, 'gsum')
    p.append(WaitVm('HA'))
    p.e(f's_add_u32 s{sT1}, s{sFLP}, {128 * (1 + half)}')
    set_flag(p, f's{sT1}', 24)
    p.append(WaitDs())
    p.e('s_barrier')
    stamp(p, 'bKV')
    if half == 0:
        KVF, NUM, PHQ = ACCA, ACCB, V
        p.e(f'v_add_u32 v18, {KVBUF}, v{vL16}')
        for s in range(4): p.e(f'ds_read_b128 {vr(KVF + 4 * s, 4)}, v18 offset:{s * 1024}')
        p.e(f's_lshl_b32 s{sT1}, s{sH}, 1')
        p.e(f's_add_u32 s{sT1}, s{sT1}, 112')
        p.e(f's_lshl_b32 s{sT1}, s{sT1}, 10')
        p.e(f's_add_u32 s{sT1}, s{sT1}, s{sHST}')
        for s in range(4):
            p.e(f'{MF32} {vr(NUM, 16)}, {vr(KVF + 4 * s, 4)}, {vr(PHQ + 4 * s, 4)}, {"0" if s == 0 else vr(NUM, 16)}')
        p.e(f'v_add_f32 v18, {hx(f2u(1e-6))}, v{NUM + 12}')
        p.e(f'v_rcp_f32 v18, v18')
        p.e(f'v_mov_b32 v19, v18')
        p.e(f'v_permlane32_swap_b32 v18, v19')
        p.e(f'v_mul_f32 v19, v18, v{vGM}')
        for k in range(0, 16, 2):
            p.e(f'v_pk_mul_f32 {vr(NUM + k, 2)}, {vr(NUM + k, 2)}, v[18:19] ' + ('op_sel_hi:[1,0]' if k < 12 else 'op_sel:[0,1] op_sel_hi:[1,1]'))
        for k in range(8): p.e(f'v_cvt_pk_bf16_f32 v{K + k}, v{NUM + 2 * k}, v{NUM + 2 * k + 1}')
        p.e(f'buffer_store_dwordx4 {vr(K, 4)}, v{vL16}, {srd(SWS)}, s{sT1} offen sc1', 'O')
        p.e(f'buffer_store_dwordx4 {vr(K + 4, 4)}, v{vL16}, {srd(SWS)}, s{sT1} offen offset:1024 sc1', 'O')
        p.e(f's_add_u32 s{sT5}, s{sFLP}, {128 * 3}')
    stamp(p, 'Odone')
    p.e(f's_cmp_ge_u32 s{sI}, 28')
    p.e(f's_cbranch_scc1 L_exit{half}')
    q = P(); q.append(Reset()); q.e(f'L_exit{half}:')
    if half == 0:
        q.e('s_waitcnt vmcnt(0)'); set_flag(q, f's{sT5}', 24)
    q.e('s_endpgm')
    slow_paths.append(q)

def phase2(p, half):
    AY, AS = V, ACCA
    AR = [64, 68, 72, 76, 240, 244, 248, 252]
    vW = [[8, 9, 10], [11, 12, 14]]
    vO = [[[15, 16], [17, 18]], [[19, 21], [23, 30]]]
    vOUT = 20
    p.e(f'v_and_b32 v24, 31, v{vLANE}')
    p.e(f's_lshl_b32 s{sT1}, s{sT2K}, 5')
    p.e(f'v_add_u32 v24, s{sT1}, v24')
    p.e(f'v_mul_u32_u24 v24, 896, v24')
    p.e(f'v_lshrrev_b32 v25, 5, v{vLANE}')
    p.e(f'v_lshl_add_u32 v24, v25, 4, v24')
    p.e(f's_lshl_b32 s{sT1}, s{sNG}, 7')
    p.e(f's_lshl_b32 s{sT2}, s{sTT}, 5')
    p.e(f's_add_u32 s{sT1}, s{sT1}, s{sT2}')
    p.e(f'v_add_u32 v{vOUT}, s{sT1}, v24')
    p.e(f'v_bfe_u32 v24, v{vLANE}, 2, 2')
    p.e(f'v_bfe_u32 v26, v{vLANE}, 4, 1')
    p.e(f'v_and_b32 v27, 2, v24')
    p.e(f'v_xor_b32 v26, v26, v27')
    p.e(f'v_and_b32 v27, 3, v{vLANE}')
    p.e(f'v_lshlrev_b32 v27, 3, v27')
    p.e(f'v_lshl_add_u32 v27, v24, 7, v27')
    p.e(f'v_lshl_add_u32 v27, v26, 5, v27')
    p.e(f'v_lshl_add_u32 v26, v25, 9, v27')
    p.e(f's_lshl_b32 s{sT1}, s{sTT}, 11')
    p.e(f'v_add_u32 v{vW[0][0]}, s{sT1}, v26')
    p.e(f'v_xor_b32 v{vW[1][0]}, 64, v{vW[0][0]}')
    for nt in range(2):
        p.e(f'v_add_u32 v{vW[nt][1]}, 0x10000, v{vW[nt][0]}')
        p.e(f'v_add_u32 v{vW[nt][2]}, 0x20000, v{vW[nt][0]}')
    ks = []
    for n in range(36):
        u = LU[n]
        if n < 28: rd = [[(vW[nt][u // 8], (u % 8) * U + r * 1024) for r in range(2)] for nt in range(2)]
        else: rd = [[(vO[nt][r][u // 8], (u % 8) * U) for r in range(2)] for nt in range(2)]
        ks.append(dict(acc=AY if n < 28 else AS, first=n in (0, 28), rd=rd))
    NB = len(AR); D = NB - 2
    mf = [(k, nt) for k in range(36) for nt in range(2)]
    def reads(n):
        k, nt = mf[n]; b = AR[n % NB]
        return [I(f'ds_read_b64_tr_b16 {vr(b + 2 * r, 2)}, v{a} offset:{off}') for r, (a, off) in enumerate(ks[k]['rd'][nt])]
    p.append(WaitVm(['L0', 'L1', 'L2', 'L3'])); p.e('s_barrier')
    stamp(p, 'bPopen')
    for n in range(D): p.extend(reads(n))
    slots = []
    for n, (k, nt) in enumerate(mf):
        acc = ks[k]['acc'] + 16 * nt
        sl = [I(f'{MF32} {vr(acc, 16)}, {vr(AR[n % NB], 4)}, {vr(BR[k % 27], 4)}, {"0" if ks[k]["first"] else vr(acc, 16)}')]
        if n + D < len(mf): sl += reads(n + D)
        slots.append(sl)
    q = P()
    q.e(f's_lshr_b32 s{sT2}, s{sTT}, 1')
    q.e(f's_mul_i32 s{sT2}, s{sT2}, {28 * 128}')
    q.e(f's_and_b32 s{sT3}, s{sTT}, 1')
    q.append(Group([I(f's_cmp_eq_u32 s{sT3}, 0'), I(f's_cselect_b64 vcc, -1, 0')]))
    q.e(f's_lshl_b32 s{sT3}, s{sT3}, 11')
    q.e(f's_add_u32 s{sT2}, s{sT2}, s{sT3}')
    q.e(f'v_add_u32 v{vO[0][0][0]}, s{sT2}, v26')
    q.e(f'v_cndmask_b32 v27, v27, v26, vcc')
    q.e(f's_add_u32 s{sT2}, s{sT2}, 1024')
    q.e(f'v_add_u32 v{vO[0][1][0]}, s{sT2}, v27')
    for r in range(2):
        q.e(f'v_xor_b32 v{vO[1][r][0]}, 64, v{vO[0][r][0]}')
        for nt in range(2): q.e(f'v_add_u32 v{vO[nt][r][1]}, 0x10000, v{vO[nt][r][0]}')
    q.e(f'buffer_load_dwordx4 {vr(XR, 4)}, v{vOUT}, {srd(SX)}, 0 offen')
    slots[0].extend(q)
    q = P(); flag_load(q, 28, vFLR, f's{sFLA}'); slots[max(0, opt('apos', 8) - 5)].extend(q)
    for s in range(8):
        q = P()
        q.append(WaitVm([f'L{4 * (s + 1) + i}' for i in range(4)]))
        q.e('s_barrier'); stamp(q, f'bP{s}')
        slots[8 * s + 1].extend(q)
        if s >= 1:
            q = P()
            for n in range(15 + 4 * s, min(36, 19 + 4 * s)): dma_L(q, n)
            if q: spread(slots, q, 8 * s + 2, 8 * s + 9)
    APOS = opt('apos', 8); OPOS = opt('opos', 30)
    q = P(); stamp(q, 'preApoll'); poll(q, f'A{half}', 28, vFLR, f's{sFLA}'); stamp(q, 'Apoll')
    slots[APOS].extend(q)
    spread(slots, [Group(bload(k)) for k in range(12, 28)], APOS, APOS + 16)
    if half == 0:
        q = P(); q.append(WaitVm('O')); set_flag(q, f's{sT5}', 24)
        slots[opt('ofl', 4)].extend(q)
    q = P()
    q.e(f's_add_u32 s{sT4}, s{sFLD}, {128 * 3}')
    flag_load(q, 28, vFLR, f's{sT4}')
    slots[OPOS - 6].extend(q)
    q = P(); stamp(q, 'preOpoll'); poll(q, f'O{half}', 28, vFLR, f's{sT4}'); stamp(q, 'Opoll')
    slots[OPOS].extend(q)
    spread(slots, [Group(bload(k)) for k in range(28, 36)], OPOS, OPOS + 8)
    def red_addr(q, base, dstw, dstr):
        q.e(f's_mul_i32 s{sT1}, s{sTT}, 6144')
        q.e(f's_add_u32 s{sT1}, s{sT1}, {base + half * 24576}')
        q.e(f'v_add_u32 v{dstr}, s{sT1}, v{vL16}')
        q.e(f'v_add_u32 v{dstw}, {base + half * 24576}, v{vL16}')
    def red_write(q, acc, own, aw, uid):
        for kq in range(4):
            if kq < 3:
                q.e(f's_cmp_lg_u32 s{sTT}, {kq}'); q.e(f's_cbranch_scc1 L_red{uid}_{kq + 1}')
            for part in range(4):
                if part == kq: continue
                slot = kq if kq < part else kq - 1
                for hh in range(2):
                    q.e(f'ds_write_b128 v{aw}, {vr(acc + 8 * part + 4 * hh, 4)} offset:{part * 6144 + slot * 2048 + hh * 1024}', 'red')
            for k in range(0, 8, 2): q.e(f'v_mov_b64 {vr(own + k, 2)}, {vr(acc + 8 * kq + k, 2)}')
            q.e('s_waitcnt lgkmcnt(0)')
            if kq < 3: q.e(f's_branch L_red{uid}_4'); q.e(f'L_red{uid}_{kq + 1}:')
        q.e(f'L_red{uid}_4:')
    for sl in slots[:8 * 8 + 2]: p.extend(sl)
    YO = 80
    red_addr(p, REDY, 24, 25)
    p.e('s_nop 7')
    red_write(p, AY, YO, 24, f'Y{half}')
    for sl in slots[8 * 8 + 2:]: p.extend(sl)
    stamp(p, 'endP')
    p.e('s_barrier')
    YR, SO, SR, G = 128, 88, 160, 152
    for src in range(3):
        for hh in range(2):
            p.e(f'ds_read_b128 {vr(YR + 8 * src + 4 * hh, 4)}, v25 offset:{src * 2048 + hh * 1024}')
    red_addr(p, REDS, 24, 26)
    p.append(WaitDs())
    p.e('s_nop 3')
    red_write(p, AS, SO, 24, f'S{half}')
    p.e('s_barrier')
    for src in range(3):
        for hh in range(2):
            p.e(f'ds_read_b128 {vr(SR + 8 * src + 4 * hh, 4)}, v26 offset:{src * 2048 + hh * 1024}')
    p.e(f'v_permlane32_swap_b32 v{XR}, v{XR + 2}')
    p.e(f'v_permlane32_swap_b32 v{XR + 1}, v{XR + 3}')
    pr = lambda b, k: vr(b + 2 * k, 2)
    for k in range(4):
        p.e(f'v_pk_add_f32 {pr(YO, k)}, {pr(YO, k)}, {pr(YR, k)}')
        p.e(f'v_pk_add_f32 {pr(YR + 8, k)}, {pr(YR + 8, k)}, {pr(YR + 16, k)}')
    for k in range(4): p.e(f'v_pk_add_f32 {pr(YO, k)}, {pr(YO, k)}, {pr(YR + 8, k)}')
    for k in range(4): p.e(f'v_pk_mul_f32 {pr(G, k)}, {pr(YO, k)}, s[{sC}:{sC+1}] op_sel_hi:[1,0] neg_lo:[1,0] neg_hi:[1,0]')
    for k in range(8): p.e(f'v_exp_f32 v{G + k}, v{G + k}')
    XU_ = YR
    for k in range(4):
        p.e(f'v_lshlrev_b32 v{XU_ + 2 * k}, 16, v{XR + k}')
        p.e(f'v_and_b32 v{XU_ + 2 * k + 1}, 0xffff0000, v{XR + k}')
    for k in range(4): p.e(f'v_pk_add_f32 {pr(G, k)}, {pr(G, k)}, 1.0 op_sel_hi:[1,0]')
    for k in range(8): p.e(f'v_rcp_f32 v{G + k}, v{G + k}')
    for k in range(4):
        p.e(f'v_pk_add_f32 {pr(SO, k)}, {pr(SO, k)}, {pr(SR, k)}')
        p.e(f'v_pk_add_f32 {pr(SR + 8, k)}, {pr(SR + 8, k)}, {pr(SR + 16, k)}')
    for k in range(4): p.e(f'v_pk_mul_f32 {pr(G, k)}, {pr(G, k)}, {pr(YO, k)}')
    for k in range(4): p.e(f'v_pk_add_f32 {pr(SO, k)}, {pr(SO, k)}, {pr(SR + 8, k)}')
    for k in range(4): p.e(f'v_pk_fma_f32 {pr(XU_, k)}, {pr(SO, k)}, {pr(G, k)}, {pr(XU_, k)}')
    for k in range(4): p.e(f'v_cvt_pk_bf16_f32 v{G + k}, v{XU_ + 2 * k}, v{XU_ + 2 * k + 1}')
    p.e(f'v_permlane32_swap_b32 v{G}, v{G + 2}')
    p.e(f'v_permlane32_swap_b32 v{G + 1}, v{G + 3}')
    p.e(f'buffer_store_dwordx4 {vr(G, 4)}, v{vOUT}, {srd(SOUT)}, 0 offen')
    stamp(p, 'end'); dump(p)
    if half == 0:
        p.e(f's_or_b32 s{sT1}, s2, s{sW}')
        p.e(f's_cmp_lg_u32 s{sT1}, 0')
        p.e(f's_cbranch_scc1 L_end')
        set_flag(p, '0', 24)
    p.e('s_endpgm')

def build():
    pro = prologue()
    paths = []
    for half in range(2):
        p = P()
        g = setup_half(p, half); nb = x_stage(p, half, g); phase1_main(p, half, nb); phase1_tail(p, half); phase2(p, half)
        paths.append(p)
    pro_f = finalize(list(pro))
    outs = []
    for half in range(2):
        mark = I(f'L_half{half}:')
        full = finalize(list(pro) + [mark] + list(paths[half]))
        outs.append(full[full.index(mark):])
    slow = []
    for q in slow_paths: slow += finalize(list(q))
    hdr = open('recurrent_scan__linear_kernel_hedgehog__geglu_ffn__prompt.s.ref').read().split('\n')
    top = [l for l in hdr if l.startswith(';') and '@launch' not in l and 'Override' not in l and 'grid=ceil' not in l]
    s = '\n'.join(top) + '\n; @launch grid=(256,1,1) block=(512,1,1) lds=163840\n'
    s += f'.amdgcn_target "amdgcn-amd-amdhsa--gfx950"\n.text\n.globl {NAME}\n.p2align 8\n.type {NAME},@function\n{NAME}:\n'
    s += text(pro_f) + text(outs[0]) + text(outs[1]) + text(slow)
    s += 'L_end:\n    s_endpgm\nL_codeend:\n'
    s += f'''.section .rodata,"a"
.p2align 6
.amdhsa_kernel {NAME}
  .amdhsa_next_free_vgpr 256
  .amdhsa_next_free_sgpr 96
  .amdhsa_accum_offset 256
  .amdhsa_group_segment_fixed_size 0
  .amdhsa_kernarg_size 88
  .amdhsa_user_sgpr_count 2
  .amdhsa_user_sgpr_kernarg_segment_ptr 1
  .amdhsa_system_sgpr_workgroup_id_x 1
.end_amdhsa_kernel
'''
    return s

if __name__ == '__main__':
    open(sys.argv[1], 'w').write(build())
    if DEBUG: json.dump(STAMPS, open('stamps.json', 'w'))
```

```python
import re

REG_RE = re.compile(r'^(-?)(abs\()?([vsa])(\d+|\[(\d+):(\d+)\])\)?$')
def regs_of(tok):
    tok = tok.strip()
    if tok in ('vcc', 'exec'): return [(tok, 0), (tok, 1)]
    if tok in ('vcc_lo',): return [('vcc', 0)]
    if tok in ('vcc_hi',): return [('vcc', 1)]
    if tok in ('exec_lo',): return [('exec', 0)]
    if tok in ('exec_hi',): return [('exec', 1)]
    if tok == 'm0': return [('m0', 0)]
    m = REG_RE.match(tok)
    if not m: return []
    f = m.group(3)
    if m.group(5) is not None:
        return [(f, i) for i in range(int(m.group(5)), int(m.group(6)) + 1)]
    return [(f, int(m.group(4)))]

TRANS = ('v_exp_f32', 'v_log_f32', 'v_rcp_f32', 'v_rsq_f32', 'v_sqrt_f32', 'v_sin_f32', 'v_cos_f32')
FAST = ('v_fma_f32', 'v_fmac_f32', 'v_add_f32', 'v_sub_f32', 'v_mul_f32', 'v_fmaak_f32', 'v_fmamk_f32', 'v_subrev_f32')

class Ins:
    __slots__ = ('text', 'op', 'kind', 'defs', 'uses', 'tok', 'srcC', 'passes', 'wide', 'data', 'note', 'cost', 'obj')
    def __init__(self, text, tok=None, obj=None):
        self.obj = obj
        self.text = text.strip(); self.tok = tok; self.srcC = []; self.passes = 0; self.wide = False; self.data = []
        t = self.text.split(';')[0].strip()
        if t.endswith(':'):
            self.op = 'label'; self.kind = 'label'; self.defs = []; self.uses = []; self.cost = 0; return
        if t.startswith('.'):
            self.op = 'dir'; self.kind = 'label'; self.defs = []; self.uses = []; self.cost = 0; return
        parts = t.split(None, 1); op = parts[0]; self.op = op
        rest = parts[1] if len(parts) > 1 else ''
        rest = re.sub(r'\s(op_sel|op_sel_hi|neg_lo|neg_hi):\[[^\]]*\]', '', rest)
        ops = [o.strip() for o in rest.split(',')] if rest else []
        mods = []
        if ops:
            last = ops[-1].split()
            if last:
                ops[-1] = last[0]; mods = last[1:]
        R = [regs_of(o) for o in ops]
        flat = lambda L: [r for x in L for r in x]
        defs, uses = [], []
        if op.startswith('v_mfma'):
            kind = 'mfma'; defs = R[0]; uses = flat(R[1:]); self.srcC = R[3]
            self.passes = 8 if '32x32' in op else 4
            cost = 8
        elif op.startswith('v_'):
            kind = 'valu'
            base = op.replace('_e32', '').replace('_e64', '')
            if base in TRANS: kind = 'trans'
            if base.startswith('v_dot2'): kind = 'dot'
            if base.startswith('v_cmp'):
                defs = R[0]; uses = flat(R[1:])
            elif base.startswith('v_permlane'):
                kind = 'perm'; defs = flat(R); uses = flat(R)
            elif base == 'v_writelane_b32':
                defs = R[0]; uses = flat(R)
            elif base in ('v_readfirstlane_b32', 'v_readlane_b32'):
                kind = 'rdlane'; defs = R[0]; uses = flat(R[1:])
            elif base in ('v_add_co_u32', 'v_sub_co_u32', 'v_addc_co_u32'):
                defs = R[0] + R[1]; uses = flat(R[2:])
            else:
                defs = R[0]; uses = flat(R[1:])
                if base in ('v_fmac_f32', 'v_dot2c_f32_bf16'): uses = uses + R[0]
                if base == 'v_cndmask_b32' and len(ops) == 3: uses = uses + regs_of('vcc')
            uses = uses + regs_of('exec')
            cost = 8 if kind in ('trans', 'perm') else 4
        elif op.startswith('ds_'):
            kind = 'ds'
            if op.startswith('ds_read') or op.startswith('ds_bpermute') or op.startswith('ds_swizzle'):
                defs = R[0]; uses = flat(R[1:])
            else:
                uses = flat(R)
            cost = 4
        elif op.startswith('buffer_') or op.startswith('global_'):
            kind = 'vmem'
            if 'lds' in mods or '_lds_' in op:
                uses = flat(R) + regs_of('m0'); kind = 'dma'
            elif '_load_' in op:
                defs = R[0]; uses = flat(R[1:])
            elif op.startswith('buffer_store'):
                uses = flat(R); self.data = R[0]; self.wide = ('x3' in op or 'x4' in op)
            elif op.startswith('global_store'):
                uses = flat(R); self.data = R[1]; self.wide = ('x3' in op or 'x4' in op)
            else:
                uses = flat(R)
            cost = 2
        elif op.startswith('s_'):
            kind = 'salu'
            if op in ('s_waitcnt', 's_barrier', 's_nop', 's_setprio', 's_sleep', 's_endpgm', 's_branch') or op.startswith('s_cbranch'):
                kind = 'sctl'
                if op.startswith('s_cbranch_vcc'): uses = regs_of('vcc')
            elif op.startswith('s_cmp') or op.startswith('s_bitcmp'):
                uses = flat(R)
            elif op.startswith('s_load') or op in ('s_memtime', 's_memrealtime'):
                kind = 'smem'; defs = R[0]; uses = flat(R[1:])
            else:
                defs = R[0]; uses = flat(R[1:])
                if op in ('s_addk_i32', 's_mulk_i32'): uses = uses + R[0]
                if 'saveexec' in op: defs = defs + regs_of('exec'); uses = uses + regs_of('exec')
            cost = 1
        else:
            raise ValueError('unknown instr: ' + text)
        self.kind = kind; self.defs = defs; self.uses = uses; self.cost = cost
    def __repr__(self): return self.text

class Pseudo:
    def __init__(self, kind, arg=None): self.kind = kind; self.arg = arg; self.cost = 0
    def __repr__(self): return f'<{self.kind} {self.arg}>'
def WaitVm(tok): return Pseudo('waitvm', tok)
def WaitDs(tok=None): return Pseudo('waitds', tok)
def Gap(n): return Pseudo('gap', n)
def Reset(): return Pseudo('reset')

def I(text, tok=None, obj=None): return Ins(text, tok, obj)

def insert_waits(prog):
    out = []; vm = []; ds = []
    def need(q, pred):
        for k in range(len(q) - 1, -1, -1):
            if pred(q[k]): return len(q) - 1 - k
        return None
    for x in prog:
        if isinstance(x, Pseudo):
            if x.kind == 'waitvm':
                toks = x.arg if isinstance(x.arg, (list, tuple, set)) else [x.arg]
                n = need(vm, lambda e: e['tok'] in toks)
                if n is not None:
                    n = min(n, 63); out.append(I(f's_waitcnt vmcnt({n})')); vm = vm[len(vm) - n:] if n else []
            elif x.kind == 'waitds':
                n = need(ds, lambda e: x.arg is None or e['tok'] == x.arg)
                if n is not None:
                    n = min(n, 15); out.append(I(f's_waitcnt lgkmcnt({n})')); ds = ds[len(ds) - n:] if n else []
            elif x.kind == 'reset':
                vm = []; ds = []; out.append(x)
            continue
        if x.kind == 'label': out.append(x); continue
        if x.op == 's_waitcnt':
            m = re.search(r'vmcnt\((\d+)\)', x.text)
            if m: n = int(m.group(1)); vm = vm[len(vm) - n:] if n and n < len(vm) else ([] if n == 0 else vm)
            m = re.search(r'lgkmcnt\((\d+)\)', x.text)
            if m: n = int(m.group(1)); ds = ds[len(ds) - n:] if n and n < len(ds) else ([] if n == 0 else ds)
            out.append(x); continue
        touched = set(x.uses) | set(x.defs)
        nv = need(vm, lambda e: e['regs'] & touched)
        nd = need(ds, lambda e: e['regs'] & touched)
        if nd is not None and any(e.get('smem') for e in ds): nd = 0
        w = []
        if nv is not None:
            nv = min(nv, 63); w.append(f'vmcnt({nv})'); vm = vm[len(vm) - nv:] if nv else []
        if nd is not None:
            nd = min(nd, 15); w.append(f'lgkmcnt({nd})'); ds = ds[len(ds) - nd:] if nd else []
        if w: out.append(I('s_waitcnt ' + ' '.join(w)))
        out.append(x)
        if x.tok == 'NOTRACK': pass
        elif x.kind in ('vmem', 'dma'):
            vm.append({'regs': set(x.defs), 'tok': x.tok})
            assert len(vm) <= 63 + 40, 'vm queue too deep'
        elif x.kind == 'ds':
            ds.append({'regs': set(x.defs), 'tok': x.tok})
        elif x.kind == 'smem':
            ds.append({'regs': set(x.defs), 'tok': x.tok, 'smem': True})
    return out

def states(x):
    if x.kind == 'label': return 0
    if x.op == 's_nop': return int(x.text.split()[1], 0) + 1
    return 1

VALUISH = ('valu', 'trans', 'dot', 'perm', 'rdlane')
def required(p, c):
    pd = set(p.defs); cu = set(c.uses); cd = set(c.defs); n = 0
    isv = lambda r: r[0] in ('v', 'a')
    iss = lambda r: r[0] in ('s', 'vcc')
    pdv = {r for r in pd if isv(r)}; pds = {r for r in pd if iss(r)}
    if p.kind == 'mfma':
        big = p.passes == 8
        if c.kind == 'mfma':
            if pdv & set(c.srcC):
                if not (c.op == p.op and c.srcC == p.defs): n = max(n, 10 if big else 6)
            ab = cu - set(c.srcC)
            if pdv & ab: n = max(n, 12 if big else 8)
            if pdv & cd and not (pdv & set(c.srcC)): n = max(n, 12 if big else 8)
        elif c.kind in VALUISH or c.kind in ('ds', 'vmem', 'dma'):
            if pdv & (cu | cd): n = max(n, 12 if big else 8)
        if c.kind in VALUISH and set(p.srcC) & cd: n = max(n, 7 if big else 3)
    if p.kind in VALUISH:
        if c.kind == 'mfma' and pdv & cu: n = max(n, 2)
        if c.kind == 'perm' and pdv & cu: n = max(n, 2)
        if c.kind == 'rdlane' and pdv & cu: n = max(n, 1)
        if p.kind == 'trans' and pdv & cu: n = max(n, 1)
        if p.kind == 'dot' and pdv & (cu | cd):
            if not (c.op == p.op and not (pdv & set(c.uses[:len(c.uses)]) - set(c.defs))): n = max(n, 3)
        if pds:
            if c.kind in VALUISH and pds & cu: n = max(n, 4 if c.kind == 'rdlane' else 2)
            if c.kind in ('vmem', 'dma') and pds & cu: n = max(n, 5)
            if c.kind in ('salu', 'smem') and pds & cu: n = max(n, 2)
    if p.kind == 'salu' and ('m0', 0) in pd and c.kind == 'dma': n = max(n, 1)
    if p.kind == 'vmem' and p.wide and set(p.data) & cd: n = max(n, 2 if c.kind in VALUISH else 1)
    return n

def insert_nops(prog):
    out = []; hist = []
    for x in prog:
        if isinstance(x, Pseudo):
            if x.kind == 'reset': hist = []
            continue
        if x.kind == 'label': out.append(x); continue
        need = 0; dist = 0
        for p in reversed(hist):
            r = required(p, x)
            if r > dist: need = max(need, r - dist)
            dist += states(p)
            if dist > 20: break
        while need > 0:
            k = min(need, 16); nop = I(f's_nop {k-1}'); out.append(nop); hist.append(nop); need -= k
        out.append(x); hist.append(x)
        if len(hist) > 40: hist = hist[-40:]
    return out

class Group(list):
    kind = 'group'
    @property
    def cost(self): return sum(x.cost for x in self)
def flat(L):
    out = []
    for x in L:
        if isinstance(x, Group): out.extend(flat(x))
        else: out.append(x)
    return out

def interleave(slots, filler, start, end):
    total = sum(f.cost for f in filler)
    gaps = sum(f.arg for f in filler if isinstance(f, Pseudo) and f.kind == 'gap')
    n = max(1, end - start - gaps)
    per = total / n
    k = 0; acc = 0.0; s = start
    while k < len(filler):
        if s >= end - 1:
            slots[end - 1].extend(f for f in filler[k:] if not (isinstance(f, Pseudo) and f.kind == 'gap')); break
        acc += per
        while k < len(filler) and acc > 0:
            f = filler[k]
            if isinstance(f, Pseudo) and f.kind == 'gap':
                k += 1; s += f.arg - 1; acc = 0; break
            slots[s].append(f); acc -= f.cost; k += 1
        s += 1

def finalize(prog):
    return insert_nops(insert_waits(flat(prog)))
def text(prog):
    return '\n'.join((x.text if x.kind == 'label' else '    ' + x.text) for x in prog) + '\n'


def lds_events(prog):
    ev = []; vm = []; ds = []; ep = 0
    def retire(q, n):
        while len(q) > n:
            e = q.pop(0)
            if e is not None: e[3] = ep
    for x in prog:
        if x.kind == 'label': continue
        if x.op == 's_barrier': ep += 1; continue
        if x.op == 's_endpgm': continue
        if x.op == 's_waitcnt':
            m = re.search(r'vmcnt\((\d+)\)', x.text)
            if m: retire(vm, int(m.group(1)))
            m = re.search(r'lgkmcnt\((\d+)\)', x.text)
            if m: retire(ds, int(m.group(1)))
            continue
        if x.tok == 'NOTRACK': continue
        if x.kind in ('vmem', 'dma', 'ds', 'smem'):
            e = None
            if x.kind in ('dma', 'ds'):
                assert x.obj is not None, 'LDS op without object: ' + x.text
                e = [x.obj, 'r' if x.op.startswith('ds_read') else 'w', ep, 10**6]; ev.append(e)
            (vm if x.kind in ('vmem', 'dma') else ds).append(e)
    return ev

def check_lds(progs, ranges, exempt=()):
    ev = [e for p in progs for e in lds_events(p)]
    objs = {}
    for o, k, i, c in ev: objs.setdefault(o, []).append((k, i, c))
    ok = True
    for o, L in objs.items():
        wc = max(c for k, i, c in L if k == 'w'); R = [i for k, i, c in L if k == 'r']
        if R and min(R) <= wc:
            print(f'LDS RAW violation {o}: write completes in epoch {wc}, first read in epoch {min(R)}'); ok = False
    names = list(objs)
    for a in names:
        for b in names:
            if a >= b or (a, b) in exempt or (b, a) in exempt: continue
            (s1, e1), (s2, e2) = ranges[a], ranges[b]
            if s1 < e2 and s2 < e1:
                fa = min(i for k, i, c in objs[a]); fb = min(i for k, i, c in objs[b])
                x, y = (a, b) if fa <= fb else (b, a)
                last = max(c for k, i, c in objs[x]); first = min(i for k, i, c in objs[y])
                if first <= last:
                    print(f'LDS overlap violation: {x} busy until epoch {last}, {y} starts in epoch {first}'); ok = False
    for o in names: assert ranges[o][1] <= 163840, o
    assert ok
```

```python
import sys, struct, math, json
sys.path.insert(0, 'work')
from asmlib import *

NAME = 'recurrent_scan__linear_kernel_hedgehog__geglu_ffn__prompt_kernel'
def f2u(x): return struct.unpack('<I', struct.pack('<f', x))[0]
def hx(x): return '0x%08x' % (x & 0xffffffff)
LOG2E = 1.4426950408889634
ARGS = sys.argv[2:]
DEBUG = 'dbg' in ARGS
def opt(name, default):
    for a in ARGS:
        if a.startswith(name + '='): return int(a.split('=')[1])
    return default

EP, KVFL, HFL, KVP, HB = 0x0, 0x1000, 0x10000, 0x40000, 0x200000
FLT = 1024
TBLK = 148 * 1024
WS_SIZE = HB + 64 * TBLK
DBGOFF = 0xC00000
if DEBUG: WS_SIZE = 0xD00000
SX, SQKV, SG, SU, SWD, SWO, SWS, SOUT, SPHI, SREM = 8, 12, 16, 20, 24, 28, 32, 36, 40, 44
def srd(b): return f's[{b}:{b+3}]'
sW, sRB, sH, sJ, sJM, sCH, sW1K, sREML = 48, 49, 50, 51, 52, 53, 54, 55
sTAG = 56
sTT, sT, sXI, sI = 58, 59, 60, 61
sC = 62; sHST = 63
sT0, sT1, sT2, sT3, sT4, sT5 = 64, 65, 66, 67, 68, 69
sONE2, sSEL0, sSEL1 = 70, 71, 72
sHLD, sFLD, sNG, sT2K, sFLA, sFLP, sKVFL, sRDY = 73, 74, 75, 76, 77, 78, 82, 83
sSPIN = 79
sPC = 80
vLANE, vL16, vGM, vR, vCc, vK1, vK2 = 1, 2, 3, 4, 5, 6, 7
vOQ = 8; vOR = [9, 10]; vOA = [11, 12]; vOW2 = 13
vTQ = 14; vTR = [15, 16]; vTA = [17, 18]
vOX = 31
ACC3, ACC1, ACC2, XF = 32, 64, 80, 128
AFR = [112, 116, 120, 124, 240, 244]
WPHI = 248
def vr(b, n=1): return f'v{b}' if n == 1 else f'v[{b}:{b+n-1}]'

U = 8192
XU = lambda p: 2 * p * U
CU = [14 * U, 15 * U, 16 * U, 17 * U, 18 * U, 7 * U, 8 * U]
DU = [9 * U, 11 * U, 0, 2 * U, 4 * U, 13 * U, 6 * U]
AU = [9 * U, 11 * U, 0, 2 * U, 4 * U, 13 * U, 6 * U]
TRV, TRK = 15 * U, 16 * U
MISC = 19 * U; STAT = MISC + 4096; KVBUF = MISC + 4096
LINES = [L for L in range(28) if L % 7 in (1, 3, 5)] + list(range(28, 36)) + [L for L in range(28) if L % 7 in (0, 2, 4, 6)]
LU = [18, 8, 15, 16, 17, 9, 10, 11, 12, 13, 14, 0, 1, 2, 3, 4, 5, 6, 7,
      8, 18, 15, 16, 17, 9, 10, 11, 12, 13, 14, 0, 1, 2, 3, 4, 5]
OW = U
REDS, REDY = [6 * U, 15 * U], [9 * U, 12 * U]
RANGES = {'PHI': (MISC, MISC + 2048), 'STAT': (STAT, STAT + 4096), 'KVBUF': (KVBUF, KVBUF + 4096), 'TRV': (TRV, TRV + U), 'TRK': (TRK, TRK + 2 * U),
          'E1': (0, 7 * U), 'E2': (0, 7 * U)}
for h_ in range(2):
    RANGES[f'REDS{h_}'] = (REDS[h_], REDS[h_] + 3 * U); RANGES[f'REDY{h_}'] = (REDY[h_], REDY[h_] + 3 * U)
for c in range(7):
    RANGES[f'X{c}'] = (XU(c), XU(c) + 2 * U); RANGES[f'C{c}'] = (CU[c], CU[c] + U)
    RANGES[f'D{c}'] = (DU[c], DU[c] + 2 * U); RANGES[f'A{c}'] = (AU[c], AU[c] + 2 * U)
for n in range(36): RANGES[f'L{n}'] = (LU[n] * U, LU[n] * U + U)

MF32 = 'v_mfma_f32_32x32x16_bf16'
MF16 = 'v_mfma_f32_16x16x32_bf16'

class P(list):
    def e(self, t, tok=None, obj=None): self.append(I(t, tok, obj)); return self

STAMPS = {}
def stamp(p, name, rt=False):
    if not DEBUG: return
    if opt('light', 0) and name not in ('karg', 'bX8', 'bN', 'b1c', 'b2_0', 'b3_0', 'b2_6', 'endA', 'bPopen', 'bP2', 'bP4', 'bP5', 'endP', 'end', 'rt_end'): return
    k = STAMPS.setdefault(name, len(STAMPS)); assert k < 64
    p.append(Group([I(f'{"s_memrealtime" if rt else "s_memtime"} s[84:85]'), I('s_waitcnt lgkmcnt(0)'), I(f'v_writelane_b32 v0, s84, {k}')]))
def dump(p):
    if not DEBUG: return
    stamp(p, 'rt_end', True)
    p.e(f's_lshl_b32 s84, s2, 3'); p.e(f's_add_u32 s84, s84, s{sW}'); p.e('s_lshl_b32 s84, s84, 8'); p.e(f's_add_u32 s84, s84, {DBGOFF}')
    p.e(f'v_lshlrev_b32 v31, 2, v{vLANE}')
    p.e(f'buffer_store_dword v0, v31, {srd(SWS)}, s84 offen')

def dma(p, s, voff, pre, m0base, m0const, tok):
    p.append(Group([I(f's_add_u32 m0, s{m0base}, {m0const}')] + [I(t) for t in pre] +
                   [I(f'buffer_load_dwordx4 v{voff}, {srd(s)}, s{sT0} offen lds', tok, tok)]))
def cidx(pos): return f's_bfe_u32 s{sT0}, s{sCH}, {hx((4 << 16) | (4 * pos))}'
def dma_X(p, c):
    dma(p, SX, vOX, [cidx(c), f's_lshl_b32 s{sT0}, s{sT0}, 7'], sW1K, XU(c), f'X{c}')
    dma(p, SX, vOX, [f's_add_u32 s{sT0}, s{sT0}, {64 * 896}'], sW1K, XU(c) + U, f'X{c}')
def dma_C(p, half, c):
    dma(p, SQKV, vOQ, [cidx(c), f's_mul_i32 s{sT0}, s{sT0}, {64 * 2688}', f's_add_u32 s{sT0}, s{sT0}, {896 * (1 + half)}'], sW1K, CU[c], f'C{c}')
def dma_D(p, half, c):
    if half == 0:
        dma(p, SQKV, vOQ, [cidx(c), f's_mul_i32 s{sT0}, s{sT0}, {64 * 2688}'], sW1K, DU[c], f'D{c}')
        dma(p, SREM, vOR[0], [cidx(c), f's_mul_i32 s{sT0}, s{sT0}, {64 * 3584}'], sREML, DU[c] + 4096, f'D{c}')
    else:
        dma(p, SREM, vOR[0], [cidx(c), f's_mul_i32 s{sT0}, s{sT0}, {64 * 3584}'], sREML, DU[c] + 4096, f'D{c}')
        dma(p, SREM, vOR[1], [], sREML, DU[c] + 5120, f'D{c}')
def dma_A(p, pos):
    dma(p, SG, vOA[0], [cidx(pos), f's_mul_i32 s{sT0}, s{sT0}, {64 * 3584}'], sW1K, AU[pos], f'A{pos}')
    dma(p, SU, vOA[1], [], sW1K, AU[pos] + U, f'A{pos}')
def dma_L(p, n, both=0):
    L = LINES[n]
    s, row = (SWD, L * 64) if L < 28 else (SWO, (L - 28) * 56)
    dma(p, s, vOW2, [f's_mov_b32 s{sT0}, {row * 896}'], sW1K, LU[n] * U, f'L{n}')
    if both:
        assert row + 32 * both >= 0 and LU[n] * U + 4096 * both >= -4096
        dma(p, s, vOW2, [f's_mov_b32 s{sT0}, {(row + 32 * both) * 896}'], sW1K, LU[n] * U + 4096 * both, f'L{n}')
def spread(slots, atoms, start, end):
    n = len(atoms)
    for k, x in enumerate(atoms): slots[start + (k * (end - start)) // n].append(x)
def mix(code, atoms, lead=0.0, tail=1.0):
    total = sum(x.cost for x in code); out = P(); acc = 0; k = 0; n = len(atoms)
    for x in code:
        while k < n and acc >= total * (lead + (tail - lead) * k / n): out.append(atoms[k]); k += 1
        out.append(x); acc += x.cost
    out.extend(atoms[k:])
    return out

slow_paths = []
def flag_load(p, vflag, vaddr, soff):
    p.e(f'buffer_load_dwordx2 {vr(vflag, 2)}, v{vaddr}, {srd(SWS)}, {soff} offen sc1')
def poll(p, uid, vflag, vaddr, soff):
    p.e(f'v_cmp_ne_u64 vcc, s[{sTAG}:{sTAG+1}], {vr(vflag, 2)}')
    p.e(f's_cbranch_vccnz L_slow_{uid}')
    p.e(f'L_res_{uid}:')
    q = P(); q.append(Reset())
    q.e(f'L_slow_{uid}:')
    q.e(f's_mov_b32 s{sSPIN}, 0x40000')
    q.e(f'L_spin_{uid}:')
    flag_load(q, vflag, vaddr, soff)
    q.e('s_waitcnt vmcnt(0)')
    q.e(f'v_cmp_ne_u64 vcc, s[{sTAG}:{sTAG+1}], {vr(vflag, 2)}')
    q.e(f's_cbranch_vccz L_res_{uid}')
    q.e(f's_sleep {opt("sleep", 2)}')
    q.e(f's_sub_u32 s{sSPIN}, s{sSPIN}, 1')
    q.e(f's_cmp_lg_u32 s{sSPIN}, 0')
    q.e(f's_cbranch_scc1 L_spin_{uid}')
    q.e(f's_branch L_res_{uid}')
    slow_paths.append(q)
def set_flag(p, soff, vt, off=0):
    p.append(Group([I(f'v_mov_b32 v{vt}, s{sTAG}'), I(f'v_mov_b32 v{vt+1}, s{sTAG+1}'),
        I(f's_mov_b64 exec, 1'),
        I(f'buffer_store_dwordx2 {vr(vt, 2)}, off, {srd(SWS)}, {soff} offset:{off} sc1'),
        I(f's_mov_b64 exec, -1')]))
def srd_consts(p, b, n):
    p.e(f's_mov_b32 s{b+2}, {n}'); p.e(f's_mov_b32 s{b+3}, 0x20000')

def prologue():
    p = P()
    p.e('s_cmp_ge_u32 s2, 256')
    p.e('s_cbranch_scc1 L_end')
    if DEBUG: p.e('s_memtime s[86:87]'); p.e('s_memrealtime s[88:89]')
    for b, off in ((SX, 0), (SQKV, 8), (SG, 40), (SU, 48), (SPHI, 16), (SWO, 24), (SWD, 56), (SOUT, 64), (SWS, 80)):
        p.e(f's_load_dwordx2 s[{b}:{b+1}], s[0:1], {off}')
    p.e(f's_getpc_b64 s[{sPC}:{sPC+1}]')
    p.e('L_pcbase:')
    p.e(f's_lshr_b32 s{sI}, s2, 3')
    p.e(f'v_lshrrev_b32 v18, 6, v0')
    p.e(f'v_and_b32 v19, 1, v0')
    p.e(f'v_lshl_or_b32 v19, v18, 1, v19')
    p.e(f's_lshl_b32 s{sT0}, s{sI}, 4')
    p.e(f'v_add_u32 v19, s{sT0}, v19')
    p.e(f'v_lshlrev_b32 v19, 7, v19')
    p.e(f'v_min_u32 v19, (L_codeend - L_pcbase - 4), v19')
    p.e(f'global_load_dword v30, v19, s[{sPC}:{sPC+1}]')
    p.e(f'v_readfirstlane_b32 s{sW}, v18')
    p.e(f's_and_b32 s{sXI}, s2, 7')
    p.e(f'v_and_b32 v{vLANE}, 63, v0')
    p.e(f's_and_b32 s{sT0}, s{sXI}, 1')
    p.e(f's_lshl_b32 s{sT0}, s{sT0}, 3')
    p.e(f's_and_b32 s{sT1}, s{sI}, 7')
    p.e(f's_add_u32 s{sRB}, s{sT0}, s{sT1}')
    p.e(f's_lshr_b32 s{sT2}, s{sI}, 3')
    p.e(f's_lshr_b32 s{sT0}, s{sXI}, 1')
    p.e(f's_lshl_b32 s{sT0}, s{sT0}, 2')
    p.e(f's_add_u32 s{sH}, s{sT0}, s{sT2}')
    p.e(f'v_lshrrev_b32 v20, 3, v{vLANE}')
    p.e(f's_lshl_b32 s{sT2}, s{sT2}, 1')
    p.e(f's_add_u32 s{sT1}, s{sT1}, s{sT2}')
    p.e(f'v_lshrrev_b32 v21, 4, v{vLANE}')
    p.e(f's_sub_u32 s{sT2}, s{sT1}, 7')
    p.e(f's_cmp_ge_u32 s{sT1}, 7')
    p.e(f's_cselect_b32 s{sT1}, s{sT2}, s{sT1}')
    p.e(f'v_and_b32 v22, 7, v{vLANE}')
    p.e(f's_lshl_b32 s{sT1}, s{sT1}, 2')
    p.e(f's_mov_b32 s{sT2}, 0x06543210')
    p.e(f's_mov_b32 s{sT3}, 0x00654321')
    p.e(f's_lshr_b64 s[{sT2}:{sT3}], s[{sT2}:{sT3}], s{sT1}')
    p.e(f's_mov_b32 s{sCH}, s{sT2}')
    p.e(f's_lshl_b32 s{sW1K}, s{sW}, 10')
    p.e(f's_lshl_b32 s{sT0}, s{sRB}, 7')
    p.e(f's_lshl_b32 s{sT1}, s{sW}, 3')
    p.e(f's_add_u32 s{sT0}, s{sT0}, s{sT1}')
    p.e(f'v_add_u32 v{vOX}, s{sT0}, v20')
    p.e(f'v_mul_u32_u24 v{vOX}, 896, v{vOX}')
    p.e(f's_and_b32 s{sT1}, s{sW}, 1')
    p.e(f's_lshl_b32 s{sT1}, s{sT1}, 2')
    p.e(f'v_xor_b32 v21, s{sT1}, v21')
    p.e(f'v_xor_b32 v21, v21, v22')
    p.e(f'v_lshl_add_u32 v{vOX}, v21, 4, v{vOX}')
    srd_consts(p, SX, 1835008)
    p.e('s_waitcnt lgkmcnt(0)')
    if DEBUG:
        STAMPS['start'] = 0; STAMPS['rt_start'] = 1
        p.e('v_writelane_b32 v0, s86, 0'); p.e('v_writelane_b32 v0, s88, 1')
    stamp(p, 'karg')
    dma_X(p, 0)
    p.e(f's_and_b32 s{sTT}, s{sW}, 3')
    p.e(f's_cmp_ge_u32 s{sW}, 4')
    p.e('s_cbranch_scc1 L_half1')
    return p

def setup(half):
    f = P()
    f.e(f'v_and_b32 v23, 31, v{vLANE}')
    f.e(f'v_lshrrev_b32 v28, 5, v{vLANE}')
    f.e(f'v_bfe_u32 v19, v{vLANE}, 1, 3')
    f.e(f'v_xor_b32 v19, v19, v28')
    f.e(f'v_lshlrev_b32 v23, 7, v23')
    f.e(f's_lshl_b32 s{sT1}, s{sTT}, 12')
    f.e(f'v_add_u32 v23, s{sT1}, v23')
    f.e(f's_mov_b32 s{sONE2}, 0x3f803f80')
    for ks in range(4):
        f.e(f'v_xor_b32 v{24 + ks}, {2 * ks}, v19')
        f.e(f'v_lshl_add_u32 v{24 + ks}, v{24 + ks}, 4, v23')
    for b, n in ((SQKV, 448 * 2688), (SG, 448 * 3584), (SU, 448 * 3584), (SPHI, 16 * 1568),
                 (SWO, 448 * 896), (SWD, 1792 * 896), (SOUT, 1835008), (SWS, WS_SIZE)):
        srd_consts(f, b, n)
    sl = [0, 1, 3, 2, 4, 5, 7, 6, 9, 8, 10, 11, 13, 12, 14, 15]
    lo = sum(sl[k] << (4 * k) for k in range(8)); hi = sum(sl[8 + k] << (4 * k) for k in range(8))
    f.e(f's_mov_b32 s{sT2}, {hx(lo)}')
    f.e(f's_mov_b32 s{sT3}, {hx(hi)}')
    f.e(f's_lshl_b32 s{sT1}, s{sH}, 2')
    f.e(f's_lshr_b64 s[{sT2}:{sT3}], s[{sT2}:{sT3}], s{sT1}')
    f.e(f's_and_b32 s{sJ}, s{sT2}, 15')
    f.e(f's_and_b32 s{sJM}, s{sJ}, 3')
    f.e(f's_lshl_b32 s{sT1}, s{sTT}, 4')
    f.e(f'v_lshrrev_b32 v23, 2, v{vLANE}')
    f.e(f'v_add_u32 v23, s{sT1}, v23')
    f.e(f'v_mul_u32_u24 v{vOQ}, 2688, v23')
    f.e(f'v_and_b32 v23, 3, v{vLANE}')
    f.e(f'v_lshlrev_b32 v23, 4, v23')
    f.e(f'v_min_u32 v23, 40, v23')
    f.e(f's_mul_i32 s{sT1}, s{sH}, 56')
    f.e(f'v_add3_u32 v{vOQ}, v{vOQ}, v23, s{sT1}')
    if half == 0:
        f.e(f's_mov_b32 s{SREM}, s{SG}'); f.e(f's_mov_b32 s{SREM+1}, s{SG+1}')
        f.e(f's_lshl_b32 s{sREML}, s{sTT}, 10')
        f.e(f's_lshl_b32 s{sT2}, s{sTT}, 6')
        f.e(f's_mov_b32 s{sT1}, 0')
    else:
        f.append(Group([I(f's_cmp_eq_u32 s{sTT}, 0'), I(f's_cselect_b32 s{SREM}, s{SG}, s{SU}'), I(f's_cselect_b32 s{SREM+1}, s{SG+1}, s{SU+1}'),
                        I(f's_cselect_b32 s{sT1}, 0, 4'), I(f's_cselect_b32 s{sT2}, 3, s{sTT}')]))
        f.e(f's_lshl_b32 s{sREML}, s{sTT}, 11')
        f.e(f's_add_u32 s{sREML}, s{sREML}, 4096')
        f.e(f's_lshl_b32 s{sT2}, s{sT2}, 7')
        f.e(f's_sub_u32 s{sT2}, s{sT2}, 128')
    srd_consts(f, SREM, 448 * 3584)
    f.e(f's_mul_i32 s{sT3}, s{sJ}, 224')
    for n in range(1 + half):
        if n: f.e(f's_add_u32 s{sT2}, s{sT2}, 64')
        f.e(f'v_add_u32 v23, s{sT2}, v{vLANE}')
        f.e(f'v_mul_u32_u24 v28, 683, v23')
        f.e(f'v_lshrrev_b32 v28, 12, v28')
        f.e(f'v_mul_u32_u24 v29, 6, v28')
        f.e(f'v_sub_u32 v29, v23, v29')
        f.e(f'v_xor_b32 v28, s{sT1}, v28')
        f.e(f'v_mul_u32_u24 v{vOR[n]}, 3584, v28')
        f.e(f'v_lshrrev_b32 v28, 1, v29')
        f.e(f'v_add_u32 v23, 4, v28')
        f.e(f'v_cmp_gt_u32 vcc, s{sJM}, v28')
        f.e(f'v_and_b32 v29, 1, v29')
        f.e(f'v_cndmask_b32 v28, v23, v28, vcc')
        f.e(f'v_lshl_or_b32 v28, v28, 1, v29')
        f.e(f'v_lshlrev_b32 v28, 4, v28')
        f.e(f'v_add3_u32 v{vOR[n]}, v{vOR[n]}, v28, s{sT3}')
    g = f
    g.e(f's_lshl_b32 s{sT1}, s{sW}, 3')
    g.e(f'v_add_u32 v23, s{sT1}, v20')
    g.e(f'v_bfe_u32 v21, v{vLANE}, 4, 1')
    g.e(f'v_lshlrev_b32 v19, 1, v21')
    g.e(f'v_xor_b32 v19, v19, v22')
    g.e(f's_lshl_b32 s{sT2}, s{sJM}, 5')
    g.e(f's_add_u32 s{sT2}, s{sT2}, s{sT3}')
    g.e(f'v_mul_u32_u24 v{vOW2}, 3584, v23')
    g.e(f'v_add_u32 v{vOW2}, s{sT2}, v{vOW2}')
    g.e(f'v_lshl_add_u32 v{vOA[0]}, v19, 4, v{vOW2}')
    g.e(f'v_xor_b32 v19, 4, v19')
    g.e(f'v_lshl_add_u32 v{vOA[1]}, v19, 4, v{vOW2}')
    g.e(f's_mul_i32 s{sT2}, s{sI}, 37')
    g.e(f's_lshr_b32 s{sT2}, s{sT2}, 8')
    g.e(f's_mul_i32 s{sT3}, s{sT2}, 7')
    g.e(f's_sub_u32 s{sNG}, s{sI}, s{sT3}')
    g.e(f's_lshl_b32 s{sT3}, s{sXI}, 2')
    g.e(f's_add_u32 s{sT2}, s{sT2}, s{sT3}')
    g.e(f's_lshl_b32 s{sT2}, s{sT2}, 1')
    g.e(f's_add_u32 s{sT2K}, s{sT2}, {half}')
    g.e(f's_and_b32 s{sT2K}, s{sT2K}, {1 if opt("fakeH", 0) else 63}')
    if opt('fakeW', 0): g.e(f's_mov_b32 s{sNG}, 0')
    g.e(f'v_lshlrev_b32 v19, 2, v21')
    g.e(f'v_xor_b32 v19, v19, v22')
    g.e(f'v_mul_u32_u24 v23, 896, v23')
    g.e(f's_lshl_b32 s{sT2}, s{sNG}, 7')
    g.e(f'v_add_u32 v23, s{sT2}, v23')
    g.e(f'v_lshl_add_u32 v{vOW2}, v19, 4, v23')
    g.e(f'v_lshlrev_b32 v{vL16}, 4, v{vLANE}')
    g.e(f'v_cmp_lt_u32 vcc, 31, v{vLANE}')
    g.e(f'v_mov_b32 v{vK1}, {hx(f2u(-2 * math.sqrt(2 / math.pi) * LOG2E))}')
    g.e(f'v_mov_b32 v{vK2}, {hx(f2u(-2 * math.sqrt(2 / math.pi) * LOG2E * 0.044715))}')
    g.e(f'v_cndmask_b32 v{vGM}, 0, 1.0, vcc')
    g.e(f's_mov_b32 s{sC}, {hx(f2u(LOG2E))}')
    g.e(f's_mov_b32 s{sSEL0}, 0x00003f80')
    g.e(f's_mov_b32 s{sSEL1}, 0x3f800000')
    g.e(f's_lshl_b32 s{sT}, s{sRB}, 2')
    g.e(f's_add_u32 s{sT}, s{sT}, s{sTT}')
    g.e(f's_mul_i32 s{sHST}, s{sT}, {TBLK}')
    g.e(f's_add_u32 s{sHST}, s{sHST}, {HB}')
    g.e(f's_lshl_b32 s{sFLP}, s{sT}, 10')
    g.e(f's_lshl_b32 s{sT2}, s{sJ}, 3')
    g.e(f's_add_u32 s{sFLP}, s{sFLP}, s{sT2}')
    g.e(f's_add_u32 s{sFLP}, s{sFLP}, {HFL}')
    g.e(f's_mul_i32 s{sHLD}, s{sT2K}, {TBLK}')
    g.e(f's_lshl_b32 s{sT2}, s{sTT}, 10')
    g.e(f's_add_u32 s{sHLD}, s{sHLD}, s{sT2}')
    g.e(f's_add_u32 s{sHLD}, s{sHLD}, {HB}')
    g.e(f's_lshl_b32 s{sFLD}, s{sT2K}, 10')
    g.e(f's_add_u32 s{sFLD}, s{sFLD}, {HFL}')
    g.e(f's_lshr_b32 s{sFLA}, s{sTT}, 1')
    g.e(f's_add_u32 s{sFLA}, s{sFLA}, 2')
    g.e(f's_lshl_b32 s{sFLA}, s{sFLA}, 7')
    g.e(f's_add_u32 s{sFLA}, s{sFLA}, s{sFLD}')
    g.e(f's_lshl_b32 s{sKVFL}, s{sH}, 2')
    g.e(f's_add_u32 s{sKVFL}, s{sKVFL}, s{sTT}')
    g.e(f's_lshl_b32 s{sKVFL}, s{sKVFL}, 7')
    g.e(f's_add_u32 s{sKVFL}, s{sKVFL}, {KVFL}')
    g.e(f'v_bfe_u32 v23, v{vLANE}, 2, 2')
    g.e(f'v_lshrrev_b32 v20, 5, v{vLANE}')
    g.e(f'v_and_b32 v22, 3, v{vLANE}')
    g.e(f'v_lshl_add_u32 v20, v20, 3, v23')
    g.e(f'v_lshlrev_b32 v{vTQ}, 6, v20')
    g.e(f'v_lshl_add_u32 v{vTQ}, v21, 5, v{vTQ}')
    g.e(f'v_lshl_add_u32 v{vTQ}, v22, 3, v{vTQ}')
    g.e(f'v_add_u32 v{vTQ}, {CU[0] + half * 4096}, v{vTQ}')
    g.e(f's_mov_b32 s{sT2}, {DU[0] + 4096}')
    for rd in range(2):
        g.e(f'v_xor_b32 v19, {rd}, v21')
        g.e(f'v_lshl_add_u32 v19, v19, 2, v20')
        g.e(f'v_mul_u32_u24 v19, 96, v19')
        g.e(f'v_mul_u32_u24 v{vTR[rd]}, 6144, v21')
        g.e(f'v_lshl_add_u32 v19, v22, 3, v19')
        g.e(f'v_add3_u32 v{vTR[rd]}, v{vTR[rd]}, v19, s{sT2}')
    g.e(f'v_lshrrev_b32 v19, 1, v23')
    g.e(f'v_lshl_or_b32 v19, v21, 1, v19')
    g.e(f'v_lshlrev_b32 v20, 7, v20')
    g.e(f'v_lshl_add_u32 v20, v21, 13, v20')
    g.e(f'v_lshl_add_u32 v20, v22, 3, v20')
    for t in range(2):
        g.e(f'v_xor_b32 v{vTA[t]}, {2 * half + t}, v19')
        g.e(f'v_lshl_add_u32 v{vTA[t]}, v{vTA[t]}, 5, v20')
    return f

def late_loads(half):
    g = P()
    g.e(f'buffer_load_dwordx2 v[28:29], off, {srd(SWS)}, 0 sc1', 'EP')
    if opt('warm', 1):
        nl = 13 if half == 0 else 4
        g.e(f's_lshl_b32 s{sT2}, s2, 2')
        g.e(f's_add_u32 s{sT2}, s{sT2}, s{sTT}')
        g.e(f's_mul_i32 s{sT2}, s{sT2}, {nl * 128}')
        g.e(f'v_min_u32 v23, {nl - 1}, v{vLANE}')
        g.e(f'v_lshlrev_b32 v23, 7, v23')
        g.e(f'buffer_load_dword v30, v23, {srd(SWD if half == 0 else SWO)}, s{sT2} offen')
    if opt('tlb', 1):
        g.e(f's_add_u32 s{sT2}, s{sHST if half == 0 else sHLD}, {144 * 1024}')
        g.e(f'buffer_load_dword v30, off, {srd(SWS)}, s{sT2}')
        g.e(f's_mul_i32 s{sT2}, s{sT2K}, {32 * 896}')
        g.e(f'buffer_load_dword v30, off, {srd(SOUT)}, s{sT2}')
    dummies = [x for x in g if x.text.startswith('buffer_load_dword v30')]
    for x in dummies[:-1]: x.defs = []
    return g

def x_stage(p, half):
    own = [2 * half, 2 * half + 1]; oth = [2 - 2 * half, 3 - 2 * half]
    at = P()
    for c in range(1, 7): dma_X(at, c)
    p.extend(mix(setup(half), at, 0.0, 0.8))
    p.e('v_mov_b32 v20, 0'); p.e('v_mov_b32 v21, 0')
    stamp(p, 'setup')
    fr = [(c, ks) for c in range(7) for ks in own]
    reg = lambda c, ks: XF + 16 * c + 4 * ks
    def dots(q, c, ks):
        for k in range(4):
            r = reg(c, ks) + k
            q.e(f'v_dot2c_f32_bf16 v20, s{sONE2}, v{r}'); q.e(f'v_dot2c_f32_bf16 v21, v{r}, v{r}')
    done = 0; LA = 4
    for lo, hi, tok, cs in ((0, 8, 'X3', [0, 1]), (8, 14, 'X6', [2])):
        p.append(WaitVm(tok)); p.e('s_barrier'); stamp(p, f'bX{hi}')
        code = P()
        for k in range(lo, hi):
            c, ks = fr[k]
            if k == 8:
                for a in own: code.e(f'v_add_u32 v{24 + a}, 0x10000, v{24 + a}')
            code.e(f'ds_read_b128 {vr(reg(c, ks), 4)}, v{24 + ks} offset:{XU(c) & 0xffff}', None, f'X{c}')
            if k - LA >= done: dots(code, *fr[done]); done += 1
        if hi == 14:
            while done < hi: dots(code, *fr[done]); done += 1
        at = P()
        for c in cs: dma_C(at, half, c)
        p.extend(mix(code, at, 0.05, 0.9))
    p.e(f'v_lshrrev_b32 v22, 1, v{vL16}')
    p.e(f's_lshr_b32 s{sT1}, s{sW1K}, 1')
    p.e(f's_add_u32 s{sT1}, s{sT1}, {STAT}')
    p.e(f'v_add_u32 v22, s{sT1}, v22')
    p.e(f'ds_write_b64 v22, v[20:21]', None, 'STAT')
    p.e(f'v_xor_b32 v22, 2048, v22')
    stamp(p, 'dots')
    p.append(WaitDs()); p.e('s_barrier')
    p.e(f'ds_read_b64 v[22:23], v22', None, 'STAT')
    code = P()
    code.e('v_add_f32 v20, v20, v22'); code.e('v_add_f32 v21, v21, v23')
    code.e('v_permlane32_swap_b32 v20, v21')
    code.e('v_add_f32 v20, v20, v21')
    code.e(f'v_mul_f32 v20, {hx(f2u(1 / 448))}, v20')
    code.e('v_mov_b32 v21, v20')
    code.e('v_permlane32_swap_b32 v20, v21')
    code.e('v_fma_f32 v21, -v20, v20, v21')
    code.e('v_max_f32 v21, 0, v21')
    code.e('v_cvt_pk_bf16_f32 v20, v20, v21')
    code.e('v_and_b32 v21, 0xffff0000, v20')
    code.e('v_lshlrev_b32 v20, 16, v20')
    code.e(f'v_add_f32 v21, {hx(f2u(1e-5))}, v21')
    code.e('v_cvt_pk_bf16_f32 v21, v21, v21')
    code.e('v_and_b32 v21, 0xffff0000, v21')
    code.e('v_sqrt_f32 v21, v21')
    code.e('v_cvt_pk_bf16_f32 v21, v21, v21')
    code.e('v_and_b32 v21, 0xffff0000, v21')
    code.e(f'v_rcp_f32 v{vR}, v21')
    code.e(f'v_mul_f32 v{vCc}, v20, v{vR}')
    code.e(f'v_sub_f32 v{vCc}, 0, v{vCc}')
    RC = vr(vR, 2)
    code.e(f'v_add_u32 v24, s{sW1K}, v{vL16}')
    code.e(f'v_xor_b32 v25, 4096, v24')
    def norm(q, k):
        c, ks = fr[k]; r0 = reg(c, ks); T = 112
        for d in range(4):
            q.e(f'v_lshlrev_b32 v{T + 2 * d}, 16, v{r0 + d}')
            q.e(f'v_and_b32 v{T + 2 * d + 1}, 0xffff0000, v{r0 + d}')
        for d in range(4): q.e(f'v_pk_fma_f32 {vr(T + 2 * d, 2)}, {vr(T + 2 * d, 2)}, {RC}, {RC} op_sel:[0,0,1] op_sel_hi:[1,0,1]')
        for d in range(4): q.e(f'v_cvt_pk_bf16_f32 v{r0 + d}, v{T + 2 * d}, v{T + 2 * d + 1}')
    def wr(q, k):
        c, ks = fr[k]; q.e(f'ds_write_b128 v24, {vr(reg(c, ks), 4)} offset:{(k % 7) * U}', None, 'E1' if k < 7 else 'E2')
    for k in range(7): norm(code, k); wr(code, k)
    at = P()
    dma_C(at, half, 3); dma_C(at, half, 4)
    if half == 0:
        at.append(Group([I(f's_and_b32 s{sT1}, s{sW1K}, 1024'), I(f's_add_u32 m0, s{sT1}, {MISC}'), I(f's_mul_i32 s{sT0}, s{sH}, 1568'),
            I(f's_add_u32 s{sT0}, s{sT0}, s{sT1}'), I(f'buffer_load_dwordx4 v{vL16}, {srd(SPHI)}, s{sT0} offen lds', 'PHI', 'PHI')]))
    dma_C(at, half, 5); dma_C(at, half, 6)
    p.extend(mix(code, at, 0.05, 0.95))
    p.append(WaitDs()); p.e('s_barrier'); stamp(p, 'bE1')
    for k in range(7):
        c, ks = fr[k]; p.e(f'ds_read_b128 {vr(reg(c, ks ^ 2), 4)}, v25 offset:{k * U}', None, 'E1')
    norm(p, 7); norm(p, 8)
    p.append(WaitDs()); p.e('s_barrier')
    code = P(); wr(code, 7); wr(code, 8)
    for k in range(9, 14): norm(code, k); wr(code, k)
    at = P(); dma_D(at, half, 0); dma_D(at, half, 1); at.append(Group(late_loads(half)))
    p.extend(mix(code, at, 0.0, 0.9))
    stamp(p, 'norm')
    p.append(WaitDs()); p.append(WaitVm(['C6'])); p.e('s_barrier')
    stamp(p, 'bN')
    for k in range(7, 14):
        c, ks = fr[k]; p.e(f'ds_read_b128 {vr(reg(c, ks ^ 2), 4)}, v25 offset:{(k - 7) * U}', 'xn', 'E2')

def gelu_tile(acc, tmp, soff_code, tok, pk=False):
    q = P()
    if pk:
        T = lambda k: vr(tmp + 2 * k, 2); G = lambda k: vr(acc + 2 * k, 2); Uu = lambda k: vr(acc + 8 + 2 * k, 2)
        KK = vr(vK1, 2)
        for k in range(4): q.e(f'v_pk_mul_f32 {T(k)}, {G(k)}, {G(k)}')
        for k in range(4): q.e(f'v_pk_fma_f32 {T(k)}, {T(k)}, {KK}, {KK} op_sel:[0,1,0] op_sel_hi:[1,1,0]')
        for k in range(4): q.e(f'v_pk_mul_f32 {T(k)}, {T(k)}, {G(k)}')
        for k in range(8): q.e(f'v_exp_f32 v{tmp + k}, v{tmp + k}')
        for k in range(4): q.e(f'v_pk_mul_f32 {Uu(k)}, {G(k)}, {Uu(k)}')
        for k in range(4): q.e(f'v_pk_add_f32 {T(k)}, {T(k)}, 1.0 op_sel_hi:[1,0]')
        for k in range(8): q.e(f'v_rcp_f32 v{tmp + k}, v{tmp + k}')
        for k in range(4): q.e(f'v_pk_mul_f32 {Uu(k)}, {Uu(k)}, {T(k)}')
    else:
        for h4 in range(0, 8, 4):
            t = [tmp + k for k in range(4)]; g = [acc + h4 + k for k in range(4)]; u = [acc + 8 + h4 + k for k in range(4)]
            for k in range(4): q.e(f'v_mul_f32 v{t[k]}, v{g[k]}, v{g[k]}')
            for k in range(4): q.e(f'v_fma_f32 v{t[k]}, v{t[k]}, v{vK2}, v{vK1}')
            for k in range(4): q.e(f'v_mul_f32 v{t[k]}, v{t[k]}, v{g[k]}')
            for k in range(4): q.e(f'v_exp_f32 v{t[k]}, v{t[k]}')
            for k in range(4): q.e(f'v_mul_f32 v{u[k]}, v{g[k]}, v{u[k]}')
            for k in range(4): q.e(f'v_add_f32 v{t[k]}, 1.0, v{t[k]}')
            for k in range(4): q.e(f'v_rcp_f32 v{t[k]}, v{t[k]}')
            for k in range(4): q.e(f'v_mul_f32 v{u[k]}, v{u[k]}, v{t[k]}')
    for k in range(4): q.e(f'v_cvt_pk_bf16_f32 v{acc + k}, v{acc + 8 + 2 * k}, v{acc + 9 + 2 * k}')
    q.append(Group(list(soff_code) + [I(f'buffer_store_dwordx4 {vr(acc, 4)}, v{vL16}, {srd(SWS)}, s{sT1} offen sc1', tok)]))
    return q

def softmax_pm(Pa, E, s0):
    q = P(); a, b, c, d = s0, s0 + 1, s0 + 2, s0 + 3
    q.e(f'v_max3_f32 v{a}, v{Pa}, v{Pa+1}, v{Pa+2}')
    q.e(f'v_max3_f32 v{b}, -v{Pa}, -v{Pa+1}, -v{Pa+2}')
    q.e(f'v_max3_f32 v{c}, v{Pa+3}, v{Pa+4}, v{Pa+5}')
    q.e(f'v_max3_f32 v{d}, -v{Pa+3}, -v{Pa+4}, -v{Pa+5}')
    for k in range(6, 16, 4):
        q.e(f'v_max3_f32 v{a}, v{a}, v{Pa+k}, v{Pa+k+1}')
        q.e(f'v_max3_f32 v{b}, v{b}, -v{Pa+k}, -v{Pa+k+1}')
        if k + 3 < 16:
            q.e(f'v_max3_f32 v{c}, v{c}, v{Pa+k+2}, v{Pa+k+3}')
            q.e(f'v_max3_f32 v{d}, v{d}, -v{Pa+k+2}, -v{Pa+k+3}')
    q.e(f'v_max_f32 v{a}, v{a}, v{c}')
    q.e(f'v_max_f32 v{b}, v{b}, v{d}')
    q.e(f'v_permlane32_swap_b32 v{a}, v{b}')
    q.e(f'v_max_f32 v{a}, v{a}, v{b}')
    q.e(f'v_mul_f32 v{a}, {hx(f2u(-LOG2E))}, v{a}')
    q.e(f'v_mov_b32 v{b}, v{a}')
    q.e(f'v_permlane32_swap_b32 v{a}, v{b}')
    for k in range(16):
        q.e(f'v_fma_f32 v{E+k}, v{Pa+k}, s{sC}, v{a}')
        q.e(f'v_fma_f32 v{Pa+k}, -v{Pa+k}, s{sC}, v{b}')
        if k:
            q.e(f'v_exp_f32 v{E+k-1}, v{E+k-1}'); q.e(f'v_exp_f32 v{Pa+k-1}, v{Pa+k-1}')
    q.e(f'v_exp_f32 v{E+15}, v{E+15}'); q.e(f'v_exp_f32 v{Pa+15}, v{Pa+15}')
    q.e(f'v_add_f32 v{a}, v{E}, v{E+1}'); q.e(f'v_add_f32 v{b}, v{Pa}, v{Pa+1}')
    q.e(f'v_add_f32 v{c}, v{E+12}, v{E+13}'); q.e(f'v_add_f32 v{d}, v{Pa+12}, v{Pa+13}')
    for k in range(2, 12):
        q.e(f'v_add_f32 v{a}, v{a}, v{E+k}'); q.e(f'v_add_f32 v{b}, v{b}, v{Pa+k}')
        if k in (2, 3):
            q.e(f'v_add_f32 v{c}, v{c}, v{E+12+k}'); q.e(f'v_add_f32 v{d}, v{d}, v{Pa+12+k}')
    q.e(f'v_fmac_f32 v{a}, v{c}, v{vGM}'); q.e(f'v_fmac_f32 v{b}, v{d}, v{vGM}')
    q.e(f'v_permlane32_swap_b32 v{a}, v{b}')
    q.e(f'v_add_f32 v{a}, v{a}, v{b}')
    q.e(f'v_rcp_f32 v{a}, v{a}')
    q.e(f'v_mov_b32 v{b}, v{a}')
    q.e(f'v_permlane32_swap_b32 v{a}, v{b}')
    q.e(f'v_mul_f32 v{c}, v{a}, v{vGM}'); q.e(f'v_mul_f32 v{d}, v{b}, v{vGM}')
    for k in range(0, 16, 2):
        ra, rb = (a, b) if k < 12 else (c, d)
        q.e(f'v_mul_f32 v{E+k}, v{E+k}, v{ra}'); q.e(f'v_mul_f32 v{E+k+1}, v{E+k+1}, v{ra}')
        q.e(f'v_mul_f32 v{Pa+k}, v{Pa+k}, v{rb}'); q.e(f'v_mul_f32 v{Pa+k+1}, v{Pa+k+1}, v{rb}')
        q.e(f'v_cvt_pk_bf16_f32 v{E + k // 2}, v{E+k}, v{E+k+1}')
        q.e(f'v_cvt_pk_bf16_f32 v{Pa + k // 2}, v{Pa+k}, v{Pa+k+1}')
    return q

vFL16, vFL32 = 19, 4

def hsoff(texts):
    return [I(t) for t in texts] + [I(f's_lshl_b32 s{sT1}, s{sT1}, 10'), I(f's_add_u32 s{sT1}, s{sT1}, s{sHST}')]
def rem_soff(r):
    return hsoff([f's_cmp_gt_u32 s{sJM}, {r}', f's_cselect_b32 s{sT1}, {r}, {r + 4}', f's_mul_i32 s{sT2}, s{sJ}, 7', f's_add_u32 s{sT1}, s{sT1}, s{sT2}'])

def phase1_main(p, half):
    own = [2 * half, 2 * half + 1]; oth = [2 - 2 * half, 3 - 2 * half]
    mf = []
    fr = [(c, ks) for c in range(7) for ks in own]
    order1 = fr[:7] + [(c, ks ^ 2) for c, ks in fr[:7]] + fr[7:10] + [(c, ks ^ 2) for c, ks in fr[7:10]] + fr[10:] + [(c, ks ^ 2) for c, ks in fr[10:]]
    for n, (c, ks) in enumerate(order1):
        base = CU[0] if c < 5 else CU[5]
        pre = [I(f'v_add_u32 v{vTQ}, {hx(CU[5] - CU[0])}, v{vTQ}')] if n == 20 else []
        mf.append(dict(acc=ACC1, xf=4 * c + ks, rd=[(vTQ, CU[c] - base + ks * 1024 + r * 256, f'C{c}') for r in range(2)], pre=pre, first=n == 0))
    n2 = len(mf)
    for s in range(7):
        for ks in range(4):
            for t in range(2):
                pre = []
                isq = half == 0 and t == 0
                if ks == 0:
                    if isq: pre.append(I(f'v_add_u32 v{vTQ}, {hx(DU[s] - (DU[s-1] if s else CU[5]))}, v{vTQ}'))
                    elif s and (half == 0 or t == 0):
                        for a in vTR: pre.append(I(f'v_add_u32 v{a}, {hx(DU[s] - DU[s-1])}, v{a}'))
                if isq: rd = [(vTQ, ks * 1024 + r * 256, f'D{s}') for r in range(2)]
                else: rd = [(vTR[r], ks * 1536 + (0 if half == 0 else 1 + t) * 32, f'D{s}') for r in range(2)]
                mf.append(dict(acc=ACC2 + 16 * t, xf=4 * s + ks, rd=rd, pre=pre, first=s == 0 and ks == 0))
    n3 = len(mf)
    for s in range(7):
        for ks in range(4):
            for t in range(2):
                pre = [I(f'v_add_u32 v{vTA[t]}, {hx(AU[s] - (AU[s-1] if s else 0))}, v{vTA[t]}')] if ks == 0 else []
                mf.append(dict(acc=ACC3 + 16 * t, xf=4 * s + ks, rd=[(vTA[t], ks * 2048 + r * 512, f'A{s}') for r in range(2)], pre=pre, first=s == 0 and ks == 0))
    NB = len(AFR); D = NB - 1
    def reads(n):
        q = list(mf[n]['pre']); b = AFR[n % NB]
        for r, (a, off, obj) in enumerate(mf[n]['rd']):
            assert 0 <= off < 65536
            q.append(I(f'ds_read_b64_tr_b16 {vr(b + 2 * r, 2)}, v{a} offset:{off}', None, obj))
        return q
    for n in range(D): p.extend(reads(n))
    slots = []
    for n, m in enumerate(mf):
        acc = m['acc']
        sl = [I(f'{MF32} {vr(acc, 16)}, {vr(AFR[n % NB], 4)}, {vr(XF + 4 * m["xf"], 4)}, {"0" if m["first"] else vr(acc, 16)}')]
        if n + D < len(mf): sl += reads(n + D)
        slots.append(sl)
    def bar(n, tokwait, after, end, dswait=None, name=None):
        q = P()
        if dswait: q.append(WaitDs(dswait))
        if tokwait: q.append(WaitVm(tokwait))
        q.e('s_nop 0' if opt('nobar', 0) and n >= 28 else 's_barrier'); stamp(q, name or f'b{n}')
        if opt('nodma', 0) and n >= 28: after = None
        if dswait: slots[n].extend(q)
        else: slots[n][1:1] = q
        if after: spread(slots, after, n + 1 + (half if end - n > 3 else 0), end)
    q = P(); dma_D(q, half, 2); dma_D(q, half, 3)
    bar(4, None, q, 22, dswait='xn', name='b1a')
    q = P(); dma_D(q, half, 4)
    bar(22, 'D0', q, n2 + 2, name='b1c')
    q = P()
    q.e(f'v_readfirstlane_b32 s{sTAG}, v28'); q.e(f'v_readfirstlane_b32 s{sTAG+1}, v29')
    q.e(f's_add_u32 s{sTAG}, s{sTAG}, 0x9e3779b9'); q.e(f's_add_u32 s{sTAG+1}, s{sTAG+1}, 0x7f4a7c15')
    slots[23].extend(q)
    b2 = lambda s: n2 + 8 * s + 2
    b3 = lambda s: n3 + 8 * s + 2
    KB = opt('kb', 4)
    K = V = ACC1; Q = ACC2; T8 = 24
    if half == 0:
        f = P()
        f.e(f'v_bfe_u32 v24, v{vLANE}, 2, 2')
        f.e(f'v_lshrrev_b32 v25, 5, v{vLANE}')
        f.e(f'v_bfe_u32 v26, v{vLANE}, 4, 1')
        f.e(f'v_and_b32 v27, 3, v{vLANE}')
        f.e(f'v_lshl_or_b32 v26, v26, 2, v27')
        f.e(f'v_cmp_lt_u32 vcc, 5, v26')
        f.e(f'v_subrev_u32 v27, 1, v26')
        f.e(f'v_mul_u32_u24 v22, 56, v24')
        f.e(f'v_cndmask_b32 v26, v26, v27, vcc')
        f.e(f'v_lshl_add_u32 v22, v26, 3, v22')
        f.e(f'v_add_u32 v22, {MISC}, v22')
        f.e(f'v_mul_u32_u24 v23, 224, v25')
        f.e(f'v_add_u32 v23, v22, v23')
        f.e(f'ds_read_b64_tr_b16 {vr(WPHI, 2)}, v23', None, 'PHI')
        f.e(f'ds_read_b64_tr_b16 {vr(WPHI + 2, 2)}, v23 offset:{8 * 56}', None, 'PHI')
        f.e(f'ds_read_b64_tr_b16 {vr(WPHI + 4, 2)}, v23 offset:{16 * 56}', None, 'PHI')
        f.e(f'ds_read_b64_tr_b16 {vr(WPHI + 6, 2)}, v22 offset:{24 * 56}', None, 'PHI')
        f.e(f'v_cmp_lt_u32 vcc, 31, v{vLANE}')
        f.e(f'v_and_b32 v24, 31, v{vLANE}')
        f.e(f's_lshl_b32 s{sT1}, s{sTT}, 5')
        f.e(f'v_add_u32 v24, s{sT1}, v24')
        f.e(f'v_and_b32 v26, 9, v{vLANE}')
        f.e(f'v_bfe_u32 v27, v{vLANE}, 1, 1')
        f.e(f'v_lshl_or_b32 v26, v27, 2, v26')
        f.e(f'v_bfe_u32 v27, v{vLANE}, 2, 1')
        f.e(f'v_lshl_or_b32 v26, v27, 1, v26')
        f.e(f'v_xor_b32 v4, v26, v25')
        f.e(f'v_lshlrev_b32 v5, 7, v24')
        f.e(f'v_add_u32 v5, {TRK}, v5')
        f.e(f'v_cndmask_b32 v{WPHI + 6}, 0, v{WPHI + 6}, vcc')
        f.e(f'v_cndmask_b32 v{WPHI + 7}, 0, v{WPHI + 7}, vcc')
        interleave(slots, f, 6, n2)
        f = P()
        for k in range(8): f.e(f'v_cvt_pk_bf16_f32 v{T8 + k}, v{K + 2 * k}, v{K + 2 * k + 1}')
        f.e(f'{MF32} {vr(ACC3, 16)}, {vr(WPHI, 4)}, {vr(T8, 4)}, 0')
        f.e(f'{MF32} {vr(ACC3, 16)}, {vr(WPHI + 4, 4)}, {vr(T8 + 4, 4)}, {vr(ACC3, 16)}')
        f.append(Gap(2))
        f.extend(softmax_pm(ACC3, K, 20))
        for ft, src in ((0, K), (1, ACC3)):
            for i in range(4):
                f.e(f'v_xor_b32 v19, {8 * ft + 2 * i}, v4')
                f.e(f'v_lshl_add_u32 v19, v19, 3, v5')
                f.e(f'ds_write_b64 v19, {vr(src + 2 * i, 2)}', 'tr', 'TRK')
        interleave(slots, f, n2 + 2, b2(KB) + 1)
        f = gelu_tile(ACC2 + 16, 20, rem_soff(0), 'HR')
        for k in range(8): f.e(f'v_cvt_pk_bf16_f32 v{T8 + k}, v{Q + 2 * k}, v{Q + 2 * k + 1}')
        f.e(f'{MF32} {vr(K, 16)}, {vr(WPHI, 4)}, {vr(T8, 4)}, 0')
        f.e(f'{MF32} {vr(K, 16)}, {vr(WPHI + 4, 4)}, {vr(T8 + 4, 4)}, {vr(K, 16)}')
        f.append(Gap(2))
        f.extend(softmax_pm(K, Q, 20))
        interleave(slots, f, n3 + 2, b3(opt('ob', 5)))
        q = P(); q.append(WaitVm('HR')); set_flag(q, f's{sFLP}', 4, 0)
        slots[n3 + opt('rf0', 30)].extend(q)
        KVF, NUM, PHQ = [72, 76, 88, 92], 96, [80, 84, 64, 68]
        f = P()
        f.e(f'v_add_u32 v20, {KVBUF}, v{vL16}')
        for s in range(4): f.e(f'ds_read_b128 {vr(KVF[s], 4)}, v20 offset:{s * 1024}', None, 'KVBUF')
        f.append(Gap(2))
        for s in range(4): f.e(f'{MF32} {vr(NUM, 16)}, {vr(KVF[s], 4)}, {vr(PHQ[s], 4)}, {"0" if s == 0 else vr(NUM, 16)}')
        OB = b3(opt('ob', 5))
        interleave(slots, f, OB + 1, OB + 4)
        f = P(); OP = 72
        f.e(f'v_add_f32 v20, {hx(f2u(1e-6))}, v{NUM + 12}')
        f.e(f'v_rcp_f32 v20, v20')
        f.e(f'v_mov_b32 v21, v20')
        f.e(f'v_permlane32_swap_b32 v20, v21')
        f.e(f'v_mul_f32 v21, v20, v{vGM}')
        for k in range(16): f.e(f'v_mul_f32 v{NUM + k}, v{NUM + k}, v{20 if k < 12 else 21}')
        for k in range(8): f.e(f'v_cvt_pk_bf16_f32 v{OP + k}, v{NUM + 2 * k}, v{NUM + 2 * k + 1}')
        f.append(Group(hsoff([f's_lshl_b32 s{sT1}, s{sH}, 1', f's_add_u32 s{sT1}, s{sT1}, 112']) +
            [I(f'buffer_store_dwordx4 {vr(OP, 4)}, v{vL16}, {srd(SWS)}, s{sT1} offen sc1', 'O'),
             I(f'buffer_store_dwordx4 {vr(OP + 4, 4)}, v{vL16}, {srd(SWS)}, s{sT1} offen offset:1024 sc1', 'O')]))
        interleave(slots, f, OB + 6, min(OB + 12, len(slots)))
    else:
        f = P()
        f.e(f'v_bfe_u32 v24, v{vLANE}, 2, 2')
        f.e(f'v_lshrrev_b32 v25, 4, v{vLANE}')
        f.e(f'v_lshl_add_u32 v24, v25, 3, v24')
        f.e(f'v_and_b32 v25, 3, v{vLANE}')
        f.e(f'v_and_b32 v26, 9, v24')
        f.e(f'v_bfe_u32 v27, v24, 1, 1')
        f.e(f'v_lshl_or_b32 v26, v27, 2, v26')
        f.e(f's_lshl_b32 s{sT1}, s{sTT}, 2')
        f.e(f'v_or_b32 v27, s{sT1}, v25')
        f.e(f'v_xor_b32 v26, v26, v27')
        f.e(f'v_lshlrev_b32 v27, 7, v24')
        f.e(f'v_add_u32 v27, {TRK}, v27')
        f.e(f'v_lshl_add_u32 v4, v26, 3, v27')
        f.e(f'v_xor_b32 v5, 16, v4')
        f.e(f'v_bfe_u32 v26, v24, 1, 3')
        f.e(f'v_xor_b32 v26, v26, v25')
        f.e(f'v_lshlrev_b32 v27, 6, v24')
        f.e(f'v_add_u32 v27, {TRV}, v27')
        f.e(f'v_lshl_add_u32 v19, v26, 3, v27')
        f.e(f'v_xor_b32 v20, 32, v19')
        f.e(f'v_xor_b32 v21, 16, v19')
        f.e(f'v_xor_b32 v22, 16, v20')
        f.e(f'v_bfe_u32 v24, v{vLANE}, 4, 1')
        f.e(f'v_and_b32 v25, 15, v{vLANE}')
        f.e(f'v_lshl_or_b32 v24, v24, 5, v25')
        f.e(f'v_lshrrev_b32 v25, 5, v{vLANE}')
        f.e(f'v_lshlrev_b32 v26, 3, v25')
        f.e(f'v_lshl_or_b32 v23, v24, 4, v26')
        f.e(f's_lshl_b32 s{sT4}, s{sH}, 4')
        f.e(f's_add_u32 s{sT4}, s{sT4}, s{sRB}')
        f.e(f's_lshl_b32 s{sT4}, s{sT4}, 2')
        f.e(f's_add_u32 s{sT4}, s{sT4}, s{sTT}')
        f.e(f's_lshl_b32 s{sT4}, s{sT4}, 10')
        f.e(f's_add_u32 s{sT4}, s{sT4}, {KVP}')
        f.e(f's_lshl_b32 s{sT5}, s{sRB}, 3')
        f.e(f's_add_u32 s{sT5}, s{sT5}, s{sKVFL}')
        f.e(f'v_cmp_lt_u32 vcc, 31, v{vLANE}')
        f.e(f'v_and_b32 v24, 31, v{vLANE}')
        f.e(f's_lshl_b32 s{sT1}, s{sTT}, 5')
        f.e(f'v_add_u32 v24, s{sT1}, v24')
        f.e(f'v_bfe_u32 v26, v{vLANE}, 1, 3')
        f.e(f'v_xor_b32 v26, v26, v25')
        f.e(f'v_lshlrev_b32 v27, 6, v24')
        f.e(f'v_add_u32 v27, {TRV}, v27')
        interleave(slots, f, 6, n2)
        f = P()
        f.e(f'v_cndmask_b32 v{V + 12}, 1.0, v{V + 12}, vcc')
        for k in range(8): f.e(f'v_cvt_pk_bf16_f32 v{V + k}, v{V + 2 * k}, v{V + 2 * k + 1}')
        for i in range(4):
            f.e(f'v_xor_b32 v24, {2 * i}, v26')
            f.e(f'v_lshl_add_u32 v24, v24, 3, v27')
            f.e(f'ds_write_b64 v24, {vr(V + 2 * i, 2)}', 'tr', 'TRV')
        interleave(slots, f, n2 + 2, n2 + 10)
        f = P()
        KA, KB0, KB1, KD = ACC3, ACC3 + 4, ACC3 + 8, ACC3 + 24
        def kvrd(kk, o):
            f.e(f'ds_read_b64_tr_b16 {vr(KA + o, 2)}, v4 offset:{kk * 4096}', None, 'TRK')
            f.e(f'ds_read_b64_tr_b16 {vr(KA + o + 2, 2)}, v5 offset:{kk * 4096 + 512}', None, 'TRK')
            f.e(f'ds_read_b64_tr_b16 {vr(KB0 + o, 2)}, v19 offset:{kk * 2048}', None, 'TRV')
            f.e(f'ds_read_b64_tr_b16 {vr(KB0 + o + 2, 2)}, v21 offset:{kk * 2048 + 256}', None, 'TRV')
            f.e(f'ds_read_b64_tr_b16 {vr(KB1 + o, 2)}, v20 offset:{kk * 2048}', None, 'TRV')
            f.e(f'ds_read_b64_tr_b16 {vr(KB1 + o + 2, 2)}, v22 offset:{kk * 2048 + 256}', None, 'TRV')
        kvrd(0, 0); kvrd(1, 12); f.append(Gap(1))
        for kk in range(4):
            o = 12 * (kk & 1)
            f.e(f'{MF16} {vr(KD, 4)}, {vr(KA + o, 4)}, {vr(KB0 + o, 4)}, {"0" if kk == 0 else vr(KD, 4)}')
            f.e(f'{MF16} {vr(KD + 4, 4)}, {vr(KA + o, 4)}, {vr(KB1 + o, 4)}, {"0" if kk == 0 else vr(KD + 4, 4)}')
            if kk < 2: kvrd(kk + 2, o)
            f.append(Gap(1))
        f.append(Gap(1))
        for k in range(4): f.e(f'v_cvt_pk_bf16_f32 v{24 + k}, v{KD + 2 * k}, v{KD + 2 * k + 1}')
        f.e(f'buffer_store_dwordx2 v[24:25], v23, {srd(SWS)}, s{sT4} offen sc1', 'KV')
        f.e(f'buffer_store_dwordx2 v[26:27], v23, {srd(SWS)}, s{sT4} offen offset:256 sc1', 'KV')
        interleave(slots, f, b2(KB) + 1, b2(KB) + 8)
        q = P(); stamp(q, 'preKVack'); q.append(WaitVm('KV')); stamp(q, 'KVack'); set_flag(q, f's{sT5}', 24)
        slots[b2(KB) + 8 + opt('kvf', 8)].extend(q)
        GA, S = 64, 248
        f = P()
        f.e(f'v_and_b32 v{vFL16}, 15, v{vLANE}'); f.e(f'v_lshlrev_b32 v{vFL16}, 3, v{vFL16}')
        f.e(f's_lshl_b32 s{sT4}, s{sH}, 16'); f.e(f's_lshl_b32 s{sT2}, s{sTT}, 10')
        f.e(f's_add_u32 s{sT4}, s{sT4}, s{sT2}'); f.e(f's_add_u32 s{sT4}, s{sT4}, {KVP}')
        for k in range(8): f.e(f'v_mov_b32 v{S + k}, 0')
        slots[n3].extend(f)
        KP = n3 + opt('kp', 18)
        interleave(slots, gelu_tile(ACC2, 20, rem_soff(1), 'HR') + gelu_tile(ACC2 + 16, 20, rem_soff(2), 'HR'), n3 + 2, KP)
        q = P(); flag_load(q, 28, vFL16, f's{sKVFL}'); slots[KP - 6].extend(q)
        q = P(); stamp(q, 'prekv'); poll(q, 'kv', 28, vFL16, f's{sKVFL}'); stamp(q, 'kvpoll')
        slots[KP].extend(q)
        gdst = lambda e: GA + 4 * (e % 12)
        gl = lambda e: Group([I(f'buffer_load_dwordx4 {vr(gdst(e), 4)}, v{vL16}, {srd(SWS)}, s{sT4} offen sc1'), I(f's_add_u32 s{sT4}, s{sT4}, 4096')])
        spread(slots, [gl(e) for e in range(12)], KP, KP + 8)
        def dots(e):
            q = []
            for k in range(4):
                q.append(I(f'v_dot2c_f32_bf16 v{S + 2 * k}, s{sSEL0}, v{gdst(e) + k}'))
                q.append(I(f'v_dot2c_f32_bf16 v{S + 2 * k + 1}, s{sSEL1}, v{gdst(e) + k}'))
            return q
        G1 = KP + opt('g1', 12); G2 = b3(opt('ob', 5))
        q = P()
        for e in range(4): q.extend(dots(e)); q.append(gl(e + 12))
        slots[G1].extend(q)
        q = P(); q.append(WaitVm('HR')); set_flag(q, f's{sFLP}', 24, 128)
        slots[KP + opt('rf1', 10)].extend(q)
        for hb in range(2):
            q = P()
            for e in range(4 + 4 * hb, 8 + 4 * hb): q.extend(dots(e))
            slots[G1 + 3 + 3 * hb].extend(q)
        q = P()
        for e in range(12, 16): q.extend(dots(e))
        for k in range(4): q.e(f'v_cvt_pk_bf16_f32 v{S + k}, v{S + 2 * k}, v{S + 2 * k + 1}')
        q.e(f's_lshl_b32 s{sT2}, s{sTT}, 10'); q.e(f's_add_u32 s{sT2}, s{sT2}, {KVBUF}')
        q.e(f'v_add_u32 v20, s{sT2}, v{vL16}')
        q.e(f'ds_write_b128 v20, {vr(S, 4)}', 'kvb', 'KVBUF')
        slots[G2 - 1].extend(q)
    for s in range(7):
        q = P()
        if s < 2: dma_D(q, half, s + 5)
        if s >= 1: dma_A(q, s - 1)
        if half == 0:
            if s == 5: dma_L(q, 0, 1); dma_L(q, 1, 1)
            if s == KB + 2:
                for n in (2, 3, 4): dma_L(q, n, 1)
        bar(b2(s), f'D{s+1}' if s < 6 else 'A0', q, b2(s + 1), dswait='tr' if s == KB else None, name=f'b2_{s}')
    l3 = {1: [5, 6], 2: [7, 8], 3: [11, 12], 4: [13, 14], 5: [15, 16], 6: [9, 10]}
    for s in range(7):
        q = P()
        if s == 0: dma_A(q, 6)
        if half == 0:
            if s == KB + 2 - 7:
                for n in (2, 3, 4): dma_L(q, n, 1)
            for n in l3.get(s, []): dma_L(q, n, 1)
        bar(b3(s), f'A{s+1}' if s < 6 else None, q, min(b3(s + 1), len(slots)), dswait='kvb' if s == opt('ob', 5) else None, name=f'b3_{s}')
    q = P()
    if half == 0: q.e(f'v_and_b32 v{vFL16}, 15, v{vLANE}'); q.e(f'v_lshlrev_b32 v{vFL16}, 3, v{vFL16}')
    q.e(f'v_and_b32 v{vFL32}, 31, v{vLANE}'); q.e(f'v_lshlrev_b32 v{vFL32}, 3, v{vFL32}')
    flag_load(q, 26, vFL32, f's{sFLD}')
    slots[len(slots) - 4].extend(q)
    if opt('nofill', 0):
        for n in range(n2, len(slots)):
            slots[n] = [x for x in slots[n] if not (isinstance(x, Ins) and x.kind in ('valu', 'trans', 'perm', 'dot') and not x.text.startswith(('v_add_u32', 'v_xor', 'v_lshl', 'v_and', 'v_cmp', 'v_readf', 'v_mov')))]
    for sl in slots: p.extend(sl)

BR = [XF + 4 * k for k in range(27)]
XR = XF + 108
def bload(k):
    return Group([I(f's_add_u32 s{sT1}, s{sHLD}, {LINES[k] * 4096}'),
                  I(f'buffer_load_dwordx4 {vr(BR[k % 27], 4)}, v{vL16}, {srd(SWS)}, s{sT1} offen sc1')])

def phase1_tail(p, half):
    stamp(p, 'endA')
    if half == 0: p.append(WaitVm('O')); set_flag(p, f's{sFLP}', 24, 512)
    poll(p, f'R{half}', 26, vFL32, f's{sFLD}')
    stamp(p, 'Rpoll')
    if half == 1 and opt('tprio', 1): p.e('s_setprio 1')
    code = P()
    for t in range(2):
        so = hsoff([f's_mul_i32 s{sT1}, s{sJ}, 7', f's_add_u32 s{sT1}, s{sT1}, s{sJM}', f's_add_u32 s{sT1}, s{sT1}, {2 * half + t}'])
        code.extend(gelu_tile(ACC3 + 16 * t, 112, so, 'HA', pk=True))
    NR1 = opt('nr1', 8)
    p.extend(mix(code, [bload(k) for k in range(NR1)], 0.0, 0.95))
    if half == 1 and opt('tprio', 1): p.e('s_setprio 0')
    stamp(p, 'gelu')
    p.e(f's_cmp_ge_u32 s{sI}, 28')
    p.e(f's_cbranch_scc1 L_exit{half}')
    q = P(); q.append(Reset()); q.e(f'L_exit{half}:')
    q.e('s_waitcnt vmcnt(0)'); set_flag(q, f's{sFLP}', 24, 256 + 128 * half)
    q.e('s_endpgm')
    slow_paths.append(q)
    return NR1

def phase2(p, half, NR1):
    AY, AS = 96, ACC3
    AR = [64, 68, 80, 84, 240, 244, 248, 252]
    vW = [[8, 9, 10], [11, 12, 14]]
    vO = [[15, 16], [17, 18]]
    vOUT = 20
    code = P()
    code.e(f'v_bfe_u32 v24, v{vLANE}, 2, 2')
    code.e(f'v_bfe_u32 v26, v{vLANE}, 4, 1')
    code.e(f'v_and_b32 v27, 2, v24')
    code.e(f'v_xor_b32 v26, v26, v27')
    code.e(f'v_and_b32 v27, 3, v{vLANE}')
    code.e(f'v_lshlrev_b32 v27, 3, v27')
    code.e(f'v_lshl_add_u32 v27, v24, 7, v27')
    code.e(f'v_lshl_add_u32 v27, v26, 5, v27')
    code.e(f'v_lshrrev_b32 v25, 5, v{vLANE}')
    code.e(f'v_lshl_add_u32 v26, v25, 9, v27')
    code.e(f's_lshl_b32 s{sT2}, s{sTT}, 11')
    code.e(f'v_add_u32 v{vW[0][0]}, s{sT2}, v26')
    code.e(f'v_xor_b32 v{vW[1][0]}, 64, v{vW[0][0]}')
    for nt in range(2):
        code.e(f'v_add_u32 v{vW[nt][1]}, 0x10000, v{vW[nt][0]}')
        code.e(f'v_add_u32 v{vW[nt][2]}, 0x20000, v{vW[nt][0]}')
    p.extend(mix(code, [bload(k) for k in range(NR1, min(12, NR1 + 2))]))
    ks = []
    for n in range(36):
        u = LU[n]; isO = 12 <= n < 20
        if not isO: rd = [[(vW[nt][u // 8], (u % 8) * U + r * 1024) for r in range(2)] for nt in range(2)]
        else: rd = [[(vO[nt][r], u * U - OW) for r in range(2)] for nt in range(2)]
        ks.append(dict(acc=AS if isO else AY, first=n in (0, 12), rd=rd))
    NB = len(AR); D = NB - 2
    mf = [(k, nt) for k in range(36) for nt in range(2)]
    def reads(n):
        k, nt = mf[n]; b = AR[n % NB]
        return [I(f'ds_read_b64_tr_b16 {vr(b + 2 * r, 2)}, v{a} offset:{off}', None, f'L{k}') for r, (a, off) in enumerate(ks[k]['rd'][nt])]
    p.append(WaitVm(['L0', 'L1', 'L2', 'L3'])); p.e('s_barrier')
    stamp(p, 'bPopen')
    for n in range(D): p.extend(reads(n))
    slots = []
    for n, (k, nt) in enumerate(mf):
        acc = ks[k]['acc'] + 16 * nt
        sl = [I(f'{MF32} {vr(acc, 16)}, {vr(AR[n % NB], 4)}, {vr(BR[k % 27], 4)}, {"0" if ks[k]["first"] else vr(acc, 16)}')]
        if n + D < len(mf): sl += reads(n + D)
        slots.append(sl)
    q = P(); q.extend(bload(k) for k in range(min(12, NR1 + 2), 12)); dma_L(q, 17); dma_L(q, 18)
    spread(slots, q, 0, 6)
    q = P()
    q.e(f's_lshr_b32 s{sT2}, s{sTT}, 1')
    q.e(f's_mul_i32 s{sT2}, s{sT2}, {28 * 128}')
    q.e(f's_and_b32 s{sT3}, s{sTT}, 1')
    q.append(Group([I(f's_cmp_eq_u32 s{sT3}, 0'), I(f's_cselect_b64 vcc, -1, 0'), I(f'v_cndmask_b32 v27, v27, v26, vcc')]))
    q.e(f's_lshl_b32 s{sT3}, s{sT3}, 11')
    q.e(f's_add_u32 s{sT2}, s{sT2}, s{sT3}')
    q.e(f's_add_u32 s{sT2}, s{sT2}, {OW}')
    q.e(f'v_add_u32 v{vO[0][0]}, s{sT2}, v26')
    q.e(f's_add_u32 s{sT2}, s{sT2}, 1024')
    q.e(f'v_add_u32 v{vO[0][1]}, s{sT2}, v27')
    for r in range(2): q.e(f'v_xor_b32 v{vO[1][r]}, 64, v{vO[0][r]}')
    q.e(f'v_and_b32 v24, 31, v{vLANE}')
    q.e(f's_lshl_b32 s{sT2}, s{sT2K}, 5')
    q.e(f'v_add_u32 v24, s{sT2}, v24')
    q.e(f'v_mul_u32_u24 v24, 896, v24')
    q.e(f'v_lshl_add_u32 v24, v25, 4, v24')
    q.e(f's_lshl_b32 s{sT2}, s{sNG}, 7')
    q.e(f's_lshl_b32 s{sT3}, s{sTT}, 5')
    q.e(f's_add_u32 s{sT2}, s{sT2}, s{sT3}')
    q.e(f'v_add_u32 v{vOUT}, s{sT2}, v24')
    q.e(f's_add_u32 s{sT4}, s{sFLD}, 512')
    interleave(slots, q, 0, 2)
    LS = opt('ls', 1)
    for s in range(8):
        q = P()
        q.append(WaitVm([f'L{4 * (s + 1) + i}' for i in range(4)]))
        if s == 7: q.append(WaitDs('red'))
        q.e('s_barrier'); stamp(q, f'bP{s}')
        slots[8 * s + 1][1:1] = q
    q = P()
    for n in range(19, 36): dma_L(q, n)
    lstart = {19: 10, 20: 12, 21: 14, 22: 16}
    for n in range(19, 36):
        lo = 8 * ((n - 15) // 4) + 2
        want = opt('l0', 12) + (n - 19) * opt('lstep', 5) // 2
        pos = min(max(lo, want), 8 * (n // 4 - 1) - opt('llead', 6))
        assert pos >= lo, n
        slots[pos].append(q[n - 19])
    AFP = opt('afp', 2); OPOS = opt('opos', 6); A1 = opt('a1', 22)
    q = P(); q.append(WaitVm('HA')); set_flag(q, f's{sFLP}', 24, 256 + 128 * half); stamp(q, 'Aflag')
    slots[AFP].extend(q)
    q = P(); flag_load(q, 28, vFL16, f's{sT4}'); slots[max(2, OPOS - 4)].extend(q)
    q = P(); stamp(q, 'preOpoll'); poll(q, f'O{half}', 28, vFL16, f's{sT4}'); stamp(q, 'Opoll')
    slots[OPOS].extend(q)
    spread(slots, [bload(k) for k in range(12, 20)], OPOS, OPOS + opt('ospan', 12))
    q = P(); flag_load(q, 30, vFL16, f's{sFLA}'); slots[A1 - opt('alead', 6)].extend(q)
    q = P(); stamp(q, 'preApoll'); poll(q, f'A{half}', 30, vFL16, f's{sFLA}'); stamp(q, 'Apoll')
    slots[A1].extend(q)
    spread(slots, [bload(k) for k in range(20, 36)], A1, A1 + opt('aspan', 30))
    q = P(); q.e(f'buffer_load_dwordx4 {vr(XR, 4)}, v{vOUT}, {srd(SX)}, 0 offen'); slots[54].extend(q)
    def red_addr(q, base, dstw, dstr):
        q.e(f's_mul_i32 s{sT2}, s{sTT}, 6144')
        q.e(f's_add_u32 s{sT2}, s{sT2}, {base}')
        q.e(f'v_add_u32 v{dstr}, s{sT2}, v{vL16}')
        q.e(f'v_add_u32 v{dstw}, {base}, v{vL16}')
    def red_write(q, acc, own, aw, uid, obj):
        for kq in range(4):
            if kq < 3:
                q.e(f's_cmp_lg_u32 s{sTT}, {kq}'); q.e(f's_cbranch_scc1 L_red{uid}_{kq + 1}')
            for part in range(4):
                if part == kq: continue
                slot = kq if kq < part else kq - 1
                for hh in range(2):
                    q.e(f'ds_write_b128 v{aw}, {vr(acc + 8 * part + 4 * hh, 4)} offset:{part * 6144 + slot * 2048 + hh * 1024}', 'red' if kq == 0 else 'NOTRACK', obj)
            for k in range(0, 8, 2): q.e(f'v_mov_b64 {vr(own + k, 2)}, {vr(acc + 8 * kq + k, 2)}')
            if kq < 3: q.e(f's_branch L_red{uid}_4'); q.e(f'L_red{uid}_{kq + 1}:')
        q.e(f'L_red{uid}_4:')
    SO, YO, SR, YR, G, XU_ = 72, 88, ACC3, 168, 192, 200
    q = P(); red_addr(q, REDS[half], 24, 25); red_write(q, AS, SO, 24, f'S{half}', f'REDS{half}'); slots[51].extend(q)
    q = P()
    for src in range(3):
        for hh in range(2): q.e(f'ds_read_b128 {vr(SR + 8 * src + 4 * hh, 4)}, v25 offset:{src * 2048 + hh * 1024}', None, f'REDS{half}')
    red_addr(q, REDY[half], 24, 26)
    slots[58].extend(q)
    q = P()
    for k in range(8): q.e(f'v_add_f32 v{SR + 8 + k}, v{SR + 8 + k}, v{SR + 16 + k}')
    for k in range(8): q.e(f'v_add_f32 v{SO + k}, v{SO + k}, v{SR + k}')
    for k in range(8): q.e(f'v_add_f32 v{SO + k}, v{SO + k}, v{SR + 8 + k}')
    q.e(f'v_permlane32_swap_b32 v{XR}, v{XR + 2}')
    q.e(f'v_permlane32_swap_b32 v{XR + 1}, v{XR + 3}')
    for k in range(4):
        q.e(f'v_lshlrev_b32 v{XU_ + 2 * k}, 16, v{XR + k}')
        q.e(f'v_and_b32 v{XU_ + 2 * k + 1}, 0xffff0000, v{XR + k}')
    interleave(slots, q, 60, 70)
    q = P(); q.e('s_barrier'); stamp(q, 'bP8'); slots[65][1:1] = q
    for sl in slots: p.extend(sl)
    stamp(p, 'endP')
    p.e('s_nop 7')
    red_write(p, AY, YO, 24, f'Y{half}', f'REDY{half}')
    p.append(WaitDs())
    p.e('s_barrier')
    stamp(p, 'bY')
    for src in range(3):
        for hh in range(2): p.e(f'ds_read_b128 {vr(YR + 8 * src + 4 * hh, 4)}, v26 offset:{src * 2048 + hh * 1024}', None, f'REDY{half}')
    pr = lambda b, k: vr(b + 2 * k, 2)
    for src in range(3):
        for k in range(4): p.e(f'v_pk_add_f32 {pr(YO, k)}, {pr(YO, k)}, {pr(YR + 8 * src, k)}')
    for k in range(4): p.e(f'v_pk_mul_f32 {pr(G, k)}, {pr(YO, k)}, s[{sC}:{sC+1}] op_sel_hi:[1,0] neg_lo:[1,0] neg_hi:[1,0]')
    for k in range(8): p.e(f'v_exp_f32 v{G + k}, v{G + k}')
    for k in range(4): p.e(f'v_pk_mul_f32 {pr(SO, k)}, {pr(SO, k)}, {pr(YO, k)}')
    for k in range(4): p.e(f'v_pk_add_f32 {pr(G, k)}, {pr(G, k)}, 1.0 op_sel_hi:[1,0]')
    for k in range(8): p.e(f'v_rcp_f32 v{G + k}, v{G + k}')
    for k in range(4): p.e(f'v_pk_fma_f32 {pr(XU_, k)}, {pr(SO, k)}, {pr(G, k)}, {pr(XU_, k)}')
    for k in range(4): p.e(f'v_cvt_pk_bf16_f32 v{G + k}, v{XU_ + 2 * k}, v{XU_ + 2 * k + 1}')
    p.e(f'v_permlane32_swap_b32 v{G}, v{G + 2}')
    p.e(f'v_permlane32_swap_b32 v{G + 1}, v{G + 3}')
    p.e(f'buffer_store_dwordx4 {vr(G, 4)}, v{vOUT}, {srd(SOUT)}, 0 offen' + ('', ' sc1', ' nt', ' sc0 sc1')[opt('osc', 0)])
    stamp(p, 'end'); dump(p)
    if half == 0:
        p.e(f's_or_b32 s{sT1}, s2, s{sW}')
        p.e(f's_cmp_lg_u32 s{sT1}, 0')
        p.e(f's_cbranch_scc1 L_end')
        set_flag(p, '0', 24)
    p.e('s_endpgm')

def build():
    pro = prologue()
    outs = []; fulls = []
    for half in range(2):
        p = P()
        x_stage(p, half); phase1_main(p, half); nr = phase1_tail(p, half); phase2(p, half, nr)
        mark = I(f'L_half{half}:')
        full = finalize(list(pro) + [mark] + list(p)); fulls.append(full)
        outs.append(full[full.index(mark):])
    if not (opt('nobar', 0) or opt('nodma', 0)): check_lds(fulls, RANGES)
    assert len({sum(x.op == 's_barrier' for x in f) for f in fulls}) == 1
    pro_f = finalize(list(pro))
    slow = []
    for q in slow_paths: slow += finalize(list(q))
    hdr = open('recurrent_scan__linear_kernel_hedgehog__geglu_ffn__prompt.s.ref').read().split('\n')
    top = [l for l in hdr if l.startswith(';') and '@launch' not in l and 'Override' not in l and 'grid=ceil' not in l]
    s = '\n'.join(top) + '\n; @launch grid=(256,1,1) block=(512,1,1) lds=163840\n'
    s += f'.amdgcn_target "amdgcn-amd-amdhsa--gfx950"\n.text\n.globl {NAME}\n.p2align 8\n.type {NAME},@function\n{NAME}:\n'
    s += text(pro_f) + text(outs[0]) + text(outs[1]) + text(slow)
    s += 'L_end:\n    s_endpgm\nL_codeend:\n'
    s += f'''.section .rodata,"a"
.p2align 6
.amdhsa_kernel {NAME}
  .amdhsa_next_free_vgpr 256
  .amdhsa_next_free_sgpr 96
  .amdhsa_accum_offset 256
  .amdhsa_group_segment_fixed_size 0
  .amdhsa_kernarg_size 88
  .amdhsa_user_sgpr_count 2
  .amdhsa_user_sgpr_kernarg_segment_ptr 1
  .amdhsa_system_sgpr_workgroup_id_x 1
.end_amdhsa_kernel
'''
    return s

if __name__ == '__main__':
    open(sys.argv[1], 'w').write(build())
    if DEBUG: json.dump(STAMPS, open('stamps.json', 'w'))
```

```python
import sys, struct, math, json
sys.path.insert(0, 'work')
from asmlib import *

NAME = 'recurrent_scan__linear_kernel_hedgehog__geglu_ffn__prompt_kernel'
def f2u(x): return struct.unpack('<I', struct.pack('<f', x))[0]
def hx(x): return '0x%08x' % (x & 0xffffffff)
LOG2E = 1.4426950408889634
ARGS = sys.argv[2:]
DEBUG = 'dbg' in ARGS
def opt(name, default):
    for a in ARGS:
        if a.startswith(name + '='): return int(a.split('=')[1])
    return default

EP, KVFL, HFL, KVP, HB = 0x0, 0x1000, 0x10000, 0x40000, 0x200000
FLT = 1024
TBLK = 148 * 1024
WS_SIZE = HB + 64 * TBLK
DBGOFF = 0xC00000
if DEBUG: WS_SIZE = 0xD00000
SX, SQKV, SG, SU, SWD, SWO, SWS, SOUT, SPHI, SREM = 8, 12, 16, 20, 24, 28, 32, 36, 40, 44
def srd(b): return f's[{b}:{b+3}]'
sW, sRB, sH, sJ, sJM, sCH, sW1K, sREML = 48, 49, 50, 51, 52, 53, 54, 55
sTAG = 56
sTT, sT, sXI, sI = 58, 59, 60, 61
sC = 62; sHST = 63
sT0, sT1, sT2, sT3, sT4, sT5 = 64, 65, 66, 67, 68, 69
sONE2, sSEL0, sSEL1 = 70, 71, 72
sHLD, sFLD, sNG, sT2K, sFLA, sFLP, sKVFL, sRDY = 73, 74, 75, 76, 77, 78, 82, 83
sSPIN = 79
sPC = 80
vLANE, vL16, vGM, vR, vCc, vK1, vK2 = 1, 2, 3, 4, 5, 6, 7
vOQ = 8; vOR = [9, 10]; vOA = [11, 12]; vOW2 = 13
vTQ = 14; vTR = [15, 16]; vTA = [17, 18]
vOX = 31
ACC3, ACC1, ACC2, XF = 32, 64, 80, 128
AFR = [112, 116, 120, 124, 240, 244]
WPHI = 248
def vr(b, n=1): return f'v{b}' if n == 1 else f'v[{b}:{b+n-1}]'

U = 8192
XU = lambda p: 2 * p * U
CU = [14 * U, 15 * U, 16 * U, 17 * U, 18 * U, 7 * U, 8 * U]
DU = [9 * U, 11 * U, 0, 2 * U, 4 * U, 13 * U, 6 * U]
AU = [9 * U, 11 * U, 0, 2 * U, 4 * U, 13 * U, 6 * U]
TRV, TRK = 15 * U, 16 * U
MISC = 19 * U; STAT = MISC + 4096; KVBUF = MISC + 4096
LINES = [L for L in range(28) if L % 7 in (1, 3, 5)] + list(range(28, 36)) + [L for L in range(28) if L % 7 in (0, 2, 4, 6)]
LU = [18, 8, 15, 16, 17, 9, 10, 11, 12, 13, 14, 0, 1, 2, 3, 4, 5, 6, 7,
      8, 18, 15, 16, 17, 9, 10, 11, 12, 13, 14, 0, 1, 2, 3, 4, 5]
OW = U
REDS, REDY = [6 * U, 15 * U], [9 * U, 12 * U]
RANGES = {'PHI': (MISC, MISC + 2048), 'STAT': (STAT, STAT + 4096), 'KVBUF': (KVBUF, KVBUF + 4096), 'TRV': (TRV, TRV + U), 'TRK': (TRK, TRK + 2 * U),
          'E1': (0, 7 * U), 'E2': (0, 7 * U)}
for h_ in range(2):
    RANGES[f'REDS{h_}'] = (REDS[h_], REDS[h_] + 3 * U); RANGES[f'REDY{h_}'] = (REDY[h_], REDY[h_] + 3 * U)
for c in range(7):
    RANGES[f'X{c}'] = (XU(c), XU(c) + 2 * U); RANGES[f'C{c}'] = (CU[c], CU[c] + U)
    RANGES[f'D{c}'] = (DU[c], DU[c] + 2 * U); RANGES[f'A{c}'] = (AU[c], AU[c] + 2 * U)
for n in range(36): RANGES[f'L{n}'] = (LU[n] * U, LU[n] * U + U)

MF32 = 'v_mfma_f32_32x32x16_bf16'
MF16 = 'v_mfma_f32_16x16x32_bf16'

class P(list):
    def e(self, t, tok=None, obj=None): self.append(I(t, tok, obj)); return self

STAMPS = {}
def stamp(p, name, rt=False):
    if not DEBUG: return
    if opt('light', 0) and name not in ('karg', 'bX8', 'bN', 'b1c', 'b2_0', 'b3_0', 'b2_6', 'endA', 'bPopen', 'bP2', 'bP4', 'bP5', 'endP', 'end', 'rt_end'): return
    k = STAMPS.setdefault(name, len(STAMPS)); assert k < 64
    p.append(Group([I(f'{"s_memrealtime" if rt else "s_memtime"} s[84:85]'), I('s_waitcnt lgkmcnt(0)'), I(f'v_writelane_b32 v0, s84, {k}')]))
def dump(p):
    if not DEBUG: return
    stamp(p, 'rt_end', True)
    p.e(f's_lshl_b32 s84, s2, 3'); p.e(f's_add_u32 s84, s84, s{sW}'); p.e('s_lshl_b32 s84, s84, 8'); p.e(f's_add_u32 s84, s84, {DBGOFF}')
    p.e(f'v_lshlrev_b32 v31, 2, v{vLANE}')
    p.e(f'buffer_store_dword v0, v31, {srd(SWS)}, s84 offen')

def dma(p, s, voff, pre, m0base, m0const, tok):
    p.append(Group([I(f's_add_u32 m0, s{m0base}, {m0const}')] + [I(t) for t in pre] +
                   [I(f'buffer_load_dwordx4 v{voff}, {srd(s)}, s{sT0} offen lds', tok, tok)]))
def cidx(pos): return f's_bfe_u32 s{sT0}, s{sCH}, {hx((4 << 16) | (4 * pos))}'
def dma_X(p, c):
    dma(p, SX, vOX, [cidx(c), f's_lshl_b32 s{sT0}, s{sT0}, 7'], sW1K, XU(c), f'X{c}')
    dma(p, SX, vOX, [f's_add_u32 s{sT0}, s{sT0}, {64 * 896}'], sW1K, XU(c) + U, f'X{c}')
def dma_C(p, half, c):
    dma(p, SQKV, vOQ, [cidx(c), f's_mul_i32 s{sT0}, s{sT0}, {64 * 2688}', f's_add_u32 s{sT0}, s{sT0}, {896 * (1 + half)}'], sW1K, CU[c], f'C{c}')
def dma_D(p, half, c):
    if half == 0:
        dma(p, SQKV, vOQ, [cidx(c), f's_mul_i32 s{sT0}, s{sT0}, {64 * 2688}'], sW1K, DU[c], f'D{c}')
        dma(p, SREM, vOR[0], [cidx(c), f's_mul_i32 s{sT0}, s{sT0}, {64 * 3584}'], sREML, DU[c] + 4096, f'D{c}')
    else:
        dma(p, SREM, vOR[0], [cidx(c), f's_mul_i32 s{sT0}, s{sT0}, {64 * 3584}'], sREML, DU[c] + 4096, f'D{c}')
        dma(p, SREM, vOR[1], [], sREML, DU[c] + 5120, f'D{c}')
def dma_A(p, pos):
    dma(p, SG, vOA[0], [cidx(pos), f's_mul_i32 s{sT0}, s{sT0}, {64 * 3584}'], sW1K, AU[pos], f'A{pos}')
    dma(p, SU, vOA[1], [], sW1K, AU[pos] + U, f'A{pos}')
def dma_L(p, n, both=0):
    L = LINES[n]
    s, row = (SWD, L * 64) if L < 28 else (SWO, (L - 28) * 56)
    dma(p, s, vOW2, [f's_mov_b32 s{sT0}, {row * 896}'], sW1K, LU[n] * U, f'L{n}')
    if both:
        assert row + 32 * both >= 0 and LU[n] * U + 4096 * both >= -4096
        dma(p, s, vOW2, [f's_mov_b32 s{sT0}, {(row + 32 * both) * 896}'], sW1K, LU[n] * U + 4096 * both, f'L{n}')
def spread(slots, atoms, start, end):
    n = len(atoms)
    for k, x in enumerate(atoms): slots[start + (k * (end - start)) // n].append(x)
def mix(code, atoms, lead=0.0, tail=1.0):
    total = sum(x.cost for x in code); out = P(); acc = 0; k = 0; n = len(atoms)
    for x in code:
        while k < n and acc >= total * (lead + (tail - lead) * k / n): out.append(atoms[k]); k += 1
        out.append(x); acc += x.cost
    out.extend(atoms[k:])
    return out

slow_paths = []
def flag_load(p, vflag, vaddr, soff):
    p.e(f'buffer_load_dwordx2 {vr(vflag, 2)}, v{vaddr}, {srd(SWS)}, {soff} offen sc1')
def poll(p, uid, vflag, vaddr, soff):
    p.e(f'v_cmp_ne_u64 vcc, s[{sTAG}:{sTAG+1}], {vr(vflag, 2)}')
    p.e(f's_cbranch_vccnz L_slow_{uid}')
    p.e(f'L_res_{uid}:')
    q = P(); q.append(Reset())
    q.e(f'L_slow_{uid}:')
    q.e(f's_mov_b32 s{sSPIN}, 0x40000')
    q.e(f'L_spin_{uid}:')
    flag_load(q, vflag, vaddr, soff)
    q.e('s_waitcnt vmcnt(0)')
    q.e(f'v_cmp_ne_u64 vcc, s[{sTAG}:{sTAG+1}], {vr(vflag, 2)}')
    q.e(f's_cbranch_vccz L_res_{uid}')
    q.e(f's_sleep {opt("sleep", 2)}')
    q.e(f's_sub_u32 s{sSPIN}, s{sSPIN}, 1')
    q.e(f's_cmp_lg_u32 s{sSPIN}, 0')
    q.e(f's_cbranch_scc1 L_spin_{uid}')
    q.e(f's_branch L_res_{uid}')
    slow_paths.append(q)
def set_flag(p, soff, vt, off=0):
    p.append(Group([I(f'v_mov_b32 v{vt}, s{sTAG}'), I(f'v_mov_b32 v{vt+1}, s{sTAG+1}'),
        I(f's_mov_b64 exec, 1'),
        I(f'buffer_store_dwordx2 {vr(vt, 2)}, off, {srd(SWS)}, {soff} offset:{off} sc1'),
        I(f's_mov_b64 exec, -1')]))
def srd_consts(p, b, n):
    p.e(f's_mov_b32 s{b+2}, {n}'); p.e(f's_mov_b32 s{b+3}, 0x20000')

def prologue():
    p = P()
    p.e('s_cmp_ge_u32 s2, 256')
    p.e('s_cbranch_scc1 L_end')
    if DEBUG: p.e('s_memtime s[86:87]'); p.e('s_memrealtime s[88:89]')
    for b, off in ((SX, 0), (SQKV, 8), (SG, 40), (SU, 48), (SPHI, 16), (SWO, 24), (SWD, 56), (SOUT, 64), (SWS, 80)):
        p.e(f's_load_dwordx2 s[{b}:{b+1}], s[0:1], {off}')
    p.e(f's_getpc_b64 s[{sPC}:{sPC+1}]')
    p.e('L_pcbase:')
    p.e(f's_lshr_b32 s{sI}, s2, 3')
    p.e(f'v_lshrrev_b32 v18, 6, v0')
    p.e(f'v_and_b32 v19, 1, v0')
    p.e(f'v_lshl_or_b32 v19, v18, 1, v19')
    p.e(f's_lshl_b32 s{sT0}, s{sI}, 4')
    p.e(f'v_add_u32 v19, s{sT0}, v19')
    p.e(f'v_lshlrev_b32 v19, 7, v19')
    p.e(f'v_min_u32 v19, (L_codeend - L_pcbase - 4), v19')
    p.e(f'global_load_dword v30, v19, s[{sPC}:{sPC+1}]')
    p.e(f'v_readfirstlane_b32 s{sW}, v18')
    p.e(f's_and_b32 s{sXI}, s2, 7')
    p.e(f'v_and_b32 v{vLANE}, 63, v0')
    p.e(f's_and_b32 s{sT0}, s{sXI}, 1')
    p.e(f's_lshl_b32 s{sT0}, s{sT0}, 3')
    p.e(f's_and_b32 s{sT1}, s{sI}, 7')
    p.e(f's_add_u32 s{sRB}, s{sT0}, s{sT1}')
    p.e(f's_lshr_b32 s{sT2}, s{sI}, 3')
    p.e(f's_lshr_b32 s{sT0}, s{sXI}, 1')
    p.e(f's_lshl_b32 s{sT0}, s{sT0}, 2')
    p.e(f's_add_u32 s{sH}, s{sT0}, s{sT2}')
    p.e(f'v_lshrrev_b32 v20, 3, v{vLANE}')
    p.e(f's_lshl_b32 s{sT2}, s{sT2}, 1')
    p.e(f's_add_u32 s{sT1}, s{sT1}, s{sT2}')
    p.e(f'v_lshrrev_b32 v21, 4, v{vLANE}')
    p.e(f's_sub_u32 s{sT2}, s{sT1}, 7')
    p.e(f's_cmp_ge_u32 s{sT1}, 7')
    p.e(f's_cselect_b32 s{sT1}, s{sT2}, s{sT1}')
    p.e(f'v_and_b32 v22, 7, v{vLANE}')
    p.e(f's_lshl_b32 s{sT1}, s{sT1}, 2')
    p.e(f's_mov_b32 s{sT2}, 0x06543210')
    p.e(f's_mov_b32 s{sT3}, 0x00654321')
    p.e(f's_lshr_b64 s[{sT2}:{sT3}], s[{sT2}:{sT3}], s{sT1}')
    p.e(f's_mov_b32 s{sCH}, s{sT2}')
    p.e(f's_lshl_b32 s{sW1K}, s{sW}, 10')
    p.e(f's_lshl_b32 s{sT0}, s{sRB}, 7')
    p.e(f's_lshl_b32 s{sT1}, s{sW}, 3')
    p.e(f's_add_u32 s{sT0}, s{sT0}, s{sT1}')
    p.e(f'v_add_u32 v{vOX}, s{sT0}, v20')
    p.e(f'v_mul_u32_u24 v{vOX}, 896, v{vOX}')
    p.e(f's_and_b32 s{sT1}, s{sW}, 1')
    p.e(f's_lshl_b32 s{sT1}, s{sT1}, 2')
    p.e(f'v_xor_b32 v21, s{sT1}, v21')
    p.e(f'v_xor_b32 v21, v21, v22')
    p.e(f'v_lshl_add_u32 v{vOX}, v21, 4, v{vOX}')
    for b, n in ((SX, 1835008), (SQKV, 448 * 2688), (SG, 448 * 3584), (SU, 448 * 3584), (SPHI, 16 * 1568),
                 (SWO, 448 * 896), (SWD, 1792 * 896), (SOUT, 1835008), (SWS, WS_SIZE)):
        srd_consts(p, b, n)
    p.e('s_waitcnt lgkmcnt(0)')
    if DEBUG:
        STAMPS['start'] = 0; STAMPS['rt_start'] = 1
        p.e('v_writelane_b32 v0, s86, 0'); p.e('v_writelane_b32 v0, s88, 1')
    stamp(p, 'karg')
    dma_X(p, 0)
    p.e(f's_and_b32 s{sTT}, s{sW}, 3')
    p.e(f's_cmp_ge_u32 s{sW}, 4')
    p.e('s_cbranch_scc1 L_half1')
    return p

def setup(half):
    f = P()
    f.e(f'v_and_b32 v23, 31, v{vLANE}')
    f.e(f'v_lshrrev_b32 v28, 5, v{vLANE}')
    f.e(f'v_bfe_u32 v19, v{vLANE}, 1, 3')
    f.e(f'v_xor_b32 v19, v19, v28')
    f.e(f'v_lshlrev_b32 v23, 7, v23')
    f.e(f's_lshl_b32 s{sT1}, s{sTT}, 12')
    f.e(f'v_add_u32 v23, s{sT1}, v23')
    f.e(f's_mov_b32 s{sONE2}, 0x3f803f80')
    for ks in range(4):
        f.e(f'v_xor_b32 v{24 + ks}, {2 * ks}, v19')
        f.e(f'v_lshl_add_u32 v{24 + ks}, v{24 + ks}, 4, v23')
    sl = [0, 1, 3, 2, 4, 5, 7, 6, 9, 8, 10, 11, 13, 12, 14, 15]
    lo = sum(sl[k] << (4 * k) for k in range(8)); hi = sum(sl[8 + k] << (4 * k) for k in range(8))
    f.e(f's_mov_b32 s{sT2}, {hx(lo)}')
    f.e(f's_mov_b32 s{sT3}, {hx(hi)}')
    f.e(f's_lshl_b32 s{sT1}, s{sH}, 2')
    f.e(f's_lshr_b64 s[{sT2}:{sT3}], s[{sT2}:{sT3}], s{sT1}')
    f.e(f's_and_b32 s{sJ}, s{sT2}, 15')
    f.e(f's_and_b32 s{sJM}, s{sJ}, 3')
    f.e(f's_lshl_b32 s{sT1}, s{sTT}, 4')
    f.e(f'v_lshrrev_b32 v23, 2, v{vLANE}')
    f.e(f'v_add_u32 v23, s{sT1}, v23')
    f.e(f'v_mul_u32_u24 v{vOQ}, 2688, v23')
    f.e(f'v_and_b32 v23, 3, v{vLANE}')
    f.e(f'v_lshlrev_b32 v23, 4, v23')
    f.e(f'v_min_u32 v23, 40, v23')
    f.e(f's_mul_i32 s{sT1}, s{sH}, 56')
    f.e(f'v_add3_u32 v{vOQ}, v{vOQ}, v23, s{sT1}')
    if half == 0:
        f.e(f's_mov_b32 s{SREM}, s{SG}'); f.e(f's_mov_b32 s{SREM+1}, s{SG+1}')
        f.e(f's_lshl_b32 s{sREML}, s{sTT}, 10')
        f.e(f's_lshl_b32 s{sT2}, s{sTT}, 6')
        f.e(f's_mov_b32 s{sT1}, 0')
    else:
        f.append(Group([I(f's_cmp_eq_u32 s{sTT}, 0'), I(f's_cselect_b32 s{SREM}, s{SG}, s{SU}'), I(f's_cselect_b32 s{SREM+1}, s{SG+1}, s{SU+1}'),
                        I(f's_cselect_b32 s{sT1}, 0, 4'), I(f's_cselect_b32 s{sT2}, 3, s{sTT}')]))
        f.e(f's_lshl_b32 s{sREML}, s{sTT}, 11')
        f.e(f's_add_u32 s{sREML}, s{sREML}, 4096')
        f.e(f's_lshl_b32 s{sT2}, s{sT2}, 7')
        f.e(f's_sub_u32 s{sT2}, s{sT2}, 128')
    srd_consts(f, SREM, 448 * 3584)
    f.e(f's_mul_i32 s{sT3}, s{sJ}, 224')
    for n in range(1 + half):
        if n: f.e(f's_add_u32 s{sT2}, s{sT2}, 64')
        f.e(f'v_add_u32 v23, s{sT2}, v{vLANE}')
        f.e(f'v_mul_u32_u24 v28, 683, v23')
        f.e(f'v_lshrrev_b32 v28, 12, v28')
        f.e(f'v_mul_u32_u24 v29, 6, v28')
        f.e(f'v_sub_u32 v29, v23, v29')
        f.e(f'v_xor_b32 v28, s{sT1}, v28')
        f.e(f'v_mul_u32_u24 v{vOR[n]}, 3584, v28')
        f.e(f'v_lshrrev_b32 v28, 1, v29')
        f.e(f'v_add_u32 v23, 4, v28')
        f.e(f'v_cmp_gt_u32 vcc, s{sJM}, v28')
        f.e(f'v_and_b32 v29, 1, v29')
        f.e(f'v_cndmask_b32 v28, v23, v28, vcc')
        f.e(f'v_lshl_or_b32 v28, v28, 1, v29')
        f.e(f'v_lshlrev_b32 v28, 4, v28')
        f.e(f'v_add3_u32 v{vOR[n]}, v{vOR[n]}, v28, s{sT3}')
    g = f
    g.e(f's_lshl_b32 s{sT1}, s{sW}, 3')
    g.e(f'v_add_u32 v23, s{sT1}, v20')
    g.e(f'v_bfe_u32 v21, v{vLANE}, 4, 1')
    g.e(f'v_lshlrev_b32 v19, 1, v21')
    g.e(f'v_xor_b32 v19, v19, v22')
    g.e(f's_lshl_b32 s{sT2}, s{sJM}, 5')
    g.e(f's_add_u32 s{sT2}, s{sT2}, s{sT3}')
    g.e(f'v_mul_u32_u24 v{vOW2}, 3584, v23')
    g.e(f'v_add_u32 v{vOW2}, s{sT2}, v{vOW2}')
    g.e(f'v_lshl_add_u32 v{vOA[0]}, v19, 4, v{vOW2}')
    g.e(f'v_xor_b32 v19, 4, v19')
    g.e(f'v_lshl_add_u32 v{vOA[1]}, v19, 4, v{vOW2}')
    g.e(f's_mul_i32 s{sT2}, s{sI}, 37')
    g.e(f's_lshr_b32 s{sT2}, s{sT2}, 8')
    g.e(f's_mul_i32 s{sT3}, s{sT2}, 7')
    g.e(f's_sub_u32 s{sNG}, s{sI}, s{sT3}')
    g.e(f's_lshl_b32 s{sT3}, s{sXI}, 2')
    g.e(f's_add_u32 s{sT2}, s{sT2}, s{sT3}')
    g.e(f's_lshl_b32 s{sT2}, s{sT2}, 1')
    g.e(f's_add_u32 s{sT2K}, s{sT2}, {half}')
    g.e(f's_and_b32 s{sT2K}, s{sT2K}, {1 if opt("fakeH", 0) else 63}')
    if opt('fakeW', 0): g.e(f's_mov_b32 s{sNG}, 0')
    g.e(f'v_lshlrev_b32 v19, 2, v21')
    g.e(f'v_xor_b32 v19, v19, v22')
    g.e(f'v_mul_u32_u24 v23, 896, v23')
    g.e(f's_lshl_b32 s{sT2}, s{sNG}, 7')
    g.e(f'v_add_u32 v23, s{sT2}, v23')
    g.e(f'v_lshl_add_u32 v{vOW2}, v19, 4, v23')
    g.e(f'v_lshlrev_b32 v{vL16}, 4, v{vLANE}')
    g.e(f'v_cmp_lt_u32 vcc, 31, v{vLANE}')
    g.e(f'v_mov_b32 v{vK1}, {hx(f2u(-2 * math.sqrt(2 / math.pi) * LOG2E))}')
    g.e(f'v_mov_b32 v{vK2}, {hx(f2u(-2 * math.sqrt(2 / math.pi) * LOG2E * 0.044715))}')
    g.e(f'v_cndmask_b32 v{vGM}, 0, 1.0, vcc')
    g.e(f's_mov_b32 s{sC}, {hx(f2u(LOG2E))}')
    g.e(f's_mov_b32 s{sSEL0}, 0x00003f80')
    g.e(f's_mov_b32 s{sSEL1}, 0x3f800000')
    g.e(f's_lshl_b32 s{sT}, s{sRB}, 2')
    g.e(f's_add_u32 s{sT}, s{sT}, s{sTT}')
    g.e(f's_mul_i32 s{sHST}, s{sT}, {TBLK}')
    g.e(f's_add_u32 s{sHST}, s{sHST}, {HB}')
    g.e(f's_lshl_b32 s{sFLP}, s{sT}, 10')
    g.e(f's_lshl_b32 s{sT2}, s{sJ}, 3')
    g.e(f's_add_u32 s{sFLP}, s{sFLP}, s{sT2}')
    g.e(f's_add_u32 s{sFLP}, s{sFLP}, {HFL}')
    g.e(f's_mul_i32 s{sHLD}, s{sT2K}, {TBLK}')
    g.e(f's_lshl_b32 s{sT2}, s{sTT}, 10')
    g.e(f's_add_u32 s{sHLD}, s{sHLD}, s{sT2}')
    g.e(f's_add_u32 s{sHLD}, s{sHLD}, {HB}')
    g.e(f's_lshl_b32 s{sFLD}, s{sT2K}, 10')
    g.e(f's_add_u32 s{sFLD}, s{sFLD}, {HFL}')
    g.e(f's_lshr_b32 s{sFLA}, s{sTT}, 1')
    g.e(f's_add_u32 s{sFLA}, s{sFLA}, 2')
    g.e(f's_lshl_b32 s{sFLA}, s{sFLA}, 7')
    g.e(f's_add_u32 s{sFLA}, s{sFLA}, s{sFLD}')
    g.e(f's_lshl_b32 s{sKVFL}, s{sH}, 2')
    g.e(f's_add_u32 s{sKVFL}, s{sKVFL}, s{sTT}')
    g.e(f's_lshl_b32 s{sKVFL}, s{sKVFL}, 7')
    g.e(f's_add_u32 s{sKVFL}, s{sKVFL}, {KVFL}')
    g.e(f'v_bfe_u32 v23, v{vLANE}, 2, 2')
    g.e(f'v_lshrrev_b32 v20, 5, v{vLANE}')
    g.e(f'v_and_b32 v22, 3, v{vLANE}')
    g.e(f'v_lshl_add_u32 v20, v20, 3, v23')
    g.e(f'v_lshlrev_b32 v{vTQ}, 6, v20')
    g.e(f'v_lshl_add_u32 v{vTQ}, v21, 5, v{vTQ}')
    g.e(f'v_lshl_add_u32 v{vTQ}, v22, 3, v{vTQ}')
    g.e(f'v_add_u32 v{vTQ}, {CU[0] + half * 4096}, v{vTQ}')
    g.e(f's_mov_b32 s{sT2}, {DU[0] + 4096}')
    for rd in range(2):
        g.e(f'v_xor_b32 v19, {rd}, v21')
        g.e(f'v_lshl_add_u32 v19, v19, 2, v20')
        g.e(f'v_mul_u32_u24 v19, 96, v19')
        g.e(f'v_mul_u32_u24 v{vTR[rd]}, 6144, v21')
        g.e(f'v_lshl_add_u32 v19, v22, 3, v19')
        g.e(f'v_add3_u32 v{vTR[rd]}, v{vTR[rd]}, v19, s{sT2}')
    g.e(f'v_lshrrev_b32 v19, 1, v23')
    g.e(f'v_lshl_or_b32 v19, v21, 1, v19')
    g.e(f'v_lshlrev_b32 v20, 7, v20')
    g.e(f'v_lshl_add_u32 v20, v21, 13, v20')
    g.e(f'v_lshl_add_u32 v20, v22, 3, v20')
    for t in range(2):
        g.e(f'v_xor_b32 v{vTA[t]}, {2 * half + t}, v19')
        g.e(f'v_lshl_add_u32 v{vTA[t]}, v{vTA[t]}, 5, v20')
    return f

def touch(half, sT, vt):
    g = P()
    g.e(f's_lshl_b32 s{sT}, s2, 2')
    g.e(f's_add_u32 s{sT}, s{sT}, s{sTT}')
    for k, (s, nl) in enumerate(((SG, 13), (SWD, 13)) if half == 0 else ((SQKV, 10), (SU, 13), (SWO, 4))):
        g.e(f'v_min_u32 v{vt}, {nl - 1}, v{vLANE}')
        g.e(f'v_lshlrev_b32 v{vt}, 7, v{vt}')
        g.e(f's_mul_i32 s{sT0}, s{sT}, {nl * 128}')
        g.e(f'buffer_load_dword v{vt + 1}, v{vt}, {srd(s)}, s{sT0} offen'); g[-1].defs = []
    return g

def late_loads(half):
    g = P()
    g.e(f'buffer_load_dwordx2 v[28:29], off, {srd(SWS)}, 0 sc1', 'EP')
    if opt('tlb', 1):
        g.e(f's_add_u32 s{sT2}, s{sHST if half == 0 else sHLD}, {144 * 1024}')
        g.e(f'buffer_load_dword v30, off, {srd(SWS)}, s{sT2}'); g[-1].defs = []
        g.e(f's_mul_i32 s{sT2}, s{sT2K}, {32 * 896}')
        g.e(f'buffer_load_dword v30, off, {srd(SOUT)}, s{sT2}')
    return g

def x_stage(p, half):
    own = [2 * half, 2 * half + 1]; oth = [2 - 2 * half, 3 - 2 * half]
    at = P()
    WP = opt('wpos', 6)
    for c in range(1, 7):
        if c == WP + 1: at.append(Group(touch(half, sT5, 40)))
        dma_X(at, c)
    if WP == 6: at.append(Group(touch(half, sT5, 40)))
    p.extend(mix(setup(half), at, 0.0, 0.8))
    p.e('v_mov_b32 v20, 0'); p.e('v_mov_b32 v21, 0')
    stamp(p, 'setup')
    fr = [(c, ks) for c in range(7) for ks in own]
    reg = lambda c, ks: XF + 16 * c + 4 * ks
    def dots(q, c, ks):
        for k in range(4):
            r = reg(c, ks) + k
            q.e(f'v_dot2c_f32_bf16 v20, s{sONE2}, v{r}'); q.e(f'v_dot2c_f32_bf16 v21, v{r}, v{r}')
    done = 0; LA = 4
    for lo, hi, tok, cs in ((0, 8, 'X3', [0, 1]), (8, 14, 'X6', [2])):
        p.append(WaitVm(tok)); p.e('s_barrier'); stamp(p, f'bX{hi}')
        code = P()
        for k in range(lo, hi):
            c, ks = fr[k]
            if k == 8:
                for a in own: code.e(f'v_add_u32 v{24 + a}, 0x10000, v{24 + a}')
            code.e(f'ds_read_b128 {vr(reg(c, ks), 4)}, v{24 + ks} offset:{XU(c) & 0xffff}', None, f'X{c}')
            if k - LA >= done: dots(code, *fr[done]); done += 1
        if hi == 14:
            while done < hi: dots(code, *fr[done]); done += 1
        at = P()
        for c in cs: dma_C(at, half, c)
        p.extend(mix(code, at, 0.05, 0.9))
    p.e(f'v_lshrrev_b32 v22, 1, v{vL16}')
    p.e(f's_lshr_b32 s{sT1}, s{sW1K}, 1')
    p.e(f's_add_u32 s{sT1}, s{sT1}, {STAT}')
    p.e(f'v_add_u32 v22, s{sT1}, v22')
    p.e(f'ds_write_b64 v22, v[20:21]', None, 'STAT')
    p.e(f'v_xor_b32 v22, 2048, v22')
    stamp(p, 'dots')
    p.append(WaitDs()); p.e('s_barrier')
    p.e(f'ds_read_b64 v[22:23], v22', None, 'STAT')
    code = P()
    code.e('v_add_f32 v20, v20, v22'); code.e('v_add_f32 v21, v21, v23')
    code.e('v_permlane32_swap_b32 v20, v21')
    code.e('v_add_f32 v20, v20, v21')
    code.e(f'v_mul_f32 v20, {hx(f2u(1 / 448))}, v20')
    code.e('v_mov_b32 v21, v20')
    code.e('v_permlane32_swap_b32 v20, v21')
    code.e('v_fma_f32 v21, -v20, v20, v21')
    code.e('v_max_f32 v21, 0, v21')
    code.e('v_cvt_pk_bf16_f32 v20, v20, v21')
    code.e('v_and_b32 v21, 0xffff0000, v20')
    code.e('v_lshlrev_b32 v20, 16, v20')
    code.e(f'v_add_f32 v21, {hx(f2u(1e-5))}, v21')
    code.e('v_cvt_pk_bf16_f32 v21, v21, v21')
    code.e('v_and_b32 v21, 0xffff0000, v21')
    code.e('v_sqrt_f32 v21, v21')
    code.e('v_cvt_pk_bf16_f32 v21, v21, v21')
    code.e('v_and_b32 v21, 0xffff0000, v21')
    code.e(f'v_rcp_f32 v{vR}, v21')
    code.e(f'v_mul_f32 v{vCc}, v20, v{vR}')
    code.e(f'v_sub_f32 v{vCc}, 0, v{vCc}')
    RC = vr(vR, 2)
    code.e(f'v_add_u32 v24, s{sW1K}, v{vL16}')
    code.e(f'v_xor_b32 v25, 4096, v24')
    def norm(q, k):
        c, ks = fr[k]; r0 = reg(c, ks); T = 112
        for d in range(4):
            q.e(f'v_lshlrev_b32 v{T + 2 * d}, 16, v{r0 + d}')
            q.e(f'v_and_b32 v{T + 2 * d + 1}, 0xffff0000, v{r0 + d}')
        for d in range(4): q.e(f'v_pk_fma_f32 {vr(T + 2 * d, 2)}, {vr(T + 2 * d, 2)}, {RC}, {RC} op_sel:[0,0,1] op_sel_hi:[1,0,1]')
        for d in range(4): q.e(f'v_cvt_pk_bf16_f32 v{r0 + d}, v{T + 2 * d}, v{T + 2 * d + 1}')
    def wr(q, k):
        c, ks = fr[k]; q.e(f'ds_write_b128 v24, {vr(reg(c, ks), 4)} offset:{(k % 7) * U}', None, 'E1' if k < 7 else 'E2')
    for k in range(7): norm(code, k); wr(code, k)
    at = P()
    dma_C(at, half, 3); dma_C(at, half, 4)
    if half == 0:
        at.append(Group([I(f's_and_b32 s{sT1}, s{sW1K}, 1024'), I(f's_add_u32 m0, s{sT1}, {MISC}'), I(f's_mul_i32 s{sT0}, s{sH}, 1568'),
            I(f's_add_u32 s{sT0}, s{sT0}, s{sT1}'), I(f'buffer_load_dwordx4 v{vL16}, {srd(SPHI)}, s{sT0} offen lds', 'PHI', 'PHI')]))
    dma_C(at, half, 5); dma_C(at, half, 6)
    p.extend(mix(code, at, 0.05, 0.95))
    p.append(WaitDs()); p.e('s_barrier'); stamp(p, 'bE1')
    for k in range(7):
        c, ks = fr[k]; p.e(f'ds_read_b128 {vr(reg(c, ks ^ 2), 4)}, v25 offset:{k * U}', None, 'E1')
    norm(p, 7); norm(p, 8)
    p.append(WaitDs()); p.e('s_barrier')
    code = P(); wr(code, 7); wr(code, 8)
    for k in range(9, 14): norm(code, k); wr(code, k)
    at = P(); dma_D(at, half, 0); dma_D(at, half, 1); at.append(Group(late_loads(half)))
    p.extend(mix(code, at, 0.0, 0.9))
    stamp(p, 'norm')
    p.append(WaitDs()); p.append(WaitVm(['C6'])); p.e('s_barrier')
    stamp(p, 'bN')
    for k in range(7, 14):
        c, ks = fr[k]; p.e(f'ds_read_b128 {vr(reg(c, ks ^ 2), 4)}, v25 offset:{(k - 7) * U}', 'xn', 'E2')

def gelu_tile(acc, tmp, soff_code, tok, pk=False):
    q = P()
    if pk:
        T = lambda k: vr(tmp + 2 * k, 2); G = lambda k: vr(acc + 2 * k, 2); Uu = lambda k: vr(acc + 8 + 2 * k, 2)
        KK = vr(vK1, 2)
        for k in range(4): q.e(f'v_pk_mul_f32 {T(k)}, {G(k)}, {G(k)}')
        for k in range(4): q.e(f'v_pk_fma_f32 {T(k)}, {T(k)}, {KK}, {KK} op_sel:[0,1,0] op_sel_hi:[1,1,0]')
        for k in range(4): q.e(f'v_pk_mul_f32 {T(k)}, {T(k)}, {G(k)}')
        for k in range(8): q.e(f'v_exp_f32 v{tmp + k}, v{tmp + k}')
        for k in range(4): q.e(f'v_pk_mul_f32 {Uu(k)}, {G(k)}, {Uu(k)}')
        for k in range(4): q.e(f'v_pk_add_f32 {T(k)}, {T(k)}, 1.0 op_sel_hi:[1,0]')
        for k in range(8): q.e(f'v_rcp_f32 v{tmp + k}, v{tmp + k}')
        for k in range(4): q.e(f'v_pk_mul_f32 {Uu(k)}, {Uu(k)}, {T(k)}')
    else:
        for h4 in range(0, 8, 4):
            t = [tmp + k for k in range(4)]; g = [acc + h4 + k for k in range(4)]; u = [acc + 8 + h4 + k for k in range(4)]
            for k in range(4): q.e(f'v_mul_f32 v{t[k]}, v{g[k]}, v{g[k]}')
            for k in range(4): q.e(f'v_fma_f32 v{t[k]}, v{t[k]}, v{vK2}, v{vK1}')
            for k in range(4): q.e(f'v_mul_f32 v{t[k]}, v{t[k]}, v{g[k]}')
            for k in range(4): q.e(f'v_exp_f32 v{t[k]}, v{t[k]}')
            for k in range(4): q.e(f'v_mul_f32 v{u[k]}, v{g[k]}, v{u[k]}')
            for k in range(4): q.e(f'v_add_f32 v{t[k]}, 1.0, v{t[k]}')
            for k in range(4): q.e(f'v_rcp_f32 v{t[k]}, v{t[k]}')
            for k in range(4): q.e(f'v_mul_f32 v{u[k]}, v{u[k]}, v{t[k]}')
    for k in range(4): q.e(f'v_cvt_pk_bf16_f32 v{acc + k}, v{acc + 8 + 2 * k}, v{acc + 9 + 2 * k}')
    q.append(Group(list(soff_code) + [I(f'buffer_store_dwordx4 {vr(acc, 4)}, v{vL16}, {srd(SWS)}, s{sT1} offen sc1', tok)]))
    return q

def softmax_pm(Pa, E, s0):
    q = P(); a, b, c, d = s0, s0 + 1, s0 + 2, s0 + 3
    q.e(f'v_max3_f32 v{a}, v{Pa}, v{Pa+1}, v{Pa+2}')
    q.e(f'v_max3_f32 v{b}, -v{Pa}, -v{Pa+1}, -v{Pa+2}')
    q.e(f'v_max3_f32 v{c}, v{Pa+3}, v{Pa+4}, v{Pa+5}')
    q.e(f'v_max3_f32 v{d}, -v{Pa+3}, -v{Pa+4}, -v{Pa+5}')
    for k in range(6, 16, 4):
        q.e(f'v_max3_f32 v{a}, v{a}, v{Pa+k}, v{Pa+k+1}')
        q.e(f'v_max3_f32 v{b}, v{b}, -v{Pa+k}, -v{Pa+k+1}')
        if k + 3 < 16:
            q.e(f'v_max3_f32 v{c}, v{c}, v{Pa+k+2}, v{Pa+k+3}')
            q.e(f'v_max3_f32 v{d}, v{d}, -v{Pa+k+2}, -v{Pa+k+3}')
    q.e(f'v_max_f32 v{a}, v{a}, v{c}')
    q.e(f'v_max_f32 v{b}, v{b}, v{d}')
    q.e(f'v_permlane32_swap_b32 v{a}, v{b}')
    q.e(f'v_max_f32 v{a}, v{a}, v{b}')
    q.e(f'v_mul_f32 v{a}, {hx(f2u(-LOG2E))}, v{a}')
    q.e(f'v_mov_b32 v{b}, v{a}')
    q.e(f'v_permlane32_swap_b32 v{a}, v{b}')
    for k in range(16):
        q.e(f'v_fma_f32 v{E+k}, v{Pa+k}, s{sC}, v{a}')
        q.e(f'v_fma_f32 v{Pa+k}, -v{Pa+k}, s{sC}, v{b}')
        if k:
            q.e(f'v_exp_f32 v{E+k-1}, v{E+k-1}'); q.e(f'v_exp_f32 v{Pa+k-1}, v{Pa+k-1}')
    q.e(f'v_exp_f32 v{E+15}, v{E+15}'); q.e(f'v_exp_f32 v{Pa+15}, v{Pa+15}')
    q.e(f'v_add_f32 v{a}, v{E}, v{E+1}'); q.e(f'v_add_f32 v{b}, v{Pa}, v{Pa+1}')
    q.e(f'v_add_f32 v{c}, v{E+12}, v{E+13}'); q.e(f'v_add_f32 v{d}, v{Pa+12}, v{Pa+13}')
    for k in range(2, 12):
        q.e(f'v_add_f32 v{a}, v{a}, v{E+k}'); q.e(f'v_add_f32 v{b}, v{b}, v{Pa+k}')
        if k in (2, 3):
            q.e(f'v_add_f32 v{c}, v{c}, v{E+12+k}'); q.e(f'v_add_f32 v{d}, v{d}, v{Pa+12+k}')
    q.e(f'v_fmac_f32 v{a}, v{c}, v{vGM}'); q.e(f'v_fmac_f32 v{b}, v{d}, v{vGM}')
    q.e(f'v_permlane32_swap_b32 v{a}, v{b}')
    q.e(f'v_add_f32 v{a}, v{a}, v{b}')
    q.e(f'v_rcp_f32 v{a}, v{a}')
    q.e(f'v_mov_b32 v{b}, v{a}')
    q.e(f'v_permlane32_swap_b32 v{a}, v{b}')
    q.e(f'v_mul_f32 v{c}, v{a}, v{vGM}'); q.e(f'v_mul_f32 v{d}, v{b}, v{vGM}')
    for k in range(0, 16, 2):
        ra, rb = (a, b) if k < 12 else (c, d)
        q.e(f'v_mul_f32 v{E+k}, v{E+k}, v{ra}'); q.e(f'v_mul_f32 v{E+k+1}, v{E+k+1}, v{ra}')
        q.e(f'v_mul_f32 v{Pa+k}, v{Pa+k}, v{rb}'); q.e(f'v_mul_f32 v{Pa+k+1}, v{Pa+k+1}, v{rb}')
        q.e(f'v_cvt_pk_bf16_f32 v{E + k // 2}, v{E+k}, v{E+k+1}')
        q.e(f'v_cvt_pk_bf16_f32 v{Pa + k // 2}, v{Pa+k}, v{Pa+k+1}')
    return q

vFL16, vFL32 = 19, 4

def hsoff(texts):
    return [I(t) for t in texts] + [I(f's_lshl_b32 s{sT1}, s{sT1}, 10'), I(f's_add_u32 s{sT1}, s{sT1}, s{sHST}')]
def rem_soff(r):
    return hsoff([f's_cmp_gt_u32 s{sJM}, {r}', f's_cselect_b32 s{sT1}, {r}, {r + 4}', f's_mul_i32 s{sT2}, s{sJ}, 7', f's_add_u32 s{sT1}, s{sT1}, s{sT2}'])

def phase1_main(p, half):
    own = [2 * half, 2 * half + 1]; oth = [2 - 2 * half, 3 - 2 * half]
    mf = []
    fr = [(c, ks) for c in range(7) for ks in own]
    order1 = fr[:7] + [(c, ks ^ 2) for c, ks in fr[:7]] + fr[7:10] + [(c, ks ^ 2) for c, ks in fr[7:10]] + fr[10:] + [(c, ks ^ 2) for c, ks in fr[10:]]
    for n, (c, ks) in enumerate(order1):
        base = CU[0] if c < 5 else CU[5]
        pre = [I(f'v_add_u32 v{vTQ}, {hx(CU[5] - CU[0])}, v{vTQ}')] if n == 20 else []
        mf.append(dict(acc=ACC1, xf=4 * c + ks, rd=[(vTQ, CU[c] - base + ks * 1024 + r * 256, f'C{c}') for r in range(2)], pre=pre, first=n == 0))
    n2 = len(mf)
    for s in range(7):
        for ks in range(4):
            for t in range(2):
                pre = []
                isq = half == 0 and t == 0
                if ks == 0:
                    if isq: pre.append(I(f'v_add_u32 v{vTQ}, {hx(DU[s] - (DU[s-1] if s else CU[5]))}, v{vTQ}'))
                    elif s and (half == 0 or t == 0):
                        for a in vTR: pre.append(I(f'v_add_u32 v{a}, {hx(DU[s] - DU[s-1])}, v{a}'))
                if isq: rd = [(vTQ, ks * 1024 + r * 256, f'D{s}') for r in range(2)]
                else: rd = [(vTR[r], ks * 1536 + (0 if half == 0 else 1 + t) * 32, f'D{s}') for r in range(2)]
                mf.append(dict(acc=ACC2 + 16 * t, xf=4 * s + ks, rd=rd, pre=pre, first=s == 0 and ks == 0))
    n3 = len(mf)
    for s in range(7):
        for ks in range(4):
            for t in range(2):
                pre = [I(f'v_add_u32 v{vTA[t]}, {hx(AU[s] - (AU[s-1] if s else 0))}, v{vTA[t]}')] if ks == 0 else []
                mf.append(dict(acc=ACC3 + 16 * t, xf=4 * s + ks, rd=[(vTA[t], ks * 2048 + r * 512, f'A{s}') for r in range(2)], pre=pre, first=s == 0 and ks == 0))
    NB = len(AFR); D = NB - 1
    def reads(n):
        q = list(mf[n]['pre']); b = AFR[n % NB]
        for r, (a, off, obj) in enumerate(mf[n]['rd']):
            assert 0 <= off < 65536
            q.append(I(f'ds_read_b64_tr_b16 {vr(b + 2 * r, 2)}, v{a} offset:{off}', None, obj))
        return q
    for n in range(D): p.extend(reads(n))
    slots = []
    for n, m in enumerate(mf):
        acc = m['acc']
        sl = [I(f'{MF32} {vr(acc, 16)}, {vr(AFR[n % NB], 4)}, {vr(XF + 4 * m["xf"], 4)}, {"0" if m["first"] else vr(acc, 16)}')]
        if n + D < len(mf): sl += reads(n + D)
        slots.append(sl)
    def bar(n, tokwait, after, end, dswait=None, name=None):
        q = P()
        if dswait: q.append(WaitDs(dswait))
        if tokwait: q.append(WaitVm(tokwait))
        q.e('s_nop 0' if opt('nobar', 0) and n >= 28 else 's_barrier'); stamp(q, name or f'b{n}')
        if opt('nodma', 0) and n >= 28: after = None
        if dswait: slots[n].extend(q)
        else: slots[n][1:1] = q
        if after: spread(slots, after, n + 1 + (half if end - n > 3 else 0), end)
    q = P(); dma_D(q, half, 2); dma_D(q, half, 3)
    bar(4, None, q, 22, dswait='xn', name='b1a')
    q = P(); dma_D(q, half, 4)
    bar(22, 'D0', q, n2 + 2, name='b1c')
    q = P()
    q.e(f'v_readfirstlane_b32 s{sTAG}, v28'); q.e(f'v_readfirstlane_b32 s{sTAG+1}, v29')
    q.e(f's_add_u32 s{sTAG}, s{sTAG}, 0x9e3779b9'); q.e(f's_add_u32 s{sTAG+1}, s{sTAG+1}, 0x7f4a7c15')
    slots[23].extend(q)
    b2 = lambda s: n2 + 8 * s + 2
    b3 = lambda s: n3 + 8 * s + 2
    KB = opt('kb', 4)
    K = V = ACC1; Q = ACC2; T8 = 24
    if half == 0:
        f = P()
        f.e(f'v_bfe_u32 v24, v{vLANE}, 2, 2')
        f.e(f'v_lshrrev_b32 v25, 5, v{vLANE}')
        f.e(f'v_bfe_u32 v26, v{vLANE}, 4, 1')
        f.e(f'v_and_b32 v27, 3, v{vLANE}')
        f.e(f'v_lshl_or_b32 v26, v26, 2, v27')
        f.e(f'v_cmp_lt_u32 vcc, 5, v26')
        f.e(f'v_subrev_u32 v27, 1, v26')
        f.e(f'v_mul_u32_u24 v22, 56, v24')
        f.e(f'v_cndmask_b32 v26, v26, v27, vcc')
        f.e(f'v_lshl_add_u32 v22, v26, 3, v22')
        f.e(f'v_add_u32 v22, {MISC}, v22')
        f.e(f'v_mul_u32_u24 v23, 224, v25')
        f.e(f'v_add_u32 v23, v22, v23')
        f.e(f'ds_read_b64_tr_b16 {vr(WPHI, 2)}, v23', None, 'PHI')
        f.e(f'ds_read_b64_tr_b16 {vr(WPHI + 2, 2)}, v23 offset:{8 * 56}', None, 'PHI')
        f.e(f'ds_read_b64_tr_b16 {vr(WPHI + 4, 2)}, v23 offset:{16 * 56}', None, 'PHI')
        f.e(f'ds_read_b64_tr_b16 {vr(WPHI + 6, 2)}, v22 offset:{24 * 56}', None, 'PHI')
        f.e(f'v_cmp_lt_u32 vcc, 31, v{vLANE}')
        f.e(f'v_and_b32 v24, 31, v{vLANE}')
        f.e(f's_lshl_b32 s{sT1}, s{sTT}, 5')
        f.e(f'v_add_u32 v24, s{sT1}, v24')
        f.e(f'v_and_b32 v26, 9, v{vLANE}')
        f.e(f'v_bfe_u32 v27, v{vLANE}, 1, 1')
        f.e(f'v_lshl_or_b32 v26, v27, 2, v26')
        f.e(f'v_bfe_u32 v27, v{vLANE}, 2, 1')
        f.e(f'v_lshl_or_b32 v26, v27, 1, v26')
        f.e(f'v_xor_b32 v4, v26, v25')
        f.e(f'v_lshlrev_b32 v5, 7, v24')
        f.e(f'v_add_u32 v5, {TRK}, v5')
        f.e(f'v_cndmask_b32 v{WPHI + 6}, 0, v{WPHI + 6}, vcc')
        f.e(f'v_cndmask_b32 v{WPHI + 7}, 0, v{WPHI + 7}, vcc')
        interleave(slots, f, 6, n2)
        f = P()
        for k in range(8): f.e(f'v_cvt_pk_bf16_f32 v{T8 + k}, v{K + 2 * k}, v{K + 2 * k + 1}')
        f.e(f'{MF32} {vr(ACC3, 16)}, {vr(WPHI, 4)}, {vr(T8, 4)}, 0')
        f.e(f'{MF32} {vr(ACC3, 16)}, {vr(WPHI + 4, 4)}, {vr(T8 + 4, 4)}, {vr(ACC3, 16)}')
        f.append(Gap(2))
        f.extend(softmax_pm(ACC3, K, 20))
        for ft, src in ((0, K), (1, ACC3)):
            for i in range(4):
                f.e(f'v_xor_b32 v19, {8 * ft + 2 * i}, v4')
                f.e(f'v_lshl_add_u32 v19, v19, 3, v5')
                f.e(f'ds_write_b64 v19, {vr(src + 2 * i, 2)}', 'tr', 'TRK')
        interleave(slots, f, n2 + 2, b2(KB) + 1)
        f = gelu_tile(ACC2 + 16, 20, rem_soff(0), 'HR')
        for k in range(8): f.e(f'v_cvt_pk_bf16_f32 v{T8 + k}, v{Q + 2 * k}, v{Q + 2 * k + 1}')
        f.e(f'{MF32} {vr(K, 16)}, {vr(WPHI, 4)}, {vr(T8, 4)}, 0')
        f.e(f'{MF32} {vr(K, 16)}, {vr(WPHI + 4, 4)}, {vr(T8 + 4, 4)}, {vr(K, 16)}')
        f.append(Gap(2))
        f.extend(softmax_pm(K, Q, 20))
        interleave(slots, f, n3 + 2, b3(opt('ob', 5)))
        q = P(); q.append(WaitVm('HR')); set_flag(q, f's{sFLP}', 4, 0)
        slots[n3 + opt('rf0', 30)].extend(q)
        KVF, NUM, PHQ = [72, 76, 88, 92], 96, [80, 84, 64, 68]
        f = P()
        f.e(f'v_add_u32 v20, {KVBUF}, v{vL16}')
        for s in range(4): f.e(f'ds_read_b128 {vr(KVF[s], 4)}, v20 offset:{s * 1024}', None, 'KVBUF')
        f.append(Gap(2))
        for s in range(4): f.e(f'{MF32} {vr(NUM, 16)}, {vr(KVF[s], 4)}, {vr(PHQ[s], 4)}, {"0" if s == 0 else vr(NUM, 16)}')
        OB = b3(opt('ob', 5))
        interleave(slots, f, OB + 1, OB + 4)
        f = P(); OP = 72
        f.e(f'v_add_f32 v20, {hx(f2u(1e-6))}, v{NUM + 12}')
        f.e(f'v_rcp_f32 v20, v20')
        f.e(f'v_mov_b32 v21, v20')
        f.e(f'v_permlane32_swap_b32 v20, v21')
        f.e(f'v_mul_f32 v21, v20, v{vGM}')
        for k in range(16): f.e(f'v_mul_f32 v{NUM + k}, v{NUM + k}, v{20 if k < 12 else 21}')
        for k in range(8): f.e(f'v_cvt_pk_bf16_f32 v{OP + k}, v{NUM + 2 * k}, v{NUM + 2 * k + 1}')
        f.append(Group(hsoff([f's_lshl_b32 s{sT1}, s{sH}, 1', f's_add_u32 s{sT1}, s{sT1}, 112']) +
            [I(f'buffer_store_dwordx4 {vr(OP, 4)}, v{vL16}, {srd(SWS)}, s{sT1} offen sc1', 'O'),
             I(f'buffer_store_dwordx4 {vr(OP + 4, 4)}, v{vL16}, {srd(SWS)}, s{sT1} offen offset:1024 sc1', 'O')]))
        interleave(slots, f, OB + 6, min(OB + 12, len(slots)))
    else:
        f = P()
        f.e(f'v_bfe_u32 v24, v{vLANE}, 2, 2')
        f.e(f'v_lshrrev_b32 v25, 4, v{vLANE}')
        f.e(f'v_lshl_add_u32 v24, v25, 3, v24')
        f.e(f'v_and_b32 v25, 3, v{vLANE}')
        f.e(f'v_and_b32 v26, 9, v24')
        f.e(f'v_bfe_u32 v27, v24, 1, 1')
        f.e(f'v_lshl_or_b32 v26, v27, 2, v26')
        f.e(f's_lshl_b32 s{sT1}, s{sTT}, 2')
        f.e(f'v_or_b32 v27, s{sT1}, v25')
        f.e(f'v_xor_b32 v26, v26, v27')
        f.e(f'v_lshlrev_b32 v27, 7, v24')
        f.e(f'v_add_u32 v27, {TRK}, v27')
        f.e(f'v_lshl_add_u32 v4, v26, 3, v27')
        f.e(f'v_xor_b32 v5, 16, v4')
        f.e(f'v_bfe_u32 v26, v24, 1, 3')
        f.e(f'v_xor_b32 v26, v26, v25')
        f.e(f'v_lshlrev_b32 v27, 6, v24')
        f.e(f'v_add_u32 v27, {TRV}, v27')
        f.e(f'v_lshl_add_u32 v19, v26, 3, v27')
        f.e(f'v_xor_b32 v20, 32, v19')
        f.e(f'v_xor_b32 v21, 16, v19')
        f.e(f'v_xor_b32 v22, 16, v20')
        f.e(f'v_bfe_u32 v24, v{vLANE}, 4, 1')
        f.e(f'v_and_b32 v25, 15, v{vLANE}')
        f.e(f'v_lshl_or_b32 v24, v24, 5, v25')
        f.e(f'v_lshrrev_b32 v25, 5, v{vLANE}')
        f.e(f'v_lshlrev_b32 v26, 3, v25')
        f.e(f'v_lshl_or_b32 v23, v24, 4, v26')
        f.e(f's_lshl_b32 s{sT4}, s{sH}, 4')
        f.e(f's_add_u32 s{sT4}, s{sT4}, s{sRB}')
        f.e(f's_lshl_b32 s{sT4}, s{sT4}, 2')
        f.e(f's_add_u32 s{sT4}, s{sT4}, s{sTT}')
        f.e(f's_lshl_b32 s{sT4}, s{sT4}, 10')
        f.e(f's_add_u32 s{sT4}, s{sT4}, {KVP}')
        f.e(f's_lshl_b32 s{sT5}, s{sRB}, 3')
        f.e(f's_add_u32 s{sT5}, s{sT5}, s{sKVFL}')
        f.e(f'v_cmp_lt_u32 vcc, 31, v{vLANE}')
        f.e(f'v_and_b32 v24, 31, v{vLANE}')
        f.e(f's_lshl_b32 s{sT1}, s{sTT}, 5')
        f.e(f'v_add_u32 v24, s{sT1}, v24')
        f.e(f'v_bfe_u32 v26, v{vLANE}, 1, 3')
        f.e(f'v_xor_b32 v26, v26, v25')
        f.e(f'v_lshlrev_b32 v27, 6, v24')
        f.e(f'v_add_u32 v27, {TRV}, v27')
        interleave(slots, f, 6, n2)
        f = P()
        f.e(f'v_cndmask_b32 v{V + 12}, 1.0, v{V + 12}, vcc')
        for k in range(8): f.e(f'v_cvt_pk_bf16_f32 v{V + k}, v{V + 2 * k}, v{V + 2 * k + 1}')
        for i in range(4):
            f.e(f'v_xor_b32 v24, {2 * i}, v26')
            f.e(f'v_lshl_add_u32 v24, v24, 3, v27')
            f.e(f'ds_write_b64 v24, {vr(V + 2 * i, 2)}', 'tr', 'TRV')
        interleave(slots, f, n2 + 2, n2 + 10)
        f = P()
        KA, KB0, KB1, KD = ACC3, ACC3 + 4, ACC3 + 8, ACC3 + 24
        def kvrd(kk, o):
            f.e(f'ds_read_b64_tr_b16 {vr(KA + o, 2)}, v4 offset:{kk * 4096}', None, 'TRK')
            f.e(f'ds_read_b64_tr_b16 {vr(KA + o + 2, 2)}, v5 offset:{kk * 4096 + 512}', None, 'TRK')
            f.e(f'ds_read_b64_tr_b16 {vr(KB0 + o, 2)}, v19 offset:{kk * 2048}', None, 'TRV')
            f.e(f'ds_read_b64_tr_b16 {vr(KB0 + o + 2, 2)}, v21 offset:{kk * 2048 + 256}', None, 'TRV')
            f.e(f'ds_read_b64_tr_b16 {vr(KB1 + o, 2)}, v20 offset:{kk * 2048}', None, 'TRV')
            f.e(f'ds_read_b64_tr_b16 {vr(KB1 + o + 2, 2)}, v22 offset:{kk * 2048 + 256}', None, 'TRV')
        kvrd(0, 0); kvrd(1, 12); f.append(Gap(1))
        for kk in range(4):
            o = 12 * (kk & 1)
            f.e(f'{MF16} {vr(KD, 4)}, {vr(KA + o, 4)}, {vr(KB0 + o, 4)}, {"0" if kk == 0 else vr(KD, 4)}')
            f.e(f'{MF16} {vr(KD + 4, 4)}, {vr(KA + o, 4)}, {vr(KB1 + o, 4)}, {"0" if kk == 0 else vr(KD + 4, 4)}')
            if kk < 2: kvrd(kk + 2, o)
            f.append(Gap(1))
        f.append(Gap(1))
        for k in range(4): f.e(f'v_cvt_pk_bf16_f32 v{24 + k}, v{KD + 2 * k}, v{KD + 2 * k + 1}')
        f.e(f'buffer_store_dwordx2 v[24:25], v23, {srd(SWS)}, s{sT4} offen sc1', 'KV')
        f.e(f'buffer_store_dwordx2 v[26:27], v23, {srd(SWS)}, s{sT4} offen offset:256 sc1', 'KV')
        interleave(slots, f, b2(KB) + 1, b2(KB) + 8)
        q = P(); stamp(q, 'preKVack'); q.append(WaitVm('KV')); stamp(q, 'KVack'); set_flag(q, f's{sT5}', 24)
        slots[b2(KB) + 8 + opt('kvf', 8)].extend(q)
        GA, S = 64, 248
        f = P()
        f.e(f'v_and_b32 v{vFL16}, 15, v{vLANE}'); f.e(f'v_lshlrev_b32 v{vFL16}, 3, v{vFL16}')
        f.e(f's_lshl_b32 s{sT4}, s{sH}, 16'); f.e(f's_lshl_b32 s{sT2}, s{sTT}, 10')
        f.e(f's_add_u32 s{sT4}, s{sT4}, s{sT2}'); f.e(f's_add_u32 s{sT4}, s{sT4}, {KVP}')
        for k in range(8): f.e(f'v_mov_b32 v{S + k}, 0')
        slots[n3].extend(f)
        KP = n3 + opt('kp', 18)
        interleave(slots, gelu_tile(ACC2, 20, rem_soff(1), 'HR') + gelu_tile(ACC2 + 16, 20, rem_soff(2), 'HR'), n3 + 2, KP)
        q = P(); flag_load(q, 28, vFL16, f's{sKVFL}'); slots[KP - 6].extend(q)
        q = P(); stamp(q, 'prekv'); poll(q, 'kv', 28, vFL16, f's{sKVFL}'); stamp(q, 'kvpoll')
        slots[KP].extend(q)
        gdst = lambda e: GA + 4 * (e % 12)
        gl = lambda e: Group([I(f'buffer_load_dwordx4 {vr(gdst(e), 4)}, v{vL16}, {srd(SWS)}, s{sT4} offen sc1'), I(f's_add_u32 s{sT4}, s{sT4}, 4096')])
        spread(slots, [gl(e) for e in range(12)], KP, KP + 8)
        def dots(e):
            q = []
            for k in range(4):
                q.append(I(f'v_dot2c_f32_bf16 v{S + 2 * k}, s{sSEL0}, v{gdst(e) + k}'))
                q.append(I(f'v_dot2c_f32_bf16 v{S + 2 * k + 1}, s{sSEL1}, v{gdst(e) + k}'))
            return q
        G1 = KP + opt('g1', 12); G2 = b3(opt('ob', 5))
        q = P()
        for e in range(4): q.extend(dots(e)); q.append(gl(e + 12))
        slots[G1].extend(q)
        q = P(); q.append(WaitVm('HR')); set_flag(q, f's{sFLP}', 24, 128)
        slots[KP + opt('rf1', 10)].extend(q)
        for hb in range(2):
            q = P()
            for e in range(4 + 4 * hb, 8 + 4 * hb): q.extend(dots(e))
            slots[G1 + 3 + 3 * hb].extend(q)
        q = P()
        for e in range(12, 16): q.extend(dots(e))
        for k in range(4): q.e(f'v_cvt_pk_bf16_f32 v{S + k}, v{S + 2 * k}, v{S + 2 * k + 1}')
        q.e(f's_lshl_b32 s{sT2}, s{sTT}, 10'); q.e(f's_add_u32 s{sT2}, s{sT2}, {KVBUF}')
        q.e(f'v_add_u32 v20, s{sT2}, v{vL16}')
        q.e(f'ds_write_b128 v20, {vr(S, 4)}', 'kvb', 'KVBUF')
        slots[G2 - 1].extend(q)
    for s in range(7):
        q = P()
        if s < 2: dma_D(q, half, s + 5)
        if s >= 1: dma_A(q, s - 1)
        if half == 0:
            if s == 5: dma_L(q, 0, 1); dma_L(q, 1, 1)
            if s == KB + 2:
                for n in (2, 3, 4): dma_L(q, n, 1)
        bar(b2(s), f'D{s+1}' if s < 6 else 'A0', q, b2(s + 1), dswait='tr' if s == KB else None, name=f'b2_{s}')
    l3 = {1: [5, 6], 2: [7, 8], 3: [11, 12], 4: [13, 14], 5: [15, 16], 6: [9, 10]}
    for s in range(7):
        q = P()
        if s == 0: dma_A(q, 6)
        if half == 0:
            if s == KB + 2 - 7:
                for n in (2, 3, 4): dma_L(q, n, 1)
            for n in l3.get(s, []): dma_L(q, n, 1)
        bar(b3(s), f'A{s+1}' if s < 6 else None, q, min(b3(s + 1), len(slots)), dswait='kvb' if s == opt('ob', 5) else None, name=f'b3_{s}')
    q = P()
    if half == 0: q.e(f'v_and_b32 v{vFL16}, 15, v{vLANE}'); q.e(f'v_lshlrev_b32 v{vFL16}, 3, v{vFL16}')
    q.e(f'v_and_b32 v{vFL32}, 31, v{vLANE}'); q.e(f'v_lshlrev_b32 v{vFL32}, 3, v{vFL32}')
    flag_load(q, 26, vFL32, f's{sFLD}')
    slots[len(slots) - 4].extend(q)
    if opt('nofill', 0):
        for n in range(n2, len(slots)):
            slots[n] = [x for x in slots[n] if not (isinstance(x, Ins) and x.kind in ('valu', 'trans', 'perm', 'dot') and not x.text.startswith(('v_add_u32', 'v_xor', 'v_lshl', 'v_and', 'v_cmp', 'v_readf', 'v_mov')))]
    for sl in slots: p.extend(sl)

BR = [XF + 4 * k for k in range(27)]
XR = XF + 108
def bload(k):
    return Group([I(f's_add_u32 s{sT1}, s{sHLD}, {LINES[k] * 4096}'),
                  I(f'buffer_load_dwordx4 {vr(BR[k % 27], 4)}, v{vL16}, {srd(SWS)}, s{sT1} offen sc1')])

def phase1_tail(p, half):
    stamp(p, 'endA')
    if half == 0: p.append(WaitVm('O')); set_flag(p, f's{sFLP}', 24, 512)
    poll(p, f'R{half}', 26, vFL32, f's{sFLD}')
    stamp(p, 'Rpoll')
    if half == 1 and opt('tprio', 1): p.e('s_setprio 1')
    code = P()
    for t in range(2):
        so = hsoff([f's_mul_i32 s{sT1}, s{sJ}, 7', f's_add_u32 s{sT1}, s{sT1}, s{sJM}', f's_add_u32 s{sT1}, s{sT1}, {2 * half + t}'])
        code.extend(gelu_tile(ACC3 + 16 * t, 112, so, 'HA', pk=True))
    NR1 = opt('nr1', 8)
    p.extend(mix(code, [bload(k) for k in range(NR1)], 0.0, 0.95))
    if half == 1 and opt('tprio', 1): p.e('s_setprio 0')
    stamp(p, 'gelu')
    p.e(f's_cmp_ge_u32 s{sI}, 28')
    p.e(f's_cbranch_scc1 L_exit{half}')
    q = P(); q.append(Reset()); q.e(f'L_exit{half}:')
    q.e('s_waitcnt vmcnt(0)'); set_flag(q, f's{sFLP}', 24, 256 + 128 * half)
    q.e('s_endpgm')
    slow_paths.append(q)
    return NR1

def phase2(p, half, NR1):
    AY, AS = 96, ACC3
    AR = [64, 68, 80, 84, 240, 244, 248, 252]
    vW = [[8, 9, 10], [11, 12, 14]]
    vO = [[15, 16], [17, 18]]
    vOUT = 20
    code = P()
    code.e(f'v_bfe_u32 v24, v{vLANE}, 2, 2')
    code.e(f'v_bfe_u32 v26, v{vLANE}, 4, 1')
    code.e(f'v_and_b32 v27, 2, v24')
    code.e(f'v_xor_b32 v26, v26, v27')
    code.e(f'v_and_b32 v27, 3, v{vLANE}')
    code.e(f'v_lshlrev_b32 v27, 3, v27')
    code.e(f'v_lshl_add_u32 v27, v24, 7, v27')
    code.e(f'v_lshl_add_u32 v27, v26, 5, v27')
    code.e(f'v_lshrrev_b32 v25, 5, v{vLANE}')
    code.e(f'v_lshl_add_u32 v26, v25, 9, v27')
    code.e(f's_lshl_b32 s{sT2}, s{sTT}, 11')
    code.e(f'v_add_u32 v{vW[0][0]}, s{sT2}, v26')
    code.e(f'v_xor_b32 v{vW[1][0]}, 64, v{vW[0][0]}')
    for nt in range(2):
        code.e(f'v_add_u32 v{vW[nt][1]}, 0x10000, v{vW[nt][0]}')
        code.e(f'v_add_u32 v{vW[nt][2]}, 0x20000, v{vW[nt][0]}')
    p.extend(mix(code, [bload(k) for k in range(NR1, min(12, NR1 + 2))]))
    ks = []
    for n in range(36):
        u = LU[n]; isO = 12 <= n < 20
        if not isO: rd = [[(vW[nt][u // 8], (u % 8) * U + r * 1024) for r in range(2)] for nt in range(2)]
        else: rd = [[(vO[nt][r], u * U - OW) for r in range(2)] for nt in range(2)]
        ks.append(dict(acc=AS if isO else AY, first=n in (0, 12), rd=rd))
    NB = len(AR); D = NB - 2
    mf = [(k, nt) for k in range(36) for nt in range(2)]
    def reads(n):
        k, nt = mf[n]; b = AR[n % NB]
        return [I(f'ds_read_b64_tr_b16 {vr(b + 2 * r, 2)}, v{a} offset:{off}', None, f'L{k}') for r, (a, off) in enumerate(ks[k]['rd'][nt])]
    p.append(WaitVm(['L0', 'L1', 'L2', 'L3'])); p.e('s_barrier')
    stamp(p, 'bPopen')
    for n in range(D): p.extend(reads(n))
    slots = []
    for n, (k, nt) in enumerate(mf):
        acc = ks[k]['acc'] + 16 * nt
        sl = [I(f'{MF32} {vr(acc, 16)}, {vr(AR[n % NB], 4)}, {vr(BR[k % 27], 4)}, {"0" if ks[k]["first"] else vr(acc, 16)}')]
        if n + D < len(mf): sl += reads(n + D)
        slots.append(sl)
    q = P(); q.extend(bload(k) for k in range(min(12, NR1 + 2), 12)); dma_L(q, 17); dma_L(q, 18)
    spread(slots, q, 0, 6)
    q = P()
    q.e(f's_lshr_b32 s{sT2}, s{sTT}, 1')
    q.e(f's_mul_i32 s{sT2}, s{sT2}, {28 * 128}')
    q.e(f's_and_b32 s{sT3}, s{sTT}, 1')
    q.append(Group([I(f's_cmp_eq_u32 s{sT3}, 0'), I(f's_cselect_b64 vcc, -1, 0'), I(f'v_cndmask_b32 v27, v27, v26, vcc')]))
    q.e(f's_lshl_b32 s{sT3}, s{sT3}, 11')
    q.e(f's_add_u32 s{sT2}, s{sT2}, s{sT3}')
    q.e(f's_add_u32 s{sT2}, s{sT2}, {OW}')
    q.e(f'v_add_u32 v{vO[0][0]}, s{sT2}, v26')
    q.e(f's_add_u32 s{sT2}, s{sT2}, 1024')
    q.e(f'v_add_u32 v{vO[0][1]}, s{sT2}, v27')
    for r in range(2): q.e(f'v_xor_b32 v{vO[1][r]}, 64, v{vO[0][r]}')
    q.e(f'v_and_b32 v24, 31, v{vLANE}')
    q.e(f's_lshl_b32 s{sT2}, s{sT2K}, 5')
    q.e(f'v_add_u32 v24, s{sT2}, v24')
    q.e(f'v_mul_u32_u24 v24, 896, v24')
    q.e(f'v_lshl_add_u32 v24, v25, 4, v24')
    q.e(f's_lshl_b32 s{sT2}, s{sNG}, 7')
    q.e(f's_lshl_b32 s{sT3}, s{sTT}, 5')
    q.e(f's_add_u32 s{sT2}, s{sT2}, s{sT3}')
    q.e(f'v_add_u32 v{vOUT}, s{sT2}, v24')
    q.e(f's_add_u32 s{sT4}, s{sFLD}, 512')
    interleave(slots, q, 0, 2)
    LS = opt('ls', 1)
    for s in range(8):
        q = P()
        q.append(WaitVm([f'L{4 * (s + 1) + i}' for i in range(4)]))
        if s == 7: q.append(WaitDs('red'))
        q.e('s_barrier'); stamp(q, f'bP{s}')
        slots[8 * s + 1][1:1] = q
    q = P()
    for n in range(19, 36): dma_L(q, n)
    lstart = {19: 10, 20: 12, 21: 14, 22: 16}
    for n in range(19, 36):
        lo = 8 * ((n - 15) // 4) + 2
        want = opt('l0', 12) + (n - 19) * opt('lstep', 5) // 2
        pos = min(max(lo, want), 8 * (n // 4 - 1) - opt('llead', 6))
        assert pos >= lo, n
        slots[pos].append(q[n - 19])
    AFP = opt('afp', 2); OPOS = opt('opos', 6); A1 = opt('a1', 22)
    q = P(); q.append(WaitVm('HA')); set_flag(q, f's{sFLP}', 24, 256 + 128 * half); stamp(q, 'Aflag')
    slots[AFP].extend(q)
    q = P(); flag_load(q, 28, vFL16, f's{sT4}'); slots[max(2, OPOS - 4)].extend(q)
    q = P(); stamp(q, 'preOpoll'); poll(q, f'O{half}', 28, vFL16, f's{sT4}'); stamp(q, 'Opoll')
    slots[OPOS].extend(q)
    spread(slots, [bload(k) for k in range(12, 20)], OPOS, OPOS + opt('ospan', 12))
    q = P(); flag_load(q, 30, vFL16, f's{sFLA}'); slots[A1 - opt('alead', 6)].extend(q)
    q = P(); stamp(q, 'preApoll'); poll(q, f'A{half}', 30, vFL16, f's{sFLA}'); stamp(q, 'Apoll')
    slots[A1].extend(q)
    spread(slots, [bload(k) for k in range(20, 36)], A1, A1 + opt('aspan', 30))
    q = P(); q.e(f'buffer_load_dwordx4 {vr(XR, 4)}, v{vOUT}, {srd(SX)}, 0 offen'); slots[54].extend(q)
    def red_addr(q, base, dstw, dstr):
        q.e(f's_mul_i32 s{sT2}, s{sTT}, 6144')
        q.e(f's_add_u32 s{sT2}, s{sT2}, {base}')
        q.e(f'v_add_u32 v{dstr}, s{sT2}, v{vL16}')
        q.e(f'v_add_u32 v{dstw}, {base}, v{vL16}')
    def red_write(q, acc, own, aw, uid, obj):
        for kq in range(4):
            if kq < 3:
                q.e(f's_cmp_lg_u32 s{sTT}, {kq}'); q.e(f's_cbranch_scc1 L_red{uid}_{kq + 1}')
            for part in range(4):
                if part == kq: continue
                slot = kq if kq < part else kq - 1
                for hh in range(2):
                    q.e(f'ds_write_b128 v{aw}, {vr(acc + 8 * part + 4 * hh, 4)} offset:{part * 6144 + slot * 2048 + hh * 1024}', 'red' if kq == 0 else 'NOTRACK', obj)
            for k in range(0, 8, 2): q.e(f'v_mov_b64 {vr(own + k, 2)}, {vr(acc + 8 * kq + k, 2)}')
            if kq < 3: q.e(f's_branch L_red{uid}_4'); q.e(f'L_red{uid}_{kq + 1}:')
        q.e(f'L_red{uid}_4:')
    SO, YO, SR, YR, G, XU_ = 72, 88, ACC3, 168, 192, 200
    q = P(); red_addr(q, REDS[half], 24, 25); red_write(q, AS, SO, 24, f'S{half}', f'REDS{half}'); slots[51].extend(q)
    q = P()
    for src in range(3):
        for hh in range(2): q.e(f'ds_read_b128 {vr(SR + 8 * src + 4 * hh, 4)}, v25 offset:{src * 2048 + hh * 1024}', None, f'REDS{half}')
    red_addr(q, REDY[half], 24, 26)
    slots[58].extend(q)
    q = P()
    for k in range(8): q.e(f'v_add_f32 v{SR + 8 + k}, v{SR + 8 + k}, v{SR + 16 + k}')
    for k in range(8): q.e(f'v_add_f32 v{SO + k}, v{SO + k}, v{SR + k}')
    for k in range(8): q.e(f'v_add_f32 v{SO + k}, v{SO + k}, v{SR + 8 + k}')
    q.e(f'v_permlane32_swap_b32 v{XR}, v{XR + 2}')
    q.e(f'v_permlane32_swap_b32 v{XR + 1}, v{XR + 3}')
    for k in range(4):
        q.e(f'v_lshlrev_b32 v{XU_ + 2 * k}, 16, v{XR + k}')
        q.e(f'v_and_b32 v{XU_ + 2 * k + 1}, 0xffff0000, v{XR + k}')
    interleave(slots, q, 60, 70)
    q = P(); q.e('s_barrier'); stamp(q, 'bP8'); slots[65][1:1] = q
    for sl in slots: p.extend(sl)
    stamp(p, 'endP')
    p.e('s_nop 7')
    red_write(p, AY, YO, 24, f'Y{half}', f'REDY{half}')
    p.append(WaitDs())
    p.e('s_barrier')
    stamp(p, 'bY')
    for src in range(3):
        for hh in range(2): p.e(f'ds_read_b128 {vr(YR + 8 * src + 4 * hh, 4)}, v26 offset:{src * 2048 + hh * 1024}', None, f'REDY{half}')
    pr = lambda b, k: vr(b + 2 * k, 2)
    for src in range(3):
        for k in range(4): p.e(f'v_pk_add_f32 {pr(YO, k)}, {pr(YO, k)}, {pr(YR + 8 * src, k)}')
    for k in range(4): p.e(f'v_pk_mul_f32 {pr(G, k)}, {pr(YO, k)}, s[{sC}:{sC+1}] op_sel_hi:[1,0] neg_lo:[1,0] neg_hi:[1,0]')
    for k in range(8): p.e(f'v_exp_f32 v{G + k}, v{G + k}')
    for k in range(4): p.e(f'v_pk_mul_f32 {pr(SO, k)}, {pr(SO, k)}, {pr(YO, k)}')
    for k in range(4): p.e(f'v_pk_add_f32 {pr(G, k)}, {pr(G, k)}, 1.0 op_sel_hi:[1,0]')
    for k in range(8): p.e(f'v_rcp_f32 v{G + k}, v{G + k}')
    for k in range(4): p.e(f'v_pk_fma_f32 {pr(XU_, k)}, {pr(SO, k)}, {pr(G, k)}, {pr(XU_, k)}')
    for k in range(4): p.e(f'v_cvt_pk_bf16_f32 v{G + k}, v{XU_ + 2 * k}, v{XU_ + 2 * k + 1}')
    p.e(f'v_permlane32_swap_b32 v{G}, v{G + 2}')
    p.e(f'v_permlane32_swap_b32 v{G + 1}, v{G + 3}')
    p.e(f'buffer_store_dwordx4 {vr(G, 4)}, v{vOUT}, {srd(SOUT)}, 0 offen' + ('', ' sc1', ' nt', ' sc0 sc1')[opt('osc', 0)])
    stamp(p, 'end'); dump(p)
    if half == 0:
        p.e(f's_or_b32 s{sT1}, s2, s{sW}')
        p.e(f's_cmp_lg_u32 s{sT1}, 0')
        p.e(f's_cbranch_scc1 L_end')
        set_flag(p, '0', 24)
    p.e('s_endpgm')

def build():
    pro = prologue()
    outs = []; fulls = []
    for half in range(2):
        p = P()
        x_stage(p, half); phase1_main(p, half); nr = phase1_tail(p, half); phase2(p, half, nr)
        mark = I(f'L_half{half}:')
        full = finalize(list(pro) + [mark] + list(p)); fulls.append(full)
        outs.append(full[full.index(mark):])
    if not (opt('nobar', 0) or opt('nodma', 0)): check_lds(fulls, RANGES)
    assert len({sum(x.op == 's_barrier' for x in f) for f in fulls}) == 1
    pro_f = finalize(list(pro))
    slow = []
    for q in slow_paths: slow += finalize(list(q))
    hdr = open('recurrent_scan__linear_kernel_hedgehog__geglu_ffn__prompt.s.ref').read().split('\n')
    top = [l for l in hdr if l.startswith(';') and '@launch' not in l and 'Override' not in l and 'grid=ceil' not in l]
    s = '\n'.join(top) + '\n; @launch grid=(256,1,1) block=(512,1,1) lds=163840\n'
    s += f'.amdgcn_target "amdgcn-amd-amdhsa--gfx950"\n.text\n.globl {NAME}\n.p2align 8\n.type {NAME},@function\n{NAME}:\n'
    s += text(pro_f) + text(outs[0]) + text(outs[1]) + text(slow)
    s += 'L_end:\n    s_endpgm\nL_codeend:\n'
    s += f'''.section .rodata,"a"
.p2align 6
.amdhsa_kernel {NAME}
  .amdhsa_next_free_vgpr 256
  .amdhsa_next_free_sgpr 96
  .amdhsa_accum_offset 256
  .amdhsa_group_segment_fixed_size 0
  .amdhsa_kernarg_size 88
  .amdhsa_user_sgpr_count 2
  .amdhsa_user_sgpr_kernarg_segment_ptr 1
  .amdhsa_system_sgpr_workgroup_id_x 1
.end_amdhsa_kernel
'''
    return s

if __name__ == '__main__':
    open(sys.argv[1], 'w').write(build())
    if DEBUG: json.dump(STAMPS, open('stamps.json', 'w'))
```

```python
import sys, struct, math, json
sys.path.insert(0, 'work')
from asmlib import *

NAME = 'recurrent_scan__linear_kernel_hedgehog__geglu_ffn__prompt_kernel'
def f2u(x): return struct.unpack('<I', struct.pack('<f', x))[0]
def hx(x): return '0x%08x' % (x & 0xffffffff)
LOG2E = 1.4426950408889634
ARGS = sys.argv[2:]
DEBUG = 'dbg' in ARGS
def opt(name, default):
    for a in ARGS:
        if a.startswith(name + '='): return int(a.split('=')[1])
    return default

EP, KVFL, HFL, KVP, HB = 0x0, 0x1000, 0x10000, 0x40000, 0x200000
FLT = 1024
TBLK = 148 * 1024
WS_SIZE = HB + 64 * TBLK
DBGOFF = 0xC00000
if DEBUG: WS_SIZE = 0xD00000
SX, SQKV, SG, SU, SWD, SWO, SWS, SOUT, SPHI, SREM = 8, 12, 16, 20, 24, 28, 32, 36, 40, 44
def srd(b): return f's[{b}:{b+3}]'
sW, sRB, sH, sJ, sJM, sCH, sW1K, sREML = 48, 49, 50, 51, 52, 53, 54, 55
sTAG = 56
sTT, sT, sXI, sI = 58, 59, 60, 61
sC = 62; sHST = 63
sT0, sT1, sT2, sT3, sT4, sT5 = 64, 65, 66, 67, 68, 69
sONE2, sSEL0, sSEL1 = 70, 71, 72
sHLD, sFLD, sNG, sT2K, sFLA, sFLP, sKVFL, sRDY = 73, 74, 75, 76, 77, 78, 82, 83
sSPIN = 79
sPC = 80
vLANE, vL16, vGM, vR, vCc, vK1, vK2 = 1, 2, 3, 4, 5, 6, 7
vOQ = 8; vOR = [9, 10]; vOA = [11, 12]; vOW2 = 13
vTQ = 14; vTR = [15, 16]; vTA = [17, 18]
vOX = 31
ACC3, ACC1, ACC2, XF = 32, 64, 80, 128
AFR = [112, 116, 120, 124, 240, 244]
WPHI = 248
def vr(b, n=1): return f'v{b}' if n == 1 else f'v[{b}:{b+n-1}]'

U = 8192
XU = lambda p: 2 * p * U
CU = [14 * U, 15 * U, 16 * U, 17 * U, 18 * U, 7 * U, 8 * U]
DU = [9 * U, 11 * U, 0, 2 * U, 4 * U, 13 * U, 6 * U]
AU = [9 * U, 11 * U, 0, 2 * U, 4 * U, 13 * U, 6 * U]
TRV, TRK = 15 * U, 16 * U
MISC = 19 * U; STAT = MISC + 4096; KVBUF = MISC + 4096
LINES = [L for L in range(28) if L % 7 in (1, 3, 5)] + list(range(28, 36)) + [L for L in range(28) if L % 7 in (0, 2, 4, 6)]
LU = [18, 8, 15, 16, 17, 9, 10, 11, 12, 13, 14, 0, 1, 2, 3, 4, 5, 6, 7,
      8, 18, 15, 16, 17, 9, 10, 11, 12, 13, 14, 0, 1, 2, 3, 4, 5]
OW = U
REDS, REDY = [6 * U, 15 * U], [9 * U, 12 * U]
RANGES = {'PHI': (MISC, MISC + 2048), 'STAT': (STAT, STAT + 4096), 'KVBUF': (KVBUF, KVBUF + 4096), 'TRV': (TRV, TRV + U), 'TRK': (TRK, TRK + 2 * U),
          'E1': (0, 7 * U), 'E2': (0, 7 * U)}
for h_ in range(2):
    RANGES[f'REDS{h_}'] = (REDS[h_], REDS[h_] + 3 * U); RANGES[f'REDY{h_}'] = (REDY[h_], REDY[h_] + 3 * U)
for c in range(7):
    RANGES[f'X{c}'] = (XU(c), XU(c) + 2 * U); RANGES[f'C{c}'] = (CU[c], CU[c] + U)
    RANGES[f'D{c}'] = (DU[c], DU[c] + 2 * U); RANGES[f'A{c}'] = (AU[c], AU[c] + 2 * U)
for n in range(36): RANGES[f'L{n}'] = (LU[n] * U, LU[n] * U + U)

MF32 = 'v_mfma_f32_32x32x16_bf16'
MF16 = 'v_mfma_f32_16x16x32_bf16'

class P(list):
    def e(self, t, tok=None, obj=None): self.append(I(t, tok, obj)); return self

STAMPS = {}
def stamp(p, name, rt=False):
    if not DEBUG: return
    if opt('light', 0) and name not in ('karg', 'bX8', 'bN', 'b1c', 'b2_0', 'b3_0', 'b2_6', 'endA', 'bPopen', 'bP2', 'bP4', 'bP5', 'endP', 'end', 'rt_end'): return
    k = STAMPS.setdefault(name, len(STAMPS)); assert k < 64
    p.append(Group([I(f'{"s_memrealtime" if rt else "s_memtime"} s[84:85]'), I('s_waitcnt lgkmcnt(0)'), I(f'v_writelane_b32 v0, s84, {k}')]))
def dump(p):
    if not DEBUG: return
    stamp(p, 'rt_end', True)
    p.e(f's_lshl_b32 s84, s2, 3'); p.e(f's_add_u32 s84, s84, s{sW}'); p.e('s_lshl_b32 s84, s84, 8'); p.e(f's_add_u32 s84, s84, {DBGOFF}')
    p.e(f'v_lshlrev_b32 v31, 2, v{vLANE}')
    p.e(f'buffer_store_dword v0, v31, {srd(SWS)}, s84 offen')
    if opt('dbgwg', -1) >= 0:
        p.e(f's_lshl_b32 s84, s2, 3'); p.e(f's_add_u32 s84, s84, s{sW}')
        p.e(f's_cmp_lg_u32 s84, {opt("dbgwg", 0) * 8}')
        p.e(f's_cbranch_scc1 L_nodbg{len(slow_paths)}')
        p.e('s_load_dwordx2 s[90:91], s[0:1], 72'); p.e('v_readlane_b32 s86, v0, 0'); p.e('v_readlane_b32 s87, v0, 1'); p.e('s_waitcnt lgkmcnt(0)')
        p.e('v_subrev_u32 v30, s86, v0'); p.e('v_subrev_u32 v29, s87, v0')
        p.e(f'v_cmp_eq_u32 vcc, {STAMPS["rt_end"]}, v{vLANE}'); p.e('v_cndmask_b32 v30, v30, v29, vcc')
        p.e('global_store_dword v31, v30, s[90:91]')
        p.e(f'L_nodbg{len(slow_paths)}:')

def dma(p, s, voff, pre, m0base, m0const, tok):
    p.append(Group([I(f's_add_u32 m0, s{m0base}, {m0const}')] + [I(t) for t in pre] +
                   [I(f'buffer_load_dwordx4 v{voff}, {srd(s)}, s{sT0} offen lds', tok, tok)]))
def cidx(pos): return f's_bfe_u32 s{sT0}, s{sCH}, {hx((4 << 16) | (4 * pos))}'
def dma_X(p, c):
    dma(p, SX, vOX, [cidx(c), f's_lshl_b32 s{sT0}, s{sT0}, 7'], sW1K, XU(c), f'X{c}')
    dma(p, SX, vOX, [f's_add_u32 s{sT0}, s{sT0}, {64 * 896}'], sW1K, XU(c) + U, f'X{c}')
def dma_C(p, half, c):
    dma(p, SQKV, vOQ, [cidx(c), f's_mul_i32 s{sT0}, s{sT0}, {64 * 2688}', f's_add_u32 s{sT0}, s{sT0}, {896 * (1 + half)}'], sW1K, CU[c], f'C{c}')
def dma_D(p, half, c):
    if half == 0:
        dma(p, SQKV, vOQ, [cidx(c), f's_mul_i32 s{sT0}, s{sT0}, {64 * 2688}'], sW1K, DU[c], f'D{c}')
        dma(p, SREM, vOR[0], [cidx(c), f's_mul_i32 s{sT0}, s{sT0}, {64 * 3584}'], sREML, DU[c] + 4096, f'D{c}')
    else:
        dma(p, SREM, vOR[0], [cidx(c), f's_mul_i32 s{sT0}, s{sT0}, {64 * 3584}'], sREML, DU[c] + 4096, f'D{c}')
        dma(p, SREM, vOR[1], [], sREML, DU[c] + 5120, f'D{c}')
def dma_A(p, pos):
    dma(p, SG, vOA[0], [cidx(pos), f's_mul_i32 s{sT0}, s{sT0}, {64 * 3584}'], sW1K, AU[pos], f'A{pos}')
    dma(p, SU, vOA[1], [], sW1K, AU[pos] + U, f'A{pos}')
def dma_L(p, n, both=0):
    L = LINES[n]
    s, row = (SWD, L * 64) if L < 28 else (SWO, (L - 28) * 56)
    dma(p, s, vOW2, [f's_mov_b32 s{sT0}, {row * 896}'], sW1K, LU[n] * U, f'L{n}')
    if both:
        assert row + 32 * both >= 0 and LU[n] * U + 4096 * both >= -4096
        dma(p, s, vOW2, [f's_mov_b32 s{sT0}, {(row + 32 * both) * 896}'], sW1K, LU[n] * U + 4096 * both, f'L{n}')
def spread(slots, atoms, start, end):
    n = len(atoms)
    for k, x in enumerate(atoms): slots[start + (k * (end - start)) // n].append(x)
def mix(code, atoms, lead=0.0, tail=1.0):
    total = sum(x.cost for x in code); out = P(); acc = 0; k = 0; n = len(atoms)
    for x in code:
        while k < n and acc >= total * (lead + (tail - lead) * k / n): out.append(atoms[k]); k += 1
        out.append(x); acc += x.cost
    out.extend(atoms[k:])
    return out

slow_paths = []
def flag_load(p, vflag, vaddr, soff):
    p.e(f'buffer_load_dwordx2 {vr(vflag, 2)}, v{vaddr}, {srd(SWS)}, {soff} offen sc1')
def poll(p, uid, vflag, vaddr, soff):
    p.e(f'v_cmp_ne_u64 vcc, s[{sTAG}:{sTAG+1}], {vr(vflag, 2)}')
    p.e(f's_cbranch_vccnz L_slow_{uid}')
    p.e(f'L_res_{uid}:')
    q = P(); q.append(Reset())
    q.e(f'L_slow_{uid}:')
    q.e(f's_mov_b32 s{sSPIN}, 0x40000')
    q.e(f'L_spin_{uid}:')
    flag_load(q, vflag, vaddr, soff)
    q.e('s_waitcnt vmcnt(0)')
    q.e(f'v_cmp_ne_u64 vcc, s[{sTAG}:{sTAG+1}], {vr(vflag, 2)}')
    q.e(f's_cbranch_vccz L_res_{uid}')
    q.e(f's_sleep {opt("sleep", 2)}')
    q.e(f's_sub_u32 s{sSPIN}, s{sSPIN}, 1')
    q.e(f's_cmp_lg_u32 s{sSPIN}, 0')
    q.e(f's_cbranch_scc1 L_spin_{uid}')
    q.e(f's_branch L_res_{uid}')
    slow_paths.append(q)
def set_flag(p, soff, vt, off=0):
    p.append(Group([I(f'v_mov_b32 v{vt}, s{sTAG}'), I(f'v_mov_b32 v{vt+1}, s{sTAG+1}'),
        I(f's_mov_b64 exec, 1'),
        I(f'buffer_store_dwordx2 {vr(vt, 2)}, off, {srd(SWS)}, {soff} offset:{off} sc1'),
        I(f's_mov_b64 exec, -1')]))
def srd_consts(p, b, n):
    p.e(f's_mov_b32 s{b+2}, {n}'); p.e(f's_mov_b32 s{b+3}, 0x20000')

def prologue():
    p = P()
    p.e('s_cmp_ge_u32 s2, 256')
    p.e('s_cbranch_scc1 L_end')
    if DEBUG: p.e('s_memtime s[86:87]'); p.e('s_memrealtime s[88:89]')
    for b, off in ((SX, 0), (SQKV, 8), (SG, 40), (SU, 48), (SPHI, 16), (SWO, 24), (SWD, 56), (SOUT, 64), (SWS, 80)):
        p.e(f's_load_dwordx2 s[{b}:{b+1}], s[0:1], {off}')
    p.e(f's_getpc_b64 s[{sPC}:{sPC+1}]')
    p.e('L_pcbase:')
    p.e(f's_lshr_b32 s{sI}, s2, 3')
    p.e(f'v_lshrrev_b32 v18, 6, v0')
    p.e(f'v_and_b32 v19, 1, v0')
    p.e(f'v_lshl_or_b32 v19, v18, 1, v19')
    p.e(f's_lshl_b32 s{sT0}, s{sI}, 4')
    p.e(f'v_add_u32 v19, s{sT0}, v19')
    p.e(f'v_lshlrev_b32 v19, 7, v19')
    p.e(f'v_min_u32 v19, (L_codeend - L_pcbase - 4), v19')
    p.e(f'global_load_dword v30, v19, s[{sPC}:{sPC+1}]')
    p.e(f'v_readfirstlane_b32 s{sW}, v18')
    p.e(f's_and_b32 s{sXI}, s2, 7')
    p.e(f'v_and_b32 v{vLANE}, 63, v0')
    p.e(f's_and_b32 s{sT0}, s{sXI}, 1')
    p.e(f's_lshl_b32 s{sT0}, s{sT0}, 3')
    p.e(f's_and_b32 s{sT1}, s{sI}, 7')
    p.e(f's_add_u32 s{sRB}, s{sT0}, s{sT1}')
    p.e(f's_lshr_b32 s{sT2}, s{sI}, 3')
    p.e(f's_lshr_b32 s{sT0}, s{sXI}, 1')
    p.e(f's_lshl_b32 s{sT0}, s{sT0}, 2')
    p.e(f's_add_u32 s{sH}, s{sT0}, s{sT2}')
    p.e(f'v_lshrrev_b32 v20, 3, v{vLANE}')
    p.e(f's_lshl_b32 s{sT2}, s{sT2}, 1')
    p.e(f's_add_u32 s{sT1}, s{sT1}, s{sT2}')
    p.e(f'v_lshrrev_b32 v21, 4, v{vLANE}')
    p.e(f's_sub_u32 s{sT2}, s{sT1}, 7')
    p.e(f's_cmp_ge_u32 s{sT1}, 7')
    p.e(f's_cselect_b32 s{sT1}, s{sT2}, s{sT1}')
    p.e(f'v_and_b32 v22, 7, v{vLANE}')
    p.e(f's_lshl_b32 s{sT1}, s{sT1}, 2')
    p.e(f's_mov_b32 s{sT2}, 0x06543210')
    p.e(f's_mov_b32 s{sT3}, 0x00654321')
    p.e(f's_lshr_b64 s[{sT2}:{sT3}], s[{sT2}:{sT3}], s{sT1}')
    p.e(f's_mov_b32 s{sCH}, s{sT2}')
    p.e(f's_lshl_b32 s{sW1K}, s{sW}, 10')
    p.e(f's_lshl_b32 s{sT0}, s{sRB}, 7')
    p.e(f's_lshl_b32 s{sT1}, s{sW}, 3')
    p.e(f's_add_u32 s{sT0}, s{sT0}, s{sT1}')
    p.e(f'v_add_u32 v{vOX}, s{sT0}, v20')
    p.e(f'v_mul_u32_u24 v{vOX}, 896, v{vOX}')
    p.e(f's_and_b32 s{sT1}, s{sW}, 1')
    p.e(f's_lshl_b32 s{sT1}, s{sT1}, 2')
    p.e(f'v_xor_b32 v21, s{sT1}, v21')
    p.e(f'v_xor_b32 v21, v21, v22')
    p.e(f'v_lshl_add_u32 v{vOX}, v21, 4, v{vOX}')
    for b, n in ((SX, 1835008), (SQKV, 448 * 2688), (SG, 448 * 3584), (SU, 448 * 3584), (SPHI, 16 * 1568),
                 (SWO, 448 * 896), (SWD, 1792 * 896), (SOUT, 1835008), (SWS, WS_SIZE)):
        srd_consts(p, b, n)
    p.e('s_waitcnt lgkmcnt(0)')
    if DEBUG:
        STAMPS['start'] = 0; STAMPS['rt_start'] = 1
        p.e('v_writelane_b32 v0, s86, 0'); p.e('v_writelane_b32 v0, s88, 1')
    stamp(p, 'karg')
    dma_X(p, 0)
    p.e(f's_and_b32 s{sTT}, s{sW}, 3')
    p.e(f's_cmp_ge_u32 s{sW}, 4')
    p.e('s_cbranch_scc1 L_half1')
    return p

def setup(half):
    f = P()
    f.e(f'v_and_b32 v23, 31, v{vLANE}')
    f.e(f'v_lshrrev_b32 v28, 5, v{vLANE}')
    f.e(f'v_bfe_u32 v19, v{vLANE}, 1, 3')
    f.e(f'v_xor_b32 v19, v19, v28')
    f.e(f'v_lshlrev_b32 v23, 7, v23')
    f.e(f's_lshl_b32 s{sT1}, s{sTT}, 12')
    f.e(f'v_add_u32 v23, s{sT1}, v23')
    f.e(f's_mov_b32 s{sONE2}, 0x3f803f80')
    for ks in range(4):
        f.e(f'v_xor_b32 v{24 + ks}, {2 * ks}, v19')
        f.e(f'v_lshl_add_u32 v{24 + ks}, v{24 + ks}, 4, v23')
    sl = [0, 1, 3, 2, 4, 5, 7, 6, 9, 8, 10, 11, 13, 12, 14, 15]
    lo = sum(sl[k] << (4 * k) for k in range(8)); hi = sum(sl[8 + k] << (4 * k) for k in range(8))
    f.e(f's_mov_b32 s{sT2}, {hx(lo)}')
    f.e(f's_mov_b32 s{sT3}, {hx(hi)}')
    f.e(f's_lshl_b32 s{sT1}, s{sH}, 2')
    f.e(f's_lshr_b64 s[{sT2}:{sT3}], s[{sT2}:{sT3}], s{sT1}')
    f.e(f's_and_b32 s{sJ}, s{sT2}, 15')
    f.e(f's_and_b32 s{sJM}, s{sJ}, 3')
    f.e(f's_lshl_b32 s{sT1}, s{sTT}, 4')
    f.e(f'v_lshrrev_b32 v23, 2, v{vLANE}')
    f.e(f'v_add_u32 v23, s{sT1}, v23')
    f.e(f'v_mul_u32_u24 v{vOQ}, 2688, v23')
    f.e(f'v_and_b32 v23, 3, v{vLANE}')
    f.e(f'v_lshlrev_b32 v23, 4, v23')
    f.e(f'v_min_u32 v23, 40, v23')
    f.e(f's_mul_i32 s{sT1}, s{sH}, 56')
    f.e(f'v_add3_u32 v{vOQ}, v{vOQ}, v23, s{sT1}')
    if half == 0:
        f.e(f's_mov_b32 s{SREM}, s{SG}'); f.e(f's_mov_b32 s{SREM+1}, s{SG+1}')
        f.e(f's_lshl_b32 s{sREML}, s{sTT}, 10')
        f.e(f's_lshl_b32 s{sT2}, s{sTT}, 6')
        f.e(f's_mov_b32 s{sT1}, 0')
    else:
        f.append(Group([I(f's_cmp_eq_u32 s{sTT}, 0'), I(f's_cselect_b32 s{SREM}, s{SG}, s{SU}'), I(f's_cselect_b32 s{SREM+1}, s{SG+1}, s{SU+1}'),
                        I(f's_cselect_b32 s{sT1}, 0, 4'), I(f's_cselect_b32 s{sT2}, 3, s{sTT}')]))
        f.e(f's_lshl_b32 s{sREML}, s{sTT}, 11')
        f.e(f's_add_u32 s{sREML}, s{sREML}, 4096')
        f.e(f's_lshl_b32 s{sT2}, s{sT2}, 7')
        f.e(f's_sub_u32 s{sT2}, s{sT2}, 128')
    srd_consts(f, SREM, 448 * 3584)
    f.e(f's_mul_i32 s{sT3}, s{sJ}, 224')
    for n in range(1 + half):
        if n: f.e(f's_add_u32 s{sT2}, s{sT2}, 64')
        f.e(f'v_add_u32 v23, s{sT2}, v{vLANE}')
        f.e(f'v_mul_u32_u24 v28, 683, v23')
        f.e(f'v_lshrrev_b32 v28, 12, v28')
        f.e(f'v_mul_u32_u24 v29, 6, v28')
        f.e(f'v_sub_u32 v29, v23, v29')
        f.e(f'v_xor_b32 v28, s{sT1}, v28')
        f.e(f'v_mul_u32_u24 v{vOR[n]}, 3584, v28')
        f.e(f'v_lshrrev_b32 v28, 1, v29')
        f.e(f'v_add_u32 v23, 4, v28')
        f.e(f'v_cmp_gt_u32 vcc, s{sJM}, v28')
        f.e(f'v_and_b32 v29, 1, v29')
        f.e(f'v_cndmask_b32 v28, v23, v28, vcc')
        f.e(f'v_lshl_or_b32 v28, v28, 1, v29')
        f.e(f'v_lshlrev_b32 v28, 4, v28')
        f.e(f'v_add3_u32 v{vOR[n]}, v{vOR[n]}, v28, s{sT3}')
    g = f
    g.e(f's_lshl_b32 s{sT1}, s{sW}, 3')
    g.e(f'v_add_u32 v23, s{sT1}, v20')
    g.e(f'v_bfe_u32 v21, v{vLANE}, 4, 1')
    g.e(f'v_lshlrev_b32 v19, 1, v21')
    g.e(f'v_xor_b32 v19, v19, v22')
    g.e(f's_lshl_b32 s{sT2}, s{sJM}, 5')
    g.e(f's_add_u32 s{sT2}, s{sT2}, s{sT3}')
    g.e(f'v_mul_u32_u24 v{vOW2}, 3584, v23')
    g.e(f'v_add_u32 v{vOW2}, s{sT2}, v{vOW2}')
    g.e(f'v_lshl_add_u32 v{vOA[0]}, v19, 4, v{vOW2}')
    g.e(f'v_xor_b32 v19, 4, v19')
    g.e(f'v_lshl_add_u32 v{vOA[1]}, v19, 4, v{vOW2}')
    g.e(f's_mul_i32 s{sT2}, s{sI}, 37')
    g.e(f's_lshr_b32 s{sT2}, s{sT2}, 8')
    g.e(f's_mul_i32 s{sT3}, s{sT2}, 7')
    g.e(f's_sub_u32 s{sNG}, s{sI}, s{sT3}')
    g.e(f's_lshl_b32 s{sT3}, s{sXI}, 2')
    g.e(f's_add_u32 s{sT2}, s{sT2}, s{sT3}')
    g.e(f's_lshl_b32 s{sT2}, s{sT2}, 1')
    g.e(f's_add_u32 s{sT2K}, s{sT2}, {half}')
    g.e(f's_and_b32 s{sT2K}, s{sT2K}, {1 if opt("fakeH", 0) else 63}')
    if opt('fakeW', 0): g.e(f's_mov_b32 s{sNG}, 0')
    g.e(f'v_lshlrev_b32 v19, 2, v21')
    g.e(f'v_xor_b32 v19, v19, v22')
    g.e(f'v_mul_u32_u24 v23, 896, v23')
    g.e(f's_lshl_b32 s{sT2}, s{sNG}, 7')
    g.e(f'v_add_u32 v23, s{sT2}, v23')
    g.e(f'v_lshl_add_u32 v{vOW2}, v19, 4, v23')
    g.e(f'v_lshlrev_b32 v{vL16}, 4, v{vLANE}')
    g.e(f'v_cmp_lt_u32 vcc, 31, v{vLANE}')
    g.e(f'v_mov_b32 v{vK1}, {hx(f2u(-2 * math.sqrt(2 / math.pi) * LOG2E))}')
    g.e(f'v_mov_b32 v{vK2}, {hx(f2u(-2 * math.sqrt(2 / math.pi) * LOG2E * 0.044715))}')
    g.e(f'v_cndmask_b32 v{vGM}, 0, 1.0, vcc')
    g.e(f's_mov_b32 s{sC}, {hx(f2u(LOG2E))}')
    g.e(f's_mov_b32 s{sSEL0}, 0x00003f80')
    g.e(f's_mov_b32 s{sSEL1}, 0x3f800000')
    g.e(f's_lshl_b32 s{sT}, s{sRB}, 2')
    g.e(f's_add_u32 s{sT}, s{sT}, s{sTT}')
    g.e(f's_mul_i32 s{sHST}, s{sT}, {TBLK}')
    g.e(f's_add_u32 s{sHST}, s{sHST}, {HB}')
    g.e(f's_lshl_b32 s{sFLP}, s{sT}, 10')
    g.e(f's_lshl_b32 s{sT2}, s{sJ}, 3')
    g.e(f's_add_u32 s{sFLP}, s{sFLP}, s{sT2}')
    g.e(f's_add_u32 s{sFLP}, s{sFLP}, {HFL}')
    g.e(f's_mul_i32 s{sHLD}, s{sT2K}, {TBLK}')
    g.e(f's_lshl_b32 s{sT2}, s{sTT}, 10')
    g.e(f's_add_u32 s{sHLD}, s{sHLD}, s{sT2}')
    g.e(f's_add_u32 s{sHLD}, s{sHLD}, {HB}')
    g.e(f's_lshl_b32 s{sFLD}, s{sT2K}, 10')
    g.e(f's_add_u32 s{sFLD}, s{sFLD}, {HFL}')
    g.e(f's_lshr_b32 s{sFLA}, s{sTT}, 1')
    g.e(f's_add_u32 s{sFLA}, s{sFLA}, 2')
    g.e(f's_lshl_b32 s{sFLA}, s{sFLA}, 7')
    g.e(f's_add_u32 s{sFLA}, s{sFLA}, s{sFLD}')
    g.e(f's_lshl_b32 s{sKVFL}, s{sH}, 2')
    g.e(f's_add_u32 s{sKVFL}, s{sKVFL}, s{sTT}')
    g.e(f's_lshl_b32 s{sKVFL}, s{sKVFL}, 7')
    g.e(f's_add_u32 s{sKVFL}, s{sKVFL}, {KVFL}')
    g.e(f'v_bfe_u32 v23, v{vLANE}, 2, 2')
    g.e(f'v_lshrrev_b32 v20, 5, v{vLANE}')
    g.e(f'v_and_b32 v22, 3, v{vLANE}')
    g.e(f'v_lshl_add_u32 v20, v20, 3, v23')
    g.e(f'v_lshlrev_b32 v{vTQ}, 6, v20')
    g.e(f'v_lshl_add_u32 v{vTQ}, v21, 5, v{vTQ}')
    g.e(f'v_lshl_add_u32 v{vTQ}, v22, 3, v{vTQ}')
    g.e(f'v_add_u32 v{vTQ}, {CU[0] + half * 4096}, v{vTQ}')
    g.e(f's_mov_b32 s{sT2}, {DU[0] + 4096}')
    for rd in range(2):
        g.e(f'v_xor_b32 v19, {rd}, v21')
        g.e(f'v_lshl_add_u32 v19, v19, 2, v20')
        g.e(f'v_mul_u32_u24 v19, 96, v19')
        g.e(f'v_mul_u32_u24 v{vTR[rd]}, 6144, v21')
        g.e(f'v_lshl_add_u32 v19, v22, 3, v19')
        g.e(f'v_add3_u32 v{vTR[rd]}, v{vTR[rd]}, v19, s{sT2}')
    g.e(f'v_lshrrev_b32 v19, 1, v23')
    g.e(f'v_lshl_or_b32 v19, v21, 1, v19')
    g.e(f'v_lshlrev_b32 v20, 7, v20')
    g.e(f'v_lshl_add_u32 v20, v21, 13, v20')
    g.e(f'v_lshl_add_u32 v20, v22, 3, v20')
    for t in range(2):
        g.e(f'v_xor_b32 v{vTA[t]}, {2 * half + t}, v19')
        g.e(f'v_lshl_add_u32 v{vTA[t]}, v{vTA[t]}, 5, v20')
    return f

def touch(half, sT, vt):
    g = P()
    g.e(f's_lshl_b32 s{sT}, s2, 2')
    g.e(f's_add_u32 s{sT}, s{sT}, s{sTT}')
    for k, (s, nl) in enumerate(((SG, 13), (SWD, 13)) if half == 0 else ((SQKV, 10), (SU, 13), (SWO, 4))):
        g.e(f'v_min_u32 v{vt}, {nl - 1}, v{vLANE}')
        g.e(f'v_lshlrev_b32 v{vt}, 7, v{vt}')
        g.e(f's_mul_i32 s{sT0}, s{sT}, {nl * 128}')
        g.e(f'buffer_load_dword v{vt + 1}, v{vt}, {srd(s)}, s{sT0} offen'); g[-1].defs = []
    return g

def late_loads(half):
    g = P()
    g.e(f'buffer_load_dwordx2 v[28:29], off, {srd(SWS)}, 0 sc1', 'EP')
    if opt('tlb', 1):
        g.e(f's_add_u32 s{sT2}, s{sHST if half == 0 else sHLD}, {144 * 1024}')
        g.e(f'buffer_load_dword v30, off, {srd(SWS)}, s{sT2}'); g[-1].defs = []
        g.e(f's_mul_i32 s{sT2}, s{sT2K}, {32 * 896}')
        g.e(f'buffer_load_dword v30, off, {srd(SOUT)}, s{sT2}')
    return g

def x_stage(p, half):
    own = [2 * half, 2 * half + 1]; oth = [2 - 2 * half, 3 - 2 * half]
    at = P()
    WP = opt('wpos', 6)
    for c in range(1, 7):
        if c == WP + 1: at.append(Group(touch(half, sT5, 40)))
        dma_X(at, c)
    if WP == 6: at.append(Group(touch(half, sT5, 40)))
    p.extend(mix(setup(half), at, 0.0, 0.8))
    p.e('v_mov_b32 v20, 0'); p.e('v_mov_b32 v21, 0')
    stamp(p, 'setup')
    fr = [(c, ks) for c in range(7) for ks in own]
    reg = lambda c, ks: XF + 16 * c + 4 * ks
    def dots(q, c, ks):
        for k in range(4):
            r = reg(c, ks) + k
            q.e(f'v_dot2c_f32_bf16 v20, s{sONE2}, v{r}'); q.e(f'v_dot2c_f32_bf16 v21, v{r}, v{r}')
    done = 0; LA = 4
    for lo, hi, tok, cs in ((0, 8, 'X3', [0, 1]), (8, 14, 'X6', [2])):
        p.append(WaitVm(tok)); p.e('s_barrier'); stamp(p, f'bX{hi}')
        code = P()
        for k in range(lo, hi):
            c, ks = fr[k]
            if k == 8:
                for a in own: code.e(f'v_add_u32 v{24 + a}, 0x10000, v{24 + a}')
            code.e(f'ds_read_b128 {vr(reg(c, ks), 4)}, v{24 + ks} offset:{XU(c) & 0xffff}', None, f'X{c}')
            if k - LA >= done: dots(code, *fr[done]); done += 1
        if hi == 14:
            while done < hi: dots(code, *fr[done]); done += 1
        at = P()
        for c in cs: dma_C(at, half, c)
        p.extend(mix(code, at, 0.05, 0.9))
    p.e(f'v_lshrrev_b32 v22, 1, v{vL16}')
    p.e(f's_lshr_b32 s{sT1}, s{sW1K}, 1')
    p.e(f's_add_u32 s{sT1}, s{sT1}, {STAT}')
    p.e(f'v_add_u32 v22, s{sT1}, v22')
    p.e(f'ds_write_b64 v22, v[20:21]', None, 'STAT')
    p.e(f'v_xor_b32 v22, 2048, v22')
    stamp(p, 'dots')
    p.append(WaitDs()); p.e('s_barrier')
    p.e(f'ds_read_b64 v[22:23], v22', None, 'STAT')
    code = P()
    code.e('v_add_f32 v20, v20, v22'); code.e('v_add_f32 v21, v21, v23')
    code.e('v_permlane32_swap_b32 v20, v21')
    code.e('v_add_f32 v20, v20, v21')
    code.e(f'v_mul_f32 v20, {hx(f2u(1 / 448))}, v20')
    code.e('v_mov_b32 v21, v20')
    code.e('v_permlane32_swap_b32 v20, v21')
    code.e('v_fma_f32 v21, -v20, v20, v21')
    code.e('v_max_f32 v21, 0, v21')
    code.e('v_cvt_pk_bf16_f32 v20, v20, v21')
    code.e('v_and_b32 v21, 0xffff0000, v20')
    code.e('v_lshlrev_b32 v20, 16, v20')
    code.e(f'v_add_f32 v21, {hx(f2u(1e-5))}, v21')
    code.e('v_cvt_pk_bf16_f32 v21, v21, v21')
    code.e('v_and_b32 v21, 0xffff0000, v21')
    code.e('v_sqrt_f32 v21, v21')
    code.e('v_cvt_pk_bf16_f32 v21, v21, v21')
    code.e('v_and_b32 v21, 0xffff0000, v21')
    code.e(f'v_rcp_f32 v{vR}, v21')
    code.e(f'v_mul_f32 v{vCc}, v20, v{vR}')
    code.e(f'v_sub_f32 v{vCc}, 0, v{vCc}')
    RC = vr(vR, 2)
    code.e(f'v_add_u32 v24, s{sW1K}, v{vL16}')
    code.e(f'v_xor_b32 v25, 4096, v24')
    def norm(q, k):
        c, ks = fr[k]; r0 = reg(c, ks); T = 112
        for d in range(4):
            q.e(f'v_lshlrev_b32 v{T + 2 * d}, 16, v{r0 + d}')
            q.e(f'v_and_b32 v{T + 2 * d + 1}, 0xffff0000, v{r0 + d}')
        for d in range(4): q.e(f'v_pk_fma_f32 {vr(T + 2 * d, 2)}, {vr(T + 2 * d, 2)}, {RC}, {RC} op_sel:[0,0,1] op_sel_hi:[1,0,1]')
        for d in range(4): q.e(f'v_cvt_pk_bf16_f32 v{r0 + d}, v{T + 2 * d}, v{T + 2 * d + 1}')
    def wr(q, k):
        c, ks = fr[k]; q.e(f'ds_write_b128 v24, {vr(reg(c, ks), 4)} offset:{(k % 7) * U}', None, 'E1' if k < 7 else 'E2')
    for k in range(7): norm(code, k); wr(code, k)
    at = P()
    dma_C(at, half, 3); dma_C(at, half, 4)
    if half == 0:
        at.append(Group([I(f's_and_b32 s{sT1}, s{sW1K}, 1024'), I(f's_add_u32 m0, s{sT1}, {MISC}'), I(f's_mul_i32 s{sT0}, s{sH}, 1568'),
            I(f's_add_u32 s{sT0}, s{sT0}, s{sT1}'), I(f'buffer_load_dwordx4 v{vL16}, {srd(SPHI)}, s{sT0} offen lds', 'PHI', 'PHI')]))
    dma_C(at, half, 5); dma_C(at, half, 6)
    p.extend(mix(code, at, 0.05, 0.95))
    p.append(WaitDs()); p.e('s_barrier'); stamp(p, 'bE1')
    for k in range(7):
        c, ks = fr[k]; p.e(f'ds_read_b128 {vr(reg(c, ks ^ 2), 4)}, v25 offset:{k * U}', None, 'E1')
    norm(p, 7); norm(p, 8)
    p.append(WaitDs()); p.e('s_barrier')
    code = P(); wr(code, 7); wr(code, 8)
    for k in range(9, 14): norm(code, k); wr(code, k)
    at = P(); dma_D(at, half, 0); dma_D(at, half, 1); at.append(Group(late_loads(half)))
    p.extend(mix(code, at, 0.0, 0.9))
    stamp(p, 'norm')
    p.append(WaitDs()); p.append(WaitVm(['C6'])); p.e('s_barrier')
    stamp(p, 'bN')
    for k in range(7, 14):
        c, ks = fr[k]; p.e(f'ds_read_b128 {vr(reg(c, ks ^ 2), 4)}, v25 offset:{(k - 7) * U}', 'xn', 'E2')

def gelu_tile(acc, tmp, soff_code, tok, pk=False):
    q = P()
    if pk:
        T = lambda k: vr(tmp + 2 * k, 2); G = lambda k: vr(acc + 2 * k, 2); Uu = lambda k: vr(acc + 8 + 2 * k, 2)
        KK = vr(vK1, 2)
        for k in range(4): q.e(f'v_pk_mul_f32 {T(k)}, {G(k)}, {G(k)}')
        for k in range(4): q.e(f'v_pk_fma_f32 {T(k)}, {T(k)}, {KK}, {KK} op_sel:[0,1,0] op_sel_hi:[1,1,0]')
        for k in range(4): q.e(f'v_pk_mul_f32 {T(k)}, {T(k)}, {G(k)}')
        for k in range(8): q.e(f'v_exp_f32 v{tmp + k}, v{tmp + k}')
        for k in range(4): q.e(f'v_pk_mul_f32 {Uu(k)}, {G(k)}, {Uu(k)}')
        for k in range(4): q.e(f'v_pk_add_f32 {T(k)}, {T(k)}, 1.0 op_sel_hi:[1,0]')
        for k in range(8): q.e(f'v_rcp_f32 v{tmp + k}, v{tmp + k}')
        for k in range(4): q.e(f'v_pk_mul_f32 {Uu(k)}, {Uu(k)}, {T(k)}')
    else:
        for h4 in range(0, 8, 4):
            t = [tmp + k for k in range(4)]; g = [acc + h4 + k for k in range(4)]; u = [acc + 8 + h4 + k for k in range(4)]
            for k in range(4): q.e(f'v_mul_f32 v{t[k]}, v{g[k]}, v{g[k]}')
            for k in range(4): q.e(f'v_fma_f32 v{t[k]}, v{t[k]}, v{vK2}, v{vK1}')
            for k in range(4): q.e(f'v_mul_f32 v{t[k]}, v{t[k]}, v{g[k]}')
            for k in range(4): q.e(f'v_exp_f32 v{t[k]}, v{t[k]}')
            for k in range(4): q.e(f'v_mul_f32 v{u[k]}, v{g[k]}, v{u[k]}')
            for k in range(4): q.e(f'v_add_f32 v{t[k]}, 1.0, v{t[k]}')
            for k in range(4): q.e(f'v_rcp_f32 v{t[k]}, v{t[k]}')
            for k in range(4): q.e(f'v_mul_f32 v{u[k]}, v{u[k]}, v{t[k]}')
    for k in range(4): q.e(f'v_cvt_pk_bf16_f32 v{acc + k}, v{acc + 8 + 2 * k}, v{acc + 9 + 2 * k}')
    q.append(Group(list(soff_code) + [I(f'buffer_store_dwordx4 {vr(acc, 4)}, v{vL16}, {srd(SWS)}, s{sT1} offen sc1', tok)]))
    return q

def softmax_pm(Pa, E, s0):
    q = P(); a, b, c, d = s0, s0 + 1, s0 + 2, s0 + 3
    q.e(f'v_max3_f32 v{a}, v{Pa}, v{Pa+1}, v{Pa+2}')
    q.e(f'v_max3_f32 v{b}, -v{Pa}, -v{Pa+1}, -v{Pa+2}')
    q.e(f'v_max3_f32 v{c}, v{Pa+3}, v{Pa+4}, v{Pa+5}')
    q.e(f'v_max3_f32 v{d}, -v{Pa+3}, -v{Pa+4}, -v{Pa+5}')
    for k in range(6, 16, 4):
        q.e(f'v_max3_f32 v{a}, v{a}, v{Pa+k}, v{Pa+k+1}')
        q.e(f'v_max3_f32 v{b}, v{b}, -v{Pa+k}, -v{Pa+k+1}')
        if k + 3 < 16:
            q.e(f'v_max3_f32 v{c}, v{c}, v{Pa+k+2}, v{Pa+k+3}')
            q.e(f'v_max3_f32 v{d}, v{d}, -v{Pa+k+2}, -v{Pa+k+3}')
    q.e(f'v_max_f32 v{a}, v{a}, v{c}')
    q.e(f'v_max_f32 v{b}, v{b}, v{d}')
    q.e(f'v_permlane32_swap_b32 v{a}, v{b}')
    q.e(f'v_max_f32 v{a}, v{a}, v{b}')
    q.e(f'v_mul_f32 v{a}, {hx(f2u(-LOG2E))}, v{a}')
    q.e(f'v_mov_b32 v{b}, v{a}')
    q.e(f'v_permlane32_swap_b32 v{a}, v{b}')
    for k in range(16):
        q.e(f'v_fma_f32 v{E+k}, v{Pa+k}, s{sC}, v{a}')
        q.e(f'v_fma_f32 v{Pa+k}, -v{Pa+k}, s{sC}, v{b}')
        if k:
            q.e(f'v_exp_f32 v{E+k-1}, v{E+k-1}'); q.e(f'v_exp_f32 v{Pa+k-1}, v{Pa+k-1}')
    q.e(f'v_exp_f32 v{E+15}, v{E+15}'); q.e(f'v_exp_f32 v{Pa+15}, v{Pa+15}')
    q.e(f'v_add_f32 v{a}, v{E}, v{E+1}'); q.e(f'v_add_f32 v{b}, v{Pa}, v{Pa+1}')
    q.e(f'v_add_f32 v{c}, v{E+12}, v{E+13}'); q.e(f'v_add_f32 v{d}, v{Pa+12}, v{Pa+13}')
    for k in range(2, 12):
        q.e(f'v_add_f32 v{a}, v{a}, v{E+k}'); q.e(f'v_add_f32 v{b}, v{b}, v{Pa+k}')
        if k in (2, 3):
            q.e(f'v_add_f32 v{c}, v{c}, v{E+12+k}'); q.e(f'v_add_f32 v{d}, v{d}, v{Pa+12+k}')
    q.e(f'v_fmac_f32 v{a}, v{c}, v{vGM}'); q.e(f'v_fmac_f32 v{b}, v{d}, v{vGM}')
    q.e(f'v_permlane32_swap_b32 v{a}, v{b}')
    q.e(f'v_add_f32 v{a}, v{a}, v{b}')
    q.e(f'v_rcp_f32 v{a}, v{a}')
    q.e(f'v_mov_b32 v{b}, v{a}')
    q.e(f'v_permlane32_swap_b32 v{a}, v{b}')
    q.e(f'v_mul_f32 v{c}, v{a}, v{vGM}'); q.e(f'v_mul_f32 v{d}, v{b}, v{vGM}')
    for k in range(0, 16, 2):
        ra, rb = (a, b) if k < 12 else (c, d)
        q.e(f'v_mul_f32 v{E+k}, v{E+k}, v{ra}'); q.e(f'v_mul_f32 v{E+k+1}, v{E+k+1}, v{ra}')
        q.e(f'v_mul_f32 v{Pa+k}, v{Pa+k}, v{rb}'); q.e(f'v_mul_f32 v{Pa+k+1}, v{Pa+k+1}, v{rb}')
        q.e(f'v_cvt_pk_bf16_f32 v{E + k // 2}, v{E+k}, v{E+k+1}')
        q.e(f'v_cvt_pk_bf16_f32 v{Pa + k // 2}, v{Pa+k}, v{Pa+k+1}')
    return q

vFL16, vFL32 = 19, 4

def hsoff(texts):
    return [I(t) for t in texts] + [I(f's_lshl_b32 s{sT1}, s{sT1}, 10'), I(f's_add_u32 s{sT1}, s{sT1}, s{sHST}')]
def rem_soff(r):
    return hsoff([f's_cmp_gt_u32 s{sJM}, {r}', f's_cselect_b32 s{sT1}, {r}, {r + 4}', f's_mul_i32 s{sT2}, s{sJ}, 7', f's_add_u32 s{sT1}, s{sT1}, s{sT2}'])

def phase1_main(p, half):
    own = [2 * half, 2 * half + 1]; oth = [2 - 2 * half, 3 - 2 * half]
    mf = []
    fr = [(c, ks) for c in range(7) for ks in own]
    order1 = fr[:7] + [(c, ks ^ 2) for c, ks in fr[:7]] + fr[7:10] + [(c, ks ^ 2) for c, ks in fr[7:10]] + fr[10:] + [(c, ks ^ 2) for c, ks in fr[10:]]
    for n, (c, ks) in enumerate(order1):
        base = CU[0] if c < 5 else CU[5]
        pre = [I(f'v_add_u32 v{vTQ}, {hx(CU[5] - CU[0])}, v{vTQ}')] if n == 20 else []
        mf.append(dict(acc=ACC1, xf=4 * c + ks, rd=[(vTQ, CU[c] - base + ks * 1024 + r * 256, f'C{c}') for r in range(2)], pre=pre, first=n == 0))
    n2 = len(mf)
    for s in range(7):
        for ks in range(4):
            for t in range(2):
                pre = []
                isq = half == 0 and t == 0
                if ks == 0:
                    if isq: pre.append(I(f'v_add_u32 v{vTQ}, {hx(DU[s] - (DU[s-1] if s else CU[5]))}, v{vTQ}'))
                    elif s and (half == 0 or t == 0):
                        for a in vTR: pre.append(I(f'v_add_u32 v{a}, {hx(DU[s] - DU[s-1])}, v{a}'))
                if isq: rd = [(vTQ, ks * 1024 + r * 256, f'D{s}') for r in range(2)]
                else: rd = [(vTR[r], ks * 1536 + (0 if half == 0 else 1 + t) * 32, f'D{s}') for r in range(2)]
                mf.append(dict(acc=ACC2 + 16 * t, xf=4 * s + ks, rd=rd, pre=pre, first=s == 0 and ks == 0))
    n3 = len(mf)
    for s in range(7):
        for ks in range(4):
            for t in range(2):
                pre = [I(f'v_add_u32 v{vTA[t]}, {hx(AU[s] - (AU[s-1] if s else 0))}, v{vTA[t]}')] if ks == 0 else []
                mf.append(dict(acc=ACC3 + 16 * t, xf=4 * s + ks, rd=[(vTA[t], ks * 2048 + r * 512, f'A{s}') for r in range(2)], pre=pre, first=s == 0 and ks == 0))
    NB = len(AFR); D = NB - 1
    def reads(n):
        q = list(mf[n]['pre']); b = AFR[n % NB]
        for r, (a, off, obj) in enumerate(mf[n]['rd']):
            assert 0 <= off < 65536
            q.append(I(f'ds_read_b64_tr_b16 {vr(b + 2 * r, 2)}, v{a} offset:{off}', None, obj))
        return q
    for n in range(D): p.extend(reads(n))
    slots = []
    for n, m in enumerate(mf):
        acc = m['acc']
        sl = [I(f'{MF32} {vr(acc, 16)}, {vr(AFR[n % NB], 4)}, {vr(XF + 4 * m["xf"], 4)}, {"0" if m["first"] else vr(acc, 16)}')]
        if n + D < len(mf): sl += reads(n + D)
        slots.append(sl)
    def bar(n, tokwait, after, end, dswait=None, name=None):
        q = P()
        if dswait: q.append(WaitDs(dswait))
        if tokwait: q.append(WaitVm(tokwait))
        q.e('s_nop 0' if opt('nobar', 0) and n >= 28 else 's_barrier'); stamp(q, name or f'b{n}')
        if opt('nodma', 0) and n >= 28: after = None
        if dswait: slots[n].extend(q)
        else: slots[n][1:1] = q
        if after: spread(slots, after, n + 1 + (half if end - n > 3 else 0), end)
    q = P(); dma_D(q, half, 2); dma_D(q, half, 3)
    bar(4, None, q, 22, dswait='xn', name='b1a')
    q = P(); dma_D(q, half, 4)
    bar(22, 'D0', q, n2 + 2, name='b1c')
    q = P()
    q.e(f'v_readfirstlane_b32 s{sTAG}, v28'); q.e(f'v_readfirstlane_b32 s{sTAG+1}, v29')
    q.e(f's_add_u32 s{sTAG}, s{sTAG}, 0x9e3779b9'); q.e(f's_add_u32 s{sTAG+1}, s{sTAG+1}, 0x7f4a7c15')
    slots[23].extend(q)
    b2 = lambda s: n2 + 8 * s + 2
    b3 = lambda s: n3 + 8 * s + 2
    KB = opt('kb', 4)
    K = V = ACC1; Q = ACC2; T8 = 24
    if half == 0:
        f = P()
        f.e(f'v_bfe_u32 v24, v{vLANE}, 2, 2')
        f.e(f'v_lshrrev_b32 v25, 5, v{vLANE}')
        f.e(f'v_bfe_u32 v26, v{vLANE}, 4, 1')
        f.e(f'v_and_b32 v27, 3, v{vLANE}')
        f.e(f'v_lshl_or_b32 v26, v26, 2, v27')
        f.e(f'v_cmp_lt_u32 vcc, 5, v26')
        f.e(f'v_subrev_u32 v27, 1, v26')
        f.e(f'v_mul_u32_u24 v22, 56, v24')
        f.e(f'v_cndmask_b32 v26, v26, v27, vcc')
        f.e(f'v_lshl_add_u32 v22, v26, 3, v22')
        f.e(f'v_add_u32 v22, {MISC}, v22')
        f.e(f'v_mul_u32_u24 v23, 224, v25')
        f.e(f'v_add_u32 v23, v22, v23')
        f.e(f'ds_read_b64_tr_b16 {vr(WPHI, 2)}, v23', None, 'PHI')
        f.e(f'ds_read_b64_tr_b16 {vr(WPHI + 2, 2)}, v23 offset:{8 * 56}', None, 'PHI')
        f.e(f'ds_read_b64_tr_b16 {vr(WPHI + 4, 2)}, v23 offset:{16 * 56}', None, 'PHI')
        f.e(f'ds_read_b64_tr_b16 {vr(WPHI + 6, 2)}, v22 offset:{24 * 56}', None, 'PHI')
        f.e(f'v_cmp_lt_u32 vcc, 31, v{vLANE}')
        f.e(f'v_and_b32 v24, 31, v{vLANE}')
        f.e(f's_lshl_b32 s{sT1}, s{sTT}, 5')
        f.e(f'v_add_u32 v24, s{sT1}, v24')
        f.e(f'v_and_b32 v26, 9, v{vLANE}')
        f.e(f'v_bfe_u32 v27, v{vLANE}, 1, 1')
        f.e(f'v_lshl_or_b32 v26, v27, 2, v26')
        f.e(f'v_bfe_u32 v27, v{vLANE}, 2, 1')
        f.e(f'v_lshl_or_b32 v26, v27, 1, v26')
        f.e(f'v_xor_b32 v4, v26, v25')
        f.e(f'v_lshlrev_b32 v5, 7, v24')
        f.e(f'v_add_u32 v5, {TRK}, v5')
        f.e(f'v_cndmask_b32 v{WPHI + 6}, 0, v{WPHI + 6}, vcc')
        f.e(f'v_cndmask_b32 v{WPHI + 7}, 0, v{WPHI + 7}, vcc')
        interleave(slots, f, 6, n2)
        f = P()
        for k in range(8): f.e(f'v_cvt_pk_bf16_f32 v{T8 + k}, v{K + 2 * k}, v{K + 2 * k + 1}')
        f.e(f'{MF32} {vr(ACC3, 16)}, {vr(WPHI, 4)}, {vr(T8, 4)}, 0')
        f.e(f'{MF32} {vr(ACC3, 16)}, {vr(WPHI + 4, 4)}, {vr(T8 + 4, 4)}, {vr(ACC3, 16)}')
        f.append(Gap(2))
        f.extend(softmax_pm(ACC3, K, 20))
        for ft, src in ((0, K), (1, ACC3)):
            for i in range(4):
                f.e(f'v_xor_b32 v19, {8 * ft + 2 * i}, v4')
                f.e(f'v_lshl_add_u32 v19, v19, 3, v5')
                f.e(f'ds_write_b64 v19, {vr(src + 2 * i, 2)}', 'tr', 'TRK')
        interleave(slots, f, n2 + 2, b2(KB) + 1)
        f = gelu_tile(ACC2 + 16, 20, rem_soff(0), 'HR')
        for k in range(8): f.e(f'v_cvt_pk_bf16_f32 v{T8 + k}, v{Q + 2 * k}, v{Q + 2 * k + 1}')
        f.e(f'{MF32} {vr(K, 16)}, {vr(WPHI, 4)}, {vr(T8, 4)}, 0')
        f.e(f'{MF32} {vr(K, 16)}, {vr(WPHI + 4, 4)}, {vr(T8 + 4, 4)}, {vr(K, 16)}')
        f.append(Gap(2))
        f.extend(softmax_pm(K, Q, 20))
        interleave(slots, f, n3 + 2, b3(opt('ob', 5)))
        q = P(); q.append(WaitVm('HR')); set_flag(q, f's{sFLP}', 4, 0)
        slots[n3 + opt('rf0', 30)].extend(q)
        KVF, NUM, PHQ = [72, 76, 88, 92], 96, [80, 84, 64, 68]
        f = P()
        f.e(f'v_add_u32 v20, {KVBUF}, v{vL16}')
        for s in range(4): f.e(f'ds_read_b128 {vr(KVF[s], 4)}, v20 offset:{s * 1024}', None, 'KVBUF')
        f.append(Gap(2))
        for s in range(4): f.e(f'{MF32} {vr(NUM, 16)}, {vr(KVF[s], 4)}, {vr(PHQ[s], 4)}, {"0" if s == 0 else vr(NUM, 16)}')
        OB = b3(opt('ob', 5))
        interleave(slots, f, OB + 1, OB + 4)
        f = P(); OP = 72
        f.e(f'v_add_f32 v20, {hx(f2u(1e-6))}, v{NUM + 12}')
        f.e(f'v_rcp_f32 v20, v20')
        f.e(f'v_mov_b32 v21, v20')
        f.e(f'v_permlane32_swap_b32 v20, v21')
        f.e(f'v_mul_f32 v21, v20, v{vGM}')
        for k in range(16): f.e(f'v_mul_f32 v{NUM + k}, v{NUM + k}, v{20 if k < 12 else 21}')
        for k in range(8): f.e(f'v_cvt_pk_bf16_f32 v{OP + k}, v{NUM + 2 * k}, v{NUM + 2 * k + 1}')
        f.append(Group(hsoff([f's_lshl_b32 s{sT1}, s{sH}, 1', f's_add_u32 s{sT1}, s{sT1}, 112']) +
            [I(f'buffer_store_dwordx4 {vr(OP, 4)}, v{vL16}, {srd(SWS)}, s{sT1} offen sc1', 'O'),
             I(f'buffer_store_dwordx4 {vr(OP + 4, 4)}, v{vL16}, {srd(SWS)}, s{sT1} offen offset:1024 sc1', 'O')]))
        interleave(slots, f, OB + 6, min(OB + 12, len(slots)))
    else:
        f = P()
        f.e(f'v_bfe_u32 v24, v{vLANE}, 2, 2')
        f.e(f'v_lshrrev_b32 v25, 4, v{vLANE}')
        f.e(f'v_lshl_add_u32 v24, v25, 3, v24')
        f.e(f'v_and_b32 v25, 3, v{vLANE}')
        f.e(f'v_and_b32 v26, 9, v24')
        f.e(f'v_bfe_u32 v27, v24, 1, 1')
        f.e(f'v_lshl_or_b32 v26, v27, 2, v26')
        f.e(f's_lshl_b32 s{sT1}, s{sTT}, 2')
        f.e(f'v_or_b32 v27, s{sT1}, v25')
        f.e(f'v_xor_b32 v26, v26, v27')
        f.e(f'v_lshlrev_b32 v27, 7, v24')
        f.e(f'v_add_u32 v27, {TRK}, v27')
        f.e(f'v_lshl_add_u32 v4, v26, 3, v27')
        f.e(f'v_xor_b32 v5, 16, v4')
        f.e(f'v_bfe_u32 v26, v24, 1, 3')
        f.e(f'v_xor_b32 v26, v26, v25')
        f.e(f'v_lshlrev_b32 v27, 6, v24')
        f.e(f'v_add_u32 v27, {TRV}, v27')
        f.e(f'v_lshl_add_u32 v19, v26, 3, v27')
        f.e(f'v_xor_b32 v20, 32, v19')
        f.e(f'v_xor_b32 v21, 16, v19')
        f.e(f'v_xor_b32 v22, 16, v20')
        f.e(f'v_bfe_u32 v24, v{vLANE}, 4, 1')
        f.e(f'v_and_b32 v25, 15, v{vLANE}')
        f.e(f'v_lshl_or_b32 v24, v24, 5, v25')
        f.e(f'v_lshrrev_b32 v25, 5, v{vLANE}')
        f.e(f'v_lshlrev_b32 v26, 3, v25')
        f.e(f'v_lshl_or_b32 v23, v24, 4, v26')
        f.e(f's_lshl_b32 s{sT4}, s{sH}, 4')
        f.e(f's_add_u32 s{sT4}, s{sT4}, s{sRB}')
        f.e(f's_lshl_b32 s{sT4}, s{sT4}, 2')
        f.e(f's_add_u32 s{sT4}, s{sT4}, s{sTT}')
        f.e(f's_lshl_b32 s{sT4}, s{sT4}, 10')
        f.e(f's_add_u32 s{sT4}, s{sT4}, {KVP}')
        f.e(f's_lshl_b32 s{sT5}, s{sRB}, 3')
        f.e(f's_add_u32 s{sT5}, s{sT5}, s{sKVFL}')
        f.e(f'v_cmp_lt_u32 vcc, 31, v{vLANE}')
        f.e(f'v_and_b32 v24, 31, v{vLANE}')
        f.e(f's_lshl_b32 s{sT1}, s{sTT}, 5')
        f.e(f'v_add_u32 v24, s{sT1}, v24')
        f.e(f'v_bfe_u32 v26, v{vLANE}, 1, 3')
        f.e(f'v_xor_b32 v26, v26, v25')
        f.e(f'v_lshlrev_b32 v27, 6, v24')
        f.e(f'v_add_u32 v27, {TRV}, v27')
        interleave(slots, f, 6, n2)
        f = P()
        f.e(f'v_cndmask_b32 v{V + 12}, 1.0, v{V + 12}, vcc')
        for k in range(8): f.e(f'v_cvt_pk_bf16_f32 v{V + k}, v{V + 2 * k}, v{V + 2 * k + 1}')
        for i in range(4):
            f.e(f'v_xor_b32 v24, {2 * i}, v26')
            f.e(f'v_lshl_add_u32 v24, v24, 3, v27')
            f.e(f'ds_write_b64 v24, {vr(V + 2 * i, 2)}', 'tr', 'TRV')
        interleave(slots, f, n2 + 2, n2 + 10)
        f = P()
        KA, KB0, KB1, KD = ACC3, ACC3 + 4, ACC3 + 8, ACC3 + 24
        def kvrd(kk, o):
            f.e(f'ds_read_b64_tr_b16 {vr(KA + o, 2)}, v4 offset:{kk * 4096}', None, 'TRK')
            f.e(f'ds_read_b64_tr_b16 {vr(KA + o + 2, 2)}, v5 offset:{kk * 4096 + 512}', None, 'TRK')
            f.e(f'ds_read_b64_tr_b16 {vr(KB0 + o, 2)}, v19 offset:{kk * 2048}', None, 'TRV')
            f.e(f'ds_read_b64_tr_b16 {vr(KB0 + o + 2, 2)}, v21 offset:{kk * 2048 + 256}', None, 'TRV')
            f.e(f'ds_read_b64_tr_b16 {vr(KB1 + o, 2)}, v20 offset:{kk * 2048}', None, 'TRV')
            f.e(f'ds_read_b64_tr_b16 {vr(KB1 + o + 2, 2)}, v22 offset:{kk * 2048 + 256}', None, 'TRV')
        kvrd(0, 0); kvrd(1, 12); f.append(Gap(1))
        for kk in range(4):
            o = 12 * (kk & 1)
            f.e(f'{MF16} {vr(KD, 4)}, {vr(KA + o, 4)}, {vr(KB0 + o, 4)}, {"0" if kk == 0 else vr(KD, 4)}')
            f.e(f'{MF16} {vr(KD + 4, 4)}, {vr(KA + o, 4)}, {vr(KB1 + o, 4)}, {"0" if kk == 0 else vr(KD + 4, 4)}')
            if kk < 2: kvrd(kk + 2, o)
            f.append(Gap(1))
        f.append(Gap(1))
        for k in range(4): f.e(f'v_cvt_pk_bf16_f32 v{24 + k}, v{KD + 2 * k}, v{KD + 2 * k + 1}')
        f.e(f'buffer_store_dwordx2 v[24:25], v23, {srd(SWS)}, s{sT4} offen sc1', 'KV')
        f.e(f'buffer_store_dwordx2 v[26:27], v23, {srd(SWS)}, s{sT4} offen offset:256 sc1', 'KV')
        interleave(slots, f, b2(KB) + 1, b2(KB) + 8)
        q = P(); stamp(q, 'preKVack'); q.append(WaitVm('KV')); stamp(q, 'KVack'); set_flag(q, f's{sT5}', 24)
        slots[b2(KB) + 8 + opt('kvf', 8)].extend(q)
        GA, S = 64, 248
        f = P()
        f.e(f'v_and_b32 v{vFL16}, 15, v{vLANE}'); f.e(f'v_lshlrev_b32 v{vFL16}, 3, v{vFL16}')
        f.e(f's_lshl_b32 s{sT4}, s{sH}, 16'); f.e(f's_lshl_b32 s{sT2}, s{sTT}, 10')
        f.e(f's_add_u32 s{sT4}, s{sT4}, s{sT2}'); f.e(f's_add_u32 s{sT4}, s{sT4}, {KVP}')
        for k in range(8): f.e(f'v_mov_b32 v{S + k}, 0')
        slots[n3].extend(f)
        KP = n3 + opt('kp', 18)
        interleave(slots, gelu_tile(ACC2, 20, rem_soff(1), 'HR') + gelu_tile(ACC2 + 16, 20, rem_soff(2), 'HR'), n3 + 2, KP)
        q = P(); flag_load(q, 28, vFL16, f's{sKVFL}'); slots[KP - 6].extend(q)
        q = P(); stamp(q, 'prekv'); poll(q, 'kv', 28, vFL16, f's{sKVFL}'); stamp(q, 'kvpoll')
        slots[KP].extend(q)
        gdst = lambda e: GA + 4 * (e % 12)
        gl = lambda e: Group([I(f'buffer_load_dwordx4 {vr(gdst(e), 4)}, v{vL16}, {srd(SWS)}, s{sT4} offen sc1'), I(f's_add_u32 s{sT4}, s{sT4}, 4096')])
        spread(slots, [gl(e) for e in range(12)], KP, KP + 8)
        def dots(e):
            q = []
            for k in range(4):
                q.append(I(f'v_dot2c_f32_bf16 v{S + 2 * k}, s{sSEL0}, v{gdst(e) + k}'))
                q.append(I(f'v_dot2c_f32_bf16 v{S + 2 * k + 1}, s{sSEL1}, v{gdst(e) + k}'))
            return q
        G1 = KP + opt('g1', 12); G2 = b3(opt('ob', 5))
        q = P()
        for e in range(4): q.extend(dots(e)); q.append(gl(e + 12))
        slots[G1].extend(q)
        q = P(); q.append(WaitVm('HR')); set_flag(q, f's{sFLP}', 24, 128)
        slots[KP + opt('rf1', 10)].extend(q)
        for hb in range(2):
            q = P()
            for e in range(4 + 4 * hb, 8 + 4 * hb): q.extend(dots(e))
            slots[G1 + 3 + 3 * hb].extend(q)
        q = P()
        for e in range(12, 16): q.extend(dots(e))
        for k in range(4): q.e(f'v_cvt_pk_bf16_f32 v{S + k}, v{S + 2 * k}, v{S + 2 * k + 1}')
        q.e(f's_lshl_b32 s{sT2}, s{sTT}, 10'); q.e(f's_add_u32 s{sT2}, s{sT2}, {KVBUF}')
        q.e(f'v_add_u32 v20, s{sT2}, v{vL16}')
        q.e(f'ds_write_b128 v20, {vr(S, 4)}', 'kvb', 'KVBUF')
        slots[G2 - 1].extend(q)
    for s in range(7):
        q = P()
        if s < 2: dma_D(q, half, s + 5)
        if s >= 1: dma_A(q, s - 1)
        if half == 0:
            if s == 5: dma_L(q, 0, 1); dma_L(q, 1, 1)
            if s == KB + 2:
                for n in (2, 3, 4): dma_L(q, n, 1)
        bar(b2(s), f'D{s+1}' if s < 6 else 'A0', q, b2(s + 1), dswait='tr' if s == KB else None, name=f'b2_{s}')
    l3 = {1: [5, 6], 2: [7, 8], 3: [11, 12], 4: [13, 14], 5: [15, 16], 6: [9, 10]}
    for s in range(7):
        q = P()
        if s == 0: dma_A(q, 6)
        if half == 0:
            if s == KB + 2 - 7:
                for n in (2, 3, 4): dma_L(q, n, 1)
            for n in l3.get(s, []): dma_L(q, n, 1)
        bar(b3(s), f'A{s+1}' if s < 6 else None, q, min(b3(s + 1), len(slots)), dswait='kvb' if s == opt('ob', 5) else None, name=f'b3_{s}')
    q = P()
    if half == 0: q.e(f'v_and_b32 v{vFL16}, 15, v{vLANE}'); q.e(f'v_lshlrev_b32 v{vFL16}, 3, v{vFL16}')
    q.e(f'v_and_b32 v{vFL32}, 31, v{vLANE}'); q.e(f'v_lshlrev_b32 v{vFL32}, 3, v{vFL32}')
    flag_load(q, 26, vFL32, f's{sFLD}')
    slots[len(slots) - 4].extend(q)
    if opt('nofill', 0):
        for n in range(n2, len(slots)):
            slots[n] = [x for x in slots[n] if not (isinstance(x, Ins) and x.kind in ('valu', 'trans', 'perm', 'dot') and not x.text.startswith(('v_add_u32', 'v_xor', 'v_lshl', 'v_and', 'v_cmp', 'v_readf', 'v_mov')))]
    for sl in slots: p.extend(sl)

BR = [XF + 4 * k for k in range(27)]
XR = XF + 108
def bload(k):
    return Group([I(f's_add_u32 s{sT1}, s{sHLD}, {LINES[k] * 4096}'),
                  I(f'buffer_load_dwordx4 {vr(BR[k % 27], 4)}, v{vL16}, {srd(SWS)}, s{sT1} offen sc1')])

def phase1_tail(p, half):
    stamp(p, 'endA')
    if half == 0: p.append(WaitVm('O')); set_flag(p, f's{sFLP}', 24, 512)
    poll(p, f'R{half}', 26, vFL32, f's{sFLD}')
    stamp(p, 'Rpoll')
    if half == 1 and opt('tprio', 1): p.e('s_setprio 1')
    code = P()
    for t in range(2):
        so = hsoff([f's_mul_i32 s{sT1}, s{sJ}, 7', f's_add_u32 s{sT1}, s{sT1}, s{sJM}', f's_add_u32 s{sT1}, s{sT1}, {2 * half + t}'])
        code.extend(gelu_tile(ACC3 + 16 * t, 112, so, 'HA', pk=True))
    NR1 = opt('nr1', 8)
    p.extend(mix(code, [bload(k) for k in range(NR1)], 0.0, 0.95))
    if half == 1 and opt('tprio', 1): p.e('s_setprio 0')
    stamp(p, 'gelu')
    p.e(f's_cmp_ge_u32 s{sI}, 28')
    p.e(f's_cbranch_scc1 L_exit{half}')
    q = P(); q.append(Reset()); q.e(f'L_exit{half}:')
    q.e('s_waitcnt vmcnt(0)'); set_flag(q, f's{sFLP}', 24, 256 + 128 * half)
    q.e('s_endpgm')
    slow_paths.append(q)
    return NR1

def phase2(p, half, NR1):
    AY, AS = 96, ACC3
    AR = [64, 68, 80, 84, 240, 244, 248, 252]
    vW = [[8, 9, 10], [11, 12, 14]]
    vO = [[15, 16], [17, 18]]
    vOUT = 20
    code = P()
    code.e(f'v_bfe_u32 v24, v{vLANE}, 2, 2')
    code.e(f'v_bfe_u32 v26, v{vLANE}, 4, 1')
    code.e(f'v_and_b32 v27, 2, v24')
    code.e(f'v_xor_b32 v26, v26, v27')
    code.e(f'v_and_b32 v27, 3, v{vLANE}')
    code.e(f'v_lshlrev_b32 v27, 3, v27')
    code.e(f'v_lshl_add_u32 v27, v24, 7, v27')
    code.e(f'v_lshl_add_u32 v27, v26, 5, v27')
    code.e(f'v_lshrrev_b32 v25, 5, v{vLANE}')
    code.e(f'v_lshl_add_u32 v26, v25, 9, v27')
    code.e(f's_lshl_b32 s{sT2}, s{sTT}, 11')
    code.e(f'v_add_u32 v{vW[0][0]}, s{sT2}, v26')
    code.e(f'v_xor_b32 v{vW[1][0]}, 64, v{vW[0][0]}')
    for nt in range(2):
        code.e(f'v_add_u32 v{vW[nt][1]}, 0x10000, v{vW[nt][0]}')
        code.e(f'v_add_u32 v{vW[nt][2]}, 0x20000, v{vW[nt][0]}')
    p.extend(mix(code, [bload(k) for k in range(NR1, min(12, NR1 + 2))]))
    ks = []
    for n in range(36):
        u = LU[n]; isO = 12 <= n < 20
        if not isO: rd = [[(vW[nt][u // 8], (u % 8) * U + r * 1024) for r in range(2)] for nt in range(2)]
        else: rd = [[(vO[nt][r], u * U - OW) for r in range(2)] for nt in range(2)]
        ks.append(dict(acc=AS if isO else AY, first=n in (0, 12), rd=rd))
    NB = len(AR); D = NB - 2
    mf = [(k, nt) for k in range(36) for nt in range(2)]
    def reads(n):
        k, nt = mf[n]; b = AR[n % NB]
        return [I(f'ds_read_b64_tr_b16 {vr(b + 2 * r, 2)}, v{a} offset:{off}', None, f'L{k}') for r, (a, off) in enumerate(ks[k]['rd'][nt])]
    p.append(WaitVm(['L0', 'L1', 'L2', 'L3'])); p.e('s_barrier')
    stamp(p, 'bPopen')
    for n in range(D): p.extend(reads(n))
    slots = []
    for n, (k, nt) in enumerate(mf):
        acc = ks[k]['acc'] + 16 * nt
        sl = [I(f'{MF32} {vr(acc, 16)}, {vr(AR[n % NB], 4)}, {vr(BR[k % 27], 4)}, {"0" if ks[k]["first"] else vr(acc, 16)}')]
        if n + D < len(mf): sl += reads(n + D)
        slots.append(sl)
    q = P(); q.extend(bload(k) for k in range(min(12, NR1 + 2), 12)); dma_L(q, 17); dma_L(q, 18)
    spread(slots, q, 0, 6)
    q = P()
    q.e(f's_lshr_b32 s{sT2}, s{sTT}, 1')
    q.e(f's_mul_i32 s{sT2}, s{sT2}, {28 * 128}')
    q.e(f's_and_b32 s{sT3}, s{sTT}, 1')
    q.append(Group([I(f's_cmp_eq_u32 s{sT3}, 0'), I(f's_cselect_b64 vcc, -1, 0'), I(f'v_cndmask_b32 v27, v27, v26, vcc')]))
    q.e(f's_lshl_b32 s{sT3}, s{sT3}, 11')
    q.e(f's_add_u32 s{sT2}, s{sT2}, s{sT3}')
    q.e(f's_add_u32 s{sT2}, s{sT2}, {OW}')
    q.e(f'v_add_u32 v{vO[0][0]}, s{sT2}, v26')
    q.e(f's_add_u32 s{sT2}, s{sT2}, 1024')
    q.e(f'v_add_u32 v{vO[0][1]}, s{sT2}, v27')
    for r in range(2): q.e(f'v_xor_b32 v{vO[1][r]}, 64, v{vO[0][r]}')
    q.e(f'v_and_b32 v24, 31, v{vLANE}')
    q.e(f's_lshl_b32 s{sT2}, s{sT2K}, 5')
    q.e(f'v_add_u32 v24, s{sT2}, v24')
    q.e(f'v_mul_u32_u24 v24, 896, v24')
    q.e(f'v_lshl_add_u32 v24, v25, 4, v24')
    q.e(f's_lshl_b32 s{sT2}, s{sNG}, 7')
    q.e(f's_lshl_b32 s{sT3}, s{sTT}, 5')
    q.e(f's_add_u32 s{sT2}, s{sT2}, s{sT3}')
    q.e(f'v_add_u32 v{vOUT}, s{sT2}, v24')
    q.e(f's_add_u32 s{sT4}, s{sFLD}, 512')
    interleave(slots, q, 0, 2)
    LS = opt('ls', 1)
    for s in range(8):
        q = P()
        q.append(WaitVm([f'L{4 * (s + 1) + i}' for i in range(4)]))
        if s == 7: q.append(WaitDs('red'))
        q.e('s_barrier'); stamp(q, f'bP{s}')
        slots[8 * s + 1][1:1] = q
    q = P()
    for n in range(19, 36): dma_L(q, n)
    lstart = {19: 10, 20: 12, 21: 14, 22: 16}
    for n in range(19, 36):
        lo = 8 * ((n - 15) // 4) + 2
        want = opt('l0', 12) + (n - 19) * opt('lstep', 5) // 2
        pos = min(max(lo, want), 8 * (n // 4 - 1) - opt('llead', 6))
        assert pos >= lo, n
        slots[pos].append(q[n - 19])
    AFP = opt('afp', 2); OPOS = opt('opos', 6); A1 = opt('a1', 22)
    q = P(); q.append(WaitVm('HA')); set_flag(q, f's{sFLP}', 24, 256 + 128 * half); stamp(q, 'Aflag')
    slots[AFP].extend(q)
    q = P(); flag_load(q, 28, vFL16, f's{sT4}'); slots[max(2, OPOS - 4)].extend(q)
    q = P(); stamp(q, 'preOpoll'); poll(q, f'O{half}', 28, vFL16, f's{sT4}'); stamp(q, 'Opoll')
    slots[OPOS].extend(q)
    spread(slots, [bload(k) for k in range(12, 20)], OPOS, OPOS + opt('ospan', 12))
    q = P(); flag_load(q, 30, vFL16, f's{sFLA}'); slots[A1 - opt('alead', 6)].extend(q)
    q = P(); stamp(q, 'preApoll'); poll(q, f'A{half}', 30, vFL16, f's{sFLA}'); stamp(q, 'Apoll')
    slots[A1].extend(q)
    spread(slots, [bload(k) for k in range(20, 36)], A1, A1 + opt('aspan', 30))
    q = P(); q.e(f'buffer_load_dwordx4 {vr(XR, 4)}, v{vOUT}, {srd(SX)}, 0 offen'); slots[54].extend(q)
    def red_addr(q, base, dstw, dstr):
        q.e(f's_mul_i32 s{sT2}, s{sTT}, 6144')
        q.e(f's_add_u32 s{sT2}, s{sT2}, {base}')
        q.e(f'v_add_u32 v{dstr}, s{sT2}, v{vL16}')
        q.e(f'v_add_u32 v{dstw}, {base}, v{vL16}')
    def red_write(q, acc, own, aw, uid, obj):
        for kq in range(4):
            if kq < 3:
                q.e(f's_cmp_lg_u32 s{sTT}, {kq}'); q.e(f's_cbranch_scc1 L_red{uid}_{kq + 1}')
            for part in range(4):
                if part == kq: continue
                slot = kq if kq < part else kq - 1
                for hh in range(2):
                    q.e(f'ds_write_b128 v{aw}, {vr(acc + 8 * part + 4 * hh, 4)} offset:{part * 6144 + slot * 2048 + hh * 1024}', 'red' if kq == 0 else 'NOTRACK', obj)
            for k in range(0, 8, 2): q.e(f'v_mov_b64 {vr(own + k, 2)}, {vr(acc + 8 * kq + k, 2)}')
            if kq < 3: q.e(f's_branch L_red{uid}_4'); q.e(f'L_red{uid}_{kq + 1}:')
        q.e(f'L_red{uid}_4:')
    SO, YO, SR, YR, G, XU_ = 72, 88, ACC3, 168, 192, 200
    q = P(); red_addr(q, REDS[half], 24, 25); red_write(q, AS, SO, 24, f'S{half}', f'REDS{half}'); slots[51].extend(q)
    q = P()
    for src in range(3):
        for hh in range(2): q.e(f'ds_read_b128 {vr(SR + 8 * src + 4 * hh, 4)}, v25 offset:{src * 2048 + hh * 1024}', None, f'REDS{half}')
    red_addr(q, REDY[half], 24, 26)
    slots[58].extend(q)
    q = P()
    for k in range(8): q.e(f'v_add_f32 v{SR + 8 + k}, v{SR + 8 + k}, v{SR + 16 + k}')
    for k in range(8): q.e(f'v_add_f32 v{SO + k}, v{SO + k}, v{SR + k}')
    for k in range(8): q.e(f'v_add_f32 v{SO + k}, v{SO + k}, v{SR + 8 + k}')
    q.e(f'v_permlane32_swap_b32 v{XR}, v{XR + 2}')
    q.e(f'v_permlane32_swap_b32 v{XR + 1}, v{XR + 3}')
    for k in range(4):
        q.e(f'v_lshlrev_b32 v{XU_ + 2 * k}, 16, v{XR + k}')
        q.e(f'v_and_b32 v{XU_ + 2 * k + 1}, 0xffff0000, v{XR + k}')
    interleave(slots, q, 60, 70)
    q = P(); q.e('s_barrier'); stamp(q, 'bP8'); slots[65][1:1] = q
    for sl in slots: p.extend(sl)
    stamp(p, 'endP')
    p.e('s_nop 7')
    red_write(p, AY, YO, 24, f'Y{half}', f'REDY{half}')
    p.append(WaitDs())
    p.e('s_barrier')
    stamp(p, 'bY')
    for src in range(3):
        for hh in range(2): p.e(f'ds_read_b128 {vr(YR + 8 * src + 4 * hh, 4)}, v26 offset:{src * 2048 + hh * 1024}', None, f'REDY{half}')
    pr = lambda b, k: vr(b + 2 * k, 2)
    for src in range(3):
        for k in range(4): p.e(f'v_pk_add_f32 {pr(YO, k)}, {pr(YO, k)}, {pr(YR + 8 * src, k)}')
    for k in range(4): p.e(f'v_pk_mul_f32 {pr(G, k)}, {pr(YO, k)}, s[{sC}:{sC+1}] op_sel_hi:[1,0] neg_lo:[1,0] neg_hi:[1,0]')
    for k in range(8): p.e(f'v_exp_f32 v{G + k}, v{G + k}')
    for k in range(4): p.e(f'v_pk_mul_f32 {pr(SO, k)}, {pr(SO, k)}, {pr(YO, k)}')
    for k in range(4): p.e(f'v_pk_add_f32 {pr(G, k)}, {pr(G, k)}, 1.0 op_sel_hi:[1,0]')
    for k in range(8): p.e(f'v_rcp_f32 v{G + k}, v{G + k}')
    for k in range(4): p.e(f'v_pk_fma_f32 {pr(XU_, k)}, {pr(SO, k)}, {pr(G, k)}, {pr(XU_, k)}')
    for k in range(4): p.e(f'v_cvt_pk_bf16_f32 v{G + k}, v{XU_ + 2 * k}, v{XU_ + 2 * k + 1}')
    p.e(f'v_permlane32_swap_b32 v{G}, v{G + 2}')
    p.e(f'v_permlane32_swap_b32 v{G + 1}, v{G + 3}')
    p.e(f'buffer_store_dwordx4 {vr(G, 4)}, v{vOUT}, {srd(SOUT)}, 0 offen' + ('', ' sc1', ' nt', ' sc0 sc1')[opt('osc', 0)])
    stamp(p, 'end'); dump(p)
    if half == 0:
        p.e(f's_or_b32 s{sT1}, s2, s{sW}')
        p.e(f's_cmp_lg_u32 s{sT1}, 0')
        p.e(f's_cbranch_scc1 L_end')
        set_flag(p, '0', 24)
    p.e('s_endpgm')

def build():
    pro = prologue()
    outs = []; fulls = []
    for half in range(2):
        p = P()
        x_stage(p, half); phase1_main(p, half); nr = phase1_tail(p, half); phase2(p, half, nr)
        mark = I(f'L_half{half}:')
        full = finalize(list(pro) + [mark] + list(p)); fulls.append(full)
        outs.append(full[full.index(mark):])
    if not (opt('nobar', 0) or opt('nodma', 0)): check_lds(fulls, RANGES)
    assert len({sum(x.op == 's_barrier' for x in f) for f in fulls}) == 1
    pro_f = finalize(list(pro))
    slow = []
    for q in slow_paths: slow += finalize(list(q))
    hdr = open('recurrent_scan__linear_kernel_hedgehog__geglu_ffn__prompt.s.ref').read().split('\n')
    top = [l for l in hdr if l.startswith(';') and '@launch' not in l and 'Override' not in l and 'grid=ceil' not in l]
    s = '\n'.join(top) + '\n; @launch grid=(256,1,1) block=(512,1,1) lds=163840\n'
    s += f'.amdgcn_target "amdgcn-amd-amdhsa--gfx950"\n.text\n.globl {NAME}\n.p2align 8\n.type {NAME},@function\n{NAME}:\n'
    s += text(pro_f) + text(outs[0]) + text(outs[1]) + text(slow)
    s += 'L_end:\n    s_endpgm\nL_codeend:\n'
    s += f'''.section .rodata,"a"
.p2align 6
.amdhsa_kernel {NAME}
  .amdhsa_next_free_vgpr 256
  .amdhsa_next_free_sgpr 96
  .amdhsa_accum_offset 256
  .amdhsa_group_segment_fixed_size 0
  .amdhsa_kernarg_size 88
  .amdhsa_user_sgpr_count 2
  .amdhsa_user_sgpr_kernarg_segment_ptr 1
  .amdhsa_system_sgpr_workgroup_id_x 1
.end_amdhsa_kernel
'''
    return s

if __name__ == '__main__':
    open(sys.argv[1], 'w').write(build())
    if DEBUG: json.dump(STAMPS, open('stamps.json', 'w'))
```

```python
import sys, struct, math, json
sys.path.insert(0, 'work')
from asmlib import *

NAME = 'recurrent_scan__linear_kernel_hedgehog__geglu_ffn__prompt_kernel'
def f2u(x): return struct.unpack('<I', struct.pack('<f', x))[0]
def hx(x): return '0x%08x' % (x & 0xffffffff)
LOG2E = 1.4426950408889634
ARGS = sys.argv[2:]
DEBUG = 'dbg' in ARGS
def opt(name, default):
    for a in ARGS:
        if a.startswith(name + '='): return int(a.split('=')[1])
    return default

EP, KVFL, HFL, KVP, HB = 0x0, 0x1000, 0x10000, 0x40000, 0x200000
FLT = 1024
TBLK = 148 * 1024
WS_SIZE = HB + 64 * TBLK
DBGOFF = 0xC00000
if DEBUG: WS_SIZE = 0xD00000
SX, SQKV, SG, SU, SWD, SWO, SWS, SOUT, SPHI, SREM = 8, 12, 16, 20, 24, 28, 32, 36, 40, 44
def srd(b): return f's[{b}:{b+3}]'
sW, sRB, sH, sJ, sJM, sCH, sW1K, sREML = 48, 49, 50, 51, 52, 53, 54, 55
sTAG = 56
sTT, sT, sXI, sI = 58, 59, 60, 61
sC = 62; sHST = 63
sT0, sT1, sT2, sT3, sT4, sT5 = 64, 65, 66, 67, 68, 69
sONE2, sSEL0, sSEL1 = 70, 71, 72
sHLD, sFLD, sNG, sT2K, sFLA, sFLP, sKVFL, sRDY = 73, 74, 75, 76, 77, 78, 82, 83
sSPIN = 79
sPERM = 83
sT1K = 90
vOR3 = 22
sPC = 80
vLANE, vL16, vGM, vIR2, vCR, vK1, vK2 = 1, 2, 3, 4, 5, 6, 7
vOQ = 8; vOR = [9, 10]; vTQ = 11; vTR = [12, 13]; vDU = [14, 15, 16]
vOA = [17, 18]; vOW2 = 19; vTA = [20, 21]; vDA = [16, 22]
vOX = 31
ACC3, ACC1, ACC2, XF = 32, 64, 80, 128
AFR = [112, 116, 120, 124]
ASEL, ACS, BM, CFR = 240, 244, 246, 250
def vr(b, n=1): return f'v{b}' if n == 1 else f'v[{b}:{b+n-1}]'

U = 8192
XU = lambda p: 2 * p * U
CU = [14 * U, 15 * U, 16 * U, 17 * U, 18 * U, 0, U]
DU = [2 * U, 4 * U, 6 * U, 8 * U, 10 * U, 12 * U, 14 * U]
AU = [0, 2 * U, 4 * U, 6 * U, 8 * U, 10 * U, 12 * U]
TRV, TRK = 16 * U, 17 * U
MISC = 19 * U; CSB = MISC + 2048; STAT = MISC + 4096; KVBUF = MISC + 4096
LINES = [L for L in range(28) if L % 7 in (1, 3, 5)] + [L for L in range(28) if L % 7 in (0, 2, 4, 6)] + list(range(28, 36))
LU = [16, 17, 18, 14, 15, 0, 1, 2, 3, 4, 5, 6, 7, 8, 9, 10, 11, 12, 13,
      16, 17, 18, 14, 15, 0, 1, 2, 3, 4, 5, 6, 7, 8, 9, 10, 11]
OW = 4 * U
REDS, REDY = [4 * U, 15 * U], [0, 12 * U]
LOG = 32
RANGES = {'PHI': (MISC, MISC + 2048), 'STAT': (STAT, STAT + 4096), 'KVBUF': (KVBUF, KVBUF + 4096), 'TRV': (TRV, TRV + U), 'TRK': (TRK, TRK + 2 * U),
          'CS1': (CSB, CSB + 2048), 'CS2': (CSB, CSB + 2048), 'CS3': (CSB, CSB + 2048)}
for h_ in range(2):
    RANGES[f'REDS{h_}'] = (REDS[h_], REDS[h_] + 3 * U); RANGES[f'REDY{h_}'] = (REDY[h_], REDY[h_] + 3 * U)
for c in range(7):
    RANGES[f'X{c}'] = (XU(c), XU(c) + 2 * U); RANGES[f'C{c}'] = (CU[c], CU[c] + U)
    RANGES[f'D{c}'] = (DU[c], DU[c] + 2 * U); RANGES[f'A{c}'] = (AU[c], AU[c] + 2 * U)
for n in range(36): RANGES[f'L{n}'] = (LU[n] * U, LU[n] * U + U)

MF32 = 'v_mfma_f32_32x32x16_bf16'
MF16 = 'v_mfma_f32_16x16x32_bf16'

class P(list):
    def e(self, t, tok=None, obj=None): self.append(I(t, tok, obj)); return self

STAMPS = {}
def stamp(p, name, rt=False):
    if not DEBUG: return
    if opt('light', 0) and name not in ('karg', 'bX0', 'bX7', 'end1', 'b2_0', 'b3_0', 'b2_6', 'endA', 'bPopen', 'bP2', 'bP4', 'bP5', 'endP', 'end', 'rt_end'): return
    k = STAMPS.setdefault(name, len(STAMPS)); assert k < 64
    p.append(Group([I(f'{"s_memrealtime" if rt else "s_memtime"} s[84:85]'), I('s_waitcnt lgkmcnt(0)'), I(f'v_writelane_b32 v0, s84, {k}')]))
def dump(p):
    if not DEBUG: return
    stamp(p, 'rt_end', True)
    p.e(f's_lshl_b32 s84, s2, 3'); p.e(f's_add_u32 s84, s84, s{sW}'); p.e('s_lshl_b32 s84, s84, 8'); p.e(f's_add_u32 s84, s84, {DBGOFF}')
    p.e(f'v_lshlrev_b32 v31, 2, v{vLANE}')
    p.e(f'buffer_store_dword v0, v31, {srd(SWS)}, s84 offen')
    if opt('dbgwg', -1) >= 0:
        p.e(f's_lshl_b32 s84, s2, 3'); p.e(f's_add_u32 s84, s84, s{sW}')
        p.e(f's_cmp_lg_u32 s84, {opt("dbgwg", 0) * 8}')
        p.e(f's_cbranch_scc1 L_nodbg{len(slow_paths)}')
        p.e('s_load_dwordx2 s[90:91], s[0:1], 72'); p.e('v_readlane_b32 s86, v0, 0'); p.e('v_readlane_b32 s87, v0, 1'); p.e('s_waitcnt lgkmcnt(0)')
        p.e('v_subrev_u32 v30, s86, v0'); p.e('v_subrev_u32 v29, s87, v0')
        p.e(f'v_cmp_eq_u32 vcc, {STAMPS["rt_end"]}, v{vLANE}'); p.e('v_cndmask_b32 v30, v30, v29, vcc')
        p.e('global_store_dword v31, v30, s[90:91]')
        p.e(f'L_nodbg{len(slow_paths)}:')

def dma(p, s, voff, pre, m0base, m0const, tok):
    p.append(Group([I(f's_add_u32 m0, s{m0base}, {m0const}')] + [I(t) for t in pre] +
                   [I(f'buffer_load_dwordx4 v{voff}, {srd(s)}, s{sT0} offen lds', tok, tok)]))
def cidx(pos): return f's_bfe_u32 s{sT0}, s{sCH}, {hx((4 << 16) | (4 * pos))}'
def dma_X(p, c):
    dma(p, SX, vOX, [cidx(c), f's_lshl_b32 s{sT0}, s{sT0}, 7'], sW1K, XU(c), f'X{c}')
    dma(p, SX, vOX, [f's_add_u32 s{sT0}, s{sT0}, {64 * 896}'], sW1K, XU(c) + U, f'X{c}')
def dma_C(p, half, c):
    dma(p, SQKV, vOQ, [cidx(c), f's_mul_i32 s{sT0}, s{sT0}, {64 * 2688}', f's_add_u32 s{sT0}, s{sT0}, {896 * (1 + half)}'], sW1K, CU[c], f'C{c}')
def dma_D(p, half, c, solo=False):
    k26 = [cidx(c), f's_mul_i32 s{sT0}, s{sT0}, {64 * 2688}']; k35 = [cidx(c), f's_mul_i32 s{sT0}, s{sT0}, {64 * 3584}']
    if solo:
        if half == 0: return
        dma(p, SQKV, vOQ, k26, sT1K, DU[c], f'D{c}')
        dma(p, SG, vOR3, k35, sT1K, DU[c] + 4096, f'D{c}')
    if half == 0:
        dma(p, SQKV, vOQ, k26, sT1K, DU[c], f'D{c}')
        dma(p, SREM, vOR[0], k35, sREML, DU[c] + 4096, f'D{c}')
    else:
        dma(p, SREM, vOR[0], [] if solo else k35, sREML, DU[c] + 4096, f'D{c}')
        dma(p, SREM, vOR[1], [], sREML, DU[c] + 5120, f'D{c}')
def dma_A(p, pos, half, solo=None):
    k35 = [cidx(pos), f's_mul_i32 s{sT0}, s{sT0}, {64 * 3584}']; up = [f's_add_u32 s{sT0}, s{sT0}, {32 * 3584}']
    if solo is not None and half != solo: return
    for hh in ((0, 1) if solo is not None else (half,)):
        pre = (k35 if hh == 0 or solo is None else []) + (up if hh else [])
        dma(p, SG, vOA[0], pre, sT1K, AU[pos] + 4096 * hh, f'A{pos}')
        dma(p, SU, vOA[1], [], sT1K, AU[pos] + U + 4096 * hh, f'A{pos}')
def dma_L(p, n, half, solo=None):
    L = LINES[n]
    s, row = (SWD, L * 64) if L < 28 else (SWO, (L - 28) * 56)
    if solo is not None and half != solo: return
    for hh in ((0, 1) if solo is not None else (half,)):
        dma(p, s, vOW2, [f's_mov_b32 s{sT0}, {(row + 32 * hh) * 896}'], sT1K, LU[n] * U + 4096 * hh, f'L{n}')
def spread(slots, atoms, start, end):
    n = len(atoms)
    for k, x in enumerate(atoms): slots[start + (k * (end - start)) // n].append(x)
def mix(code, atoms, lead=0.0, tail=1.0):
    total = sum(x.cost for x in code); out = P(); acc = 0; k = 0; n = len(atoms)
    for x in code:
        while k < n and acc >= total * (lead + (tail - lead) * k / n): out.append(atoms[k]); k += 1
        out.append(x); acc += x.cost
    out.extend(atoms[k:])
    return out

slow_paths = []
def flag_load(p, vflag, vaddr, soff):
    p.e(f'buffer_load_dwordx2 {vr(vflag, 2)}, v{vaddr}, {srd(SWS)}, {soff} offen sc1')
def poll(p, uid, vflag, vaddr, soff):
    p.e(f'v_cmp_ne_u64 vcc, s[{sTAG}:{sTAG+1}], {vr(vflag, 2)}')
    p.e(f's_cbranch_vccnz L_slow_{uid}')
    p.e(f'L_res_{uid}:')
    q = P(); q.append(Reset())
    q.e(f'L_slow_{uid}:')
    q.e(f's_mov_b32 s{sSPIN}, 0x40000')
    q.e(f'L_spin_{uid}:')
    flag_load(q, vflag, vaddr, soff)
    q.e('s_waitcnt vmcnt(0)')
    q.e(f'v_cmp_ne_u64 vcc, s[{sTAG}:{sTAG+1}], {vr(vflag, 2)}')
    q.e(f's_cbranch_vccz L_res_{uid}')
    q.e(f's_sleep {opt("sleep", 2)}')
    q.e(f's_sub_u32 s{sSPIN}, s{sSPIN}, 1')
    q.e(f's_cmp_lg_u32 s{sSPIN}, 0')
    q.e(f's_cbranch_scc1 L_spin_{uid}')
    q.e(f's_branch L_res_{uid}')
    slow_paths.append(q)
def set_flag(p, soff, vt, off=0):
    p.append(Group([I(f'v_mov_b32 v{vt}, s{sTAG}'), I(f'v_mov_b32 v{vt+1}, s{sTAG+1}'),
        I(f's_mov_b64 exec, 1'),
        I(f'buffer_store_dwordx2 {vr(vt, 2)}, off, {srd(SWS)}, {soff} offset:{off} sc1'),
        I(f's_mov_b64 exec, -1')]))
def srd_consts(p, b, n):
    p.e(f's_mov_b32 s{b+2}, {n}'); p.e(f's_mov_b32 s{b+3}, 0x20000')

def prologue():
    p = P()
    p.e('s_cmp_ge_u32 s2, 256')
    p.e('s_cbranch_scc1 L_end')
    if DEBUG: p.e('s_memtime s[86:87]'); p.e('s_memrealtime s[88:89]')
    p.e(f's_load_dwordx4 s[{SX}:{SX+3}], s[0:1], 0')
    p.e(f's_getpc_b64 s[{sPC}:{sPC+1}]')
    p.e('L_pcbase:')
    p.e(f's_lshr_b32 s{sI}, s2, 3')
    p.e(f'v_lshrrev_b32 v48, 6, v0')
    p.e(f'v_and_b32 v49, 1, v0')
    p.e(f'v_lshl_or_b32 v49, v48, 1, v49')
    p.e(f's_lshl_b32 s{sT0}, s{sI}, 4')
    p.e(f'v_add_u32 v49, s{sT0}, v49')
    p.e(f'v_lshlrev_b32 v49, 7, v49')
    p.e(f'v_min_u32 v49, (L_codeend - L_pcbase - 4), v49')
    p.e(f'global_load_dword v56, v49, s[{sPC}:{sPC+1}]')
    p.e(f'v_readfirstlane_b32 s{sW}, v48')
    p.e(f's_and_b32 s{sXI}, s2, 7')
    p.e(f'v_and_b32 v{vLANE}, 63, v0')
    p.e(f's_and_b32 s{sT0}, s{sXI}, 1')
    p.e(f's_lshl_b32 s{sT0}, s{sT0}, 3')
    p.e(f's_and_b32 s{sT1}, s{sI}, 7')
    p.e(f's_add_u32 s{sRB}, s{sT0}, s{sT1}')
    p.e(f's_lshr_b32 s{sT2}, s{sI}, 3')
    p.e(f's_lshr_b32 s{sT0}, s{sXI}, 1')
    p.e(f's_lshl_b32 s{sT0}, s{sT0}, 2')
    p.e(f's_add_u32 s{sH}, s{sT0}, s{sT2}')
    p.e(f'v_lshrrev_b32 v50, 3, v{vLANE}')
    p.e(f's_lshl_b32 s{sT2}, s{sT2}, 1')
    p.e(f's_add_u32 s{sT1}, s{sT1}, s{sT2}')
    p.e(f'v_lshrrev_b32 v51, 4, v{vLANE}')
    p.e(f's_sub_u32 s{sT2}, s{sT1}, 7')
    p.e(f's_cmp_ge_u32 s{sT1}, 7')
    p.e(f's_cselect_b32 s{sT1}, s{sT2}, s{sT1}')
    p.e(f'v_and_b32 v52, 7, v{vLANE}')
    p.e(f's_lshl_b32 s{sT1}, s{sT1}, 2')
    p.e(f's_mov_b32 s{sT2}, 0x06543210')
    p.e(f's_mov_b32 s{sT3}, 0x00654321')
    p.e(f's_lshr_b64 s[{sT2}:{sT3}], s[{sT2}:{sT3}], s{sT1}')
    p.e(f's_mov_b32 s{sCH}, s{sT2}')
    p.e(f's_lshl_b32 s{sW1K}, s{sW}, 10')
    p.e(f's_lshl_b32 s{sT0}, s{sRB}, 7')
    p.e(f's_lshl_b32 s{sT1}, s{sW}, 3')
    p.e(f's_add_u32 s{sT0}, s{sT0}, s{sT1}')
    p.e(f'v_add_u32 v{vOX}, s{sT0}, v50')
    p.e(f'v_mul_u32_u24 v{vOX}, 896, v{vOX}')
    p.e(f's_and_b32 s{sT1}, s{sW}, 1')
    p.e(f's_lshl_b32 s{sT1}, s{sT1}, 2')
    p.e(f'v_xor_b32 v51, s{sT1}, v51')
    p.e(f'v_xor_b32 v51, v51, v52')
    p.e(f'v_lshl_add_u32 v{vOX}, v51, 4, v{vOX}')
    srd_consts(p, SQKV, 448 * 2688)
    p.e('s_waitcnt lgkmcnt(0)')
    p.e(f's_mov_b32 s{SQKV}, s{SX+2}'); p.e(f's_mov_b32 s{SQKV+1}, s{SX+3}')
    srd_consts(p, SX, 1835008)
    if DEBUG:
        STAMPS['start'] = 0; STAMPS['rt_start'] = 1
        p.e('v_writelane_b32 v0, s86, 0'); p.e('v_writelane_b32 v0, s88, 1')
    stamp(p, 'karg')
    dma_X(p, 0)
    for b, off in ((SG, 40), (SU, 48), (SPHI, 16), (SWO, 24), (SWD, 56), (SOUT, 64), (SWS, 80)):
        p.e(f's_load_dwordx2 s[{b}:{b+1}], s[0:1], {off}')
    p.e(f's_and_b32 s{sTT}, s{sW}, 3')
    p.e(f's_cmp_ge_u32 s{sW}, 4')
    p.e('s_cbranch_scc1 L_half1')
    return p

def setup(half):
    e = P(); f = e; g = e
    f.e(f's_lshl_b32 s{sT1}, s{sTT}, 4')
    f.e(f'v_lshrrev_b32 v53, 2, v{vLANE}')
    f.e(f'v_add_u32 v53, s{sT1}, v53')
    f.e(f'v_mul_u32_u24 v{vOQ}, 2688, v53')
    f.e(f'v_and_b32 v53, 3, v{vLANE}')
    f.e(f'v_lshlrev_b32 v53, 4, v53')
    f.e(f'v_min_u32 v53, 40, v53')
    f.e(f's_mul_i32 s{sT1}, s{sH}, 56')
    f.e(f'v_add3_u32 v{vOQ}, v{vOQ}, v53, s{sT1}')
    f.e(f'v_and_b32 v53, 31, v{vLANE}')
    f.e(f'v_lshrrev_b32 v54, 5, v{vLANE}')
    f.e(f'v_bfe_u32 v49, v{vLANE}, 1, 3')
    f.e(f'v_xor_b32 v49, v49, v54')
    f.e(f'v_lshlrev_b32 v53, 7, v53')
    f.e(f's_lshl_b32 s{sT1}, s{sTT}, 12')
    f.e(f'v_add_u32 v53, s{sT1}, v53')
    f.e(f's_mov_b32 s{sONE2}, 0x3f803f80')
    for ks in range(4):
        f.e(f'v_xor_b32 v{24 + ks}, {2 * ks}, v49')
        f.e(f'v_lshl_add_u32 v{24 + ks}, v{24 + ks}, 4, v53')
    g.e(f'v_bfe_u32 v39, v{vLANE}, 4, 1')
    g.e(f'v_bfe_u32 v36, v{vLANE}, 2, 2')
    g.e(f'v_lshrrev_b32 v37, 5, v{vLANE}')
    g.e(f'v_and_b32 v38, 3, v{vLANE}')
    g.e(f'v_lshl_add_u32 v37, v37, 3, v36')
    g.e(f'v_lshlrev_b32 v{vTQ}, 6, v37')
    g.e(f'v_lshl_add_u32 v{vTQ}, v39, 5, v{vTQ}')
    g.e(f'v_lshl_add_u32 v{vTQ}, v38, 3, v{vTQ}')
    g.e(f'v_add_u32 v{vTQ}, {CU[0] + half * 4096}, v{vTQ}')
    g.e(f's_lshl_b32 s{sT1}, s{sTT}, 10')
    g.e(f'v_add_u32 v{vDU[0]}, s{sT1}, v{vTQ}')
    g.e(f'v_lshrrev_b32 v35, 2, v{vLANE}')
    g.e(f'v_xor_b32 v35, v35, v39')
    g.e(f'v_and_b32 v35, 1, v35')
    g.e(f'v_cmp_eq_u32 vcc, 0, v35')
    g.e(f'v_mov_b32 v35, s{sONE2}')
    g.e(f's_nop 0')
    g.e(f'v_cndmask_b32 v{ASEL}, 0, v35, vcc')
    for k in range(1, 4): g.e(f'v_mov_b32 v{ASEL + k}, v{ASEL}')
    f = P()
    for b, n in ((SG, 448 * 3584), (SU, 448 * 3584), (SPHI, 16 * 1568), (SWO, 448 * 896), (SWD, 1792 * 896), (SOUT, 1835008), (SWS, WS_SIZE)):
        srd_consts(f, b, n)
    f.e(f's_lshl_b32 s{sT1K}, s{sTT}, 10')
    f.e('s_waitcnt lgkmcnt(0)')
    sl = [0, 1, 3, 2, 4, 5, 7, 6, 9, 8, 10, 11, 13, 12, 14, 15]
    lo = sum(sl[k] << (4 * k) for k in range(8)); hi = sum(sl[8 + k] << (4 * k) for k in range(8))
    f.e(f's_mov_b32 s{sT2}, {hx(lo)}')
    f.e(f's_mov_b32 s{sT3}, {hx(hi)}')
    f.e(f's_lshl_b32 s{sT1}, s{sH}, 2')
    f.e(f's_lshr_b64 s[{sT2}:{sT3}], s[{sT2}:{sT3}], s{sT1}')
    f.e(f's_and_b32 s{sJ}, s{sT2}, 15')
    f.e(f's_and_b32 s{sJM}, s{sJ}, 3')
    if half == 0:
        f.e(f's_mov_b32 s{SREM}, s{SG}'); f.e(f's_mov_b32 s{SREM+1}, s{SG+1}')
        f.e(f's_lshl_b32 s{sREML}, s{sTT}, 10')
        f.e(f's_lshl_b32 s{sT2}, s{sTT}, 6')
        f.e(f's_mov_b32 s{sT1}, 0')
    else:
        f.append(Group([I(f's_cmp_eq_u32 s{sTT}, 0'), I(f's_cselect_b32 s{SREM}, s{SG}, s{SU}'), I(f's_cselect_b32 s{SREM+1}, s{SG+1}, s{SU+1}'),
                        I(f's_cselect_b32 s{sT1}, 0, 4'), I(f's_cselect_b32 s{sT2}, 3, s{sTT}')]))
        f.e(f's_lshl_b32 s{sREML}, s{sTT}, 11')
        f.e(f's_add_u32 s{sREML}, s{sREML}, 4096')
        f.e(f's_lshl_b32 s{sT2}, s{sT2}, 7')
        f.e(f's_sub_u32 s{sT2}, s{sT2}, 128')
    srd_consts(f, SREM, 448 * 3584)
    f.e(f's_mul_i32 s{sT3}, s{sJ}, 224')
    for n in range(1 + 2 * half):
        if n == 1: f.e(f's_add_u32 s{sT2}, s{sT2}, 64')
        if n == 2: f.e(f's_lshl_b32 s{sT2}, s{sTT}, 6'); f.e(f's_mov_b32 s{sT1}, 0')
        f.e(f'v_add_u32 v53, s{sT2}, v{vLANE}')
        f.e(f'v_mul_u32_u24 v54, 683, v53')
        f.e(f'v_lshrrev_b32 v54, 12, v54')
        f.e(f'v_mul_u32_u24 v55, 6, v54')
        f.e(f'v_sub_u32 v55, v53, v55')
        f.e(f'v_xor_b32 v54, s{sT1}, v54')
        f.e(f'v_mul_u32_u24 v{(vOR + [vOR3])[n]}, 3584, v54')
        f.e(f'v_lshrrev_b32 v54, 1, v55')
        f.e(f'v_add_u32 v53, 4, v54')
        f.e(f'v_cmp_gt_u32 vcc, s{sJM}, v54')
        f.e(f'v_and_b32 v55, 1, v55')
        f.e(f'v_cndmask_b32 v54, v53, v54, vcc')
        f.e(f'v_lshl_or_b32 v54, v54, 1, v55')
        f.e(f'v_lshlrev_b32 v54, 4, v54')
        f.e(f'v_add3_u32 v{(vOR + [vOR3])[n]}, v{(vOR + [vOR3])[n]}, v54, s{sT3}')
    g = f
    g.e(f's_lshl_b32 s{sT1}, s{sTT}, 3')
    g.e(f'v_add_u32 v53, s{sT1}, v50')
    g.e(f'v_bfe_u32 v51, v{vLANE}, 4, 1')
    g.e(f'v_lshlrev_b32 v49, 1, v51')
    g.e(f'v_xor_b32 v49, v49, v52')
    g.e(f's_lshl_b32 s{sT2}, s{sJM}, 5')
    g.e(f's_add_u32 s{sT2}, s{sT2}, s{sT3}')
    g.e(f'v_mul_u32_u24 v{vOW2}, 3584, v53')
    g.e(f'v_add_u32 v{vOW2}, s{sT2}, v{vOW2}')
    g.e(f'v_lshl_add_u32 v{vOA[0]}, v49, 4, v{vOW2}')
    g.e(f'v_xor_b32 v49, 4, v49')
    g.e(f'v_lshl_add_u32 v{vOA[1]}, v49, 4, v{vOW2}')
    g.e(f's_mul_i32 s{sT2}, s{sI}, 37')
    g.e(f's_lshr_b32 s{sT2}, s{sT2}, 8')
    g.e(f's_mul_i32 s{sT3}, s{sT2}, 7')
    g.e(f's_sub_u32 s{sNG}, s{sI}, s{sT3}')
    g.e(f's_lshl_b32 s{sT3}, s{sXI}, 2')
    g.e(f's_add_u32 s{sT2}, s{sT2}, s{sT3}')
    g.e(f's_lshl_b32 s{sT2}, s{sT2}, 1')
    g.e(f's_add_u32 s{sT2K}, s{sT2}, {half}')
    g.e(f's_and_b32 s{sT2K}, s{sT2K}, {1 if opt("fakeH", 0) else 63}')
    if opt('fakeW', 0): g.e(f's_mov_b32 s{sNG}, 0')
    g.e(f'v_lshlrev_b32 v49, 2, v51')
    g.e(f'v_xor_b32 v49, v49, v52')
    g.e(f'v_mul_u32_u24 v53, 896, v53')
    g.e(f's_lshl_b32 s{sT2}, s{sNG}, 7')
    g.e(f'v_add_u32 v53, s{sT2}, v53')
    g.e(f'v_lshl_add_u32 v{vOW2}, v49, 4, v53')
    g.e(f'v_lshlrev_b32 v{vL16}, 4, v{vLANE}')
    g.e(f'v_cmp_lt_u32 vcc, 31, v{vLANE}')
    g.e(f'v_mov_b32 v{BM + 2}, 0')
    g.e(f'v_mov_b32 v{BM + 3}, 0')
    g.e(f'v_cndmask_b32 v{vGM}, 0, 1.0, vcc')
    g.e(f's_mov_b32 s{sC}, {hx(f2u(LOG2E))}')
    g.e(f's_mov_b32 s{sSEL0}, 0x00003f80')
    g.e(f's_mov_b32 s{sSEL1}, 0x3f800000')
    g.e(f's_lshl_b32 s{sT}, s{sRB}, 2')
    g.e(f's_add_u32 s{sT}, s{sT}, s{sTT}')
    g.e(f's_mul_i32 s{sHST}, s{sT}, {TBLK}')
    g.e(f's_add_u32 s{sHST}, s{sHST}, {HB}')
    g.e(f's_lshl_b32 s{sFLP}, s{sT}, 10')
    g.e(f's_lshl_b32 s{sT2}, s{sJ}, 3')
    g.e(f's_add_u32 s{sFLP}, s{sFLP}, s{sT2}')
    g.e(f's_add_u32 s{sFLP}, s{sFLP}, {HFL}')
    g.e(f's_mul_i32 s{sHLD}, s{sT2K}, {TBLK}')
    g.e(f's_lshl_b32 s{sT2}, s{sTT}, 10')
    g.e(f's_add_u32 s{sHLD}, s{sHLD}, s{sT2}')
    g.e(f's_add_u32 s{sHLD}, s{sHLD}, {HB}')
    g.e(f's_lshl_b32 s{sFLD}, s{sT2K}, 10')
    g.e(f's_add_u32 s{sFLD}, s{sFLD}, {HFL}')
    g.e(f's_lshr_b32 s{sFLA}, s{sTT}, 1')
    g.e(f's_add_u32 s{sFLA}, s{sFLA}, 2')
    g.e(f's_lshl_b32 s{sFLA}, s{sFLA}, 7')
    g.e(f's_add_u32 s{sFLA}, s{sFLA}, s{sFLD}')
    g.e(f's_lshl_b32 s{sKVFL}, s{sH}, 2')
    g.e(f's_add_u32 s{sKVFL}, s{sKVFL}, s{sTT}')
    g.e(f's_lshl_b32 s{sKVFL}, s{sKVFL}, 7')
    g.e(f's_add_u32 s{sKVFL}, s{sKVFL}, {KVFL}')
    g.e(f's_mov_b32 s{sT2}, {DU[0] + 4096}')
    for rd in range(2):
        g.e(f'v_xor_b32 v49, {rd}, v39')
        g.e(f'v_lshl_add_u32 v49, v49, 2, v37')
        g.e(f'v_mul_u32_u24 v49, 96, v49')
        g.e(f'v_mul_u32_u24 v{vTR[rd]}, 6144, v39')
        g.e(f'v_lshl_add_u32 v49, v38, 3, v49')
        g.e(f'v_add3_u32 v{vTR[rd]}, v{vTR[rd]}, v49, s{sT2}')
    g.e(f'v_lshrrev_b32 v49, 1, v36')
    g.e(f'v_lshl_or_b32 v49, v39, 1, v49')
    g.e(f'v_lshlrev_b32 v37, 7, v37')
    g.e(f'v_lshl_add_u32 v37, v39, 13, v37')
    g.e(f'v_lshl_add_u32 v37, v38, 3, v37')
    for t in range(2):
        g.e(f'v_xor_b32 v{vTA[t]}, {2 * half + t}, v49')
        g.e(f'v_lshl_add_u32 v{vTA[t]}, v{vTA[t]}, 5, v37')
    g.e(f's_mul_i32 s{sT1}, s{sTT}, 1536')
    g.e(f'v_add_u32 v{vDU[1]}, s{sT1}, v{vTR[0]}')
    g.e(f'v_add_u32 v{vDU[2]}, s{sT1}, v{vTR[1]}')
    return e, f

def touch(half, sT, vt):
    g = P()
    g.e(f's_lshl_b32 s{sT}, s2, 2')
    g.e(f's_add_u32 s{sT}, s{sT}, s{sTT}')
    for k, (s, nl) in enumerate(((SG, 13), (SU, 13), (SWD, 13), (SWO, 4))):
        g.e(f'v_min_u32 v{vt}, {nl - 1}, v{vLANE}')
        g.e(f'v_lshlrev_b32 v{vt}, 7, v{vt}')
        g.e(f's_mul_i32 s{sT0}, s{sT}, {nl * 128}')
        g.e(f'buffer_load_dword v{vt - 1}, v{vt}, {srd(s)}, s{sT0} offen'); g[-1].defs = []
    return g

def late_loads(half):
    g = P()
    g.e(f'buffer_load_dwordx2 v[44:45], off, {srd(SWS)}, 0 sc1', 'EP')
    if opt('tlb', 1):
        g.e(f's_add_u32 s{sT3}, s{sHST if half == 0 else sHLD}, {144 * 1024}')
        g.e(f'buffer_load_dword v42, off, {srd(SWS)}, s{sT3}'); g[-1].defs = []
        g.e(f's_mul_i32 s{sT3}, s{sT2K}, {32 * 896}')
        g.e(f'buffer_load_dword v42, off, {srd(SOUT)}, s{sT3}')
    return g

D1 = 56
def pass1(p, half):
    own = [2 * half, 2 * half + 1]
    NU = opt('nu', 3)
    st, rest = setup(half)
    kq = next(k for k, x in enumerate(st) if isinstance(x, Ins) and x.text.startswith(f'v_add3_u32 v{vOQ},')) + 1
    p.extend(st[:kq])
    at = P(); dma_C(at, half, 0)
    seq = [(k, c) for c in range(NU, 7) for k in 'XC'] if NU <= 5 else [('X', c) for c in range(NU, 7)] + [('C', 5), ('C', 6)]
    for c in range(1, NU):
        dma_X(at, c)
        if c < 5: dma_C(at, half, c)
    p.extend(mix(P(st[kq:]), at, 0.0, 0.9))
    parts = [[] for _ in range(7)]
    if opt('restup', 1): p.extend(rest)
    else: interleave(parts, rest, 0, min(4, opt('d0at', 2)) if NU > 3 else 4)
    p.e('v_mov_b32 v28, 0'); p.e('v_mov_b32 v29, 0')
    stamp(p, 'setup')
    reg = lambda c, ks: XF + 16 * c + 4 * ks
    AB = [80, 96]
    def rds(c):
        q = P()
        if c == 4:
            for a in range(4): q.e(f'v_add_u32 v{24 + a}, 0x10000, v{24 + a}')
        if c == 5: q.e(f'v_add_u32 v{vTQ}, {hx(CU[5] - CU[0])}, v{vTQ}')
        base = CU[0] if c < 5 else CU[5]
        for ks in range(4):
            q.e(f'ds_read_b128 {vr(reg(c, ks), 4)}, v{24 + ks} offset:{XU(c) & 0xffff}', None, f'X{c}')
            for r in range(2): q.e(f'ds_read_b64_tr_b16 {vr(AB[c & 1] + 4 * ks + 2 * r, 2)}, v{vTQ} offset:{CU[c] - base + ks * 1024 + r * 256}', None, f'C{c}')
        return q
    def drd(c):
        q = P()
        if c == 5: q.e(f'v_add_u32 v{vDU[0]}, {hx(CU[5] - CU[0])}, v{vDU[0]}')
        for r in range(2): q.e(f'ds_read_b64_tr_b16 {vr(CFR + 2 * r, 2)}, v{vDU[0]} offset:{CU[c] - (CU[0] if c < 5 else CU[5]) + r * 256}', None, f'C{c}')
        return q
    p.append(WaitVm(['X0', 'C0'])); p.e('s_barrier'); stamp(p, 'bX0')
    p.extend(rds(0)); p.extend(drd(0))
    nd = 0
    for c in range(7):
        p.append(WaitDs())
        p.append(WaitVm([f'X{c+1}', f'C{c+1}'] if c < 6 else 'D0')); p.e('s_barrier'); stamp(p, f'bX{c+1}')
        mm = [I(f'{MF32} {vr(ACC1, 16)}, {vr(AB[c & 1] + 4 * ks, 4)}, {vr(reg(c, ks), 4)}, {"0" if c == 0 and ks == 0 else vr(ACC1, 16)}') for ks in range(4)]
        sl = [[m] for m in mm]
        sl[0].append(I(f'{MF16} {vr(D1, 4)}, {vr(ASEL, 4)}, {vr(CFR, 4)}, {"0" if c == 0 else vr(D1, 4)}'))
        if c < 6: interleave(sl, rds(c + 1) + drd(c + 1), 0, 4)
        else: sl[3].append(Pseudo('mark'))
        code = P(x for s_ in sl for x in s_)
        for ks in own:
            for k in range(4):
                r = reg(c, ks) + k
                code.e(f'v_dot2c_f32_bf16 v28, s{sONE2}, v{r}'); code.e(f'v_dot2c_f32_bf16 v29, v{r}, v{r}')
        code.extend(parts[c])
        at = P()
        took = 0
        while seq and took < 2:
            k_, c_ = seq.pop(0); took += 1
            (dma_X(at, c_) if k_ == 'X' else dma_C(at, half, c_))
        if (not took or c == 5) and c >= max(nd + 1, opt('d0at', 2)) and nd < 4:
            dma_D(at, half, nd); nd += 1
        if True:
            if c == 5 and half == 0:
                at.append(Group([I(f's_and_b32 s{sT1}, s{sW1K}, 1024'), I(f's_add_u32 m0, s{sT1}, {MISC}'), I(f's_mul_i32 s{sT0}, s{sH}, 1568'),
                    I(f's_add_u32 s{sT0}, s{sT0}, s{sT1}'), I(f'buffer_load_dwordx4 v{vL16}, {srd(SPHI)}, s{sT0} offen lds', 'PHI', 'PHI')]))
            if c == opt('tpos', 6) and half == 1: at.append(Group(touch(half, sT5, 34)))
        if c == 4: at.append(Group(late_loads(half)))
        p.extend(mix(code, at, 0.05, 0.95))
    return nd

def stats_code(half):
    q = P()
    q.e('v_add_f32 v28, v28, v30'); q.e('v_add_f32 v29, v29, v31')
    q.e('v_permlane32_swap_b32 v28, v29')
    q.e('v_add_f32 v28, v28, v29')
    q.e(f'v_mul_f32 v28, {hx(f2u(1 / 448))}, v28')
    q.e('v_mov_b32 v29, v28')
    q.e('v_permlane32_swap_b32 v28, v29')
    q.e('v_fma_f32 v29, -v28, v28, v29')
    q.e('v_max_f32 v29, 0, v29')
    q.e('v_sub_f32 v28, 0, v28')
    q.e('v_cvt_pk_bf16_f32 v30, v28, v29')
    q.e('v_and_b32 v29, 0xffff0000, v30')
    q.e(f'v_add_f32 v29, {hx(f2u(1e-5))}, v29')
    q.e('v_and_b32 v30, 0xffff, v30')
    q.e('v_cvt_pk_bf16_f32 v29, v29, v29')
    q.e(f'v_cmp_gt_u32 vcc, 32, v{vLANE}')
    q.e('v_and_b32 v29, 0xffff0000, v29')
    q.e('v_sqrt_f32 v29, v29')
    q.e(f'v_cndmask_b32 v{BM + 1}, 0, v30, vcc')
    q.e('v_cvt_pk_bf16_f32 v29, v29, v29')
    q.e(f'v_lshl_or_b32 v{BM}, v{BM + 1}, 16, v{BM + 1}')
    q.e('v_and_b32 v29, 0xffff0000, v29')
    q.e('v_rcp_f32 v28, v29')
    q.e(f'v_mul_f32 v{vIR2}, v29, v29')
    if half == 0: q.e(f'v_mul_f32 v{vCR}, {hx(f2u(LOG2E))}, v28')
    else: q.e(f'v_mov_b32 v{vCR}, v29')
    K1 = -2 * math.sqrt(2 / math.pi) * LOG2E
    q.e(f'v_mul_f32 v{vK1}, {hx(f2u(K1))}, v28')
    q.e(f'v_mul_f32 v30, v28, v28')
    q.e(f'v_mul_f32 v{vK2}, {hx(f2u(0.044715))}, v{vK1}')
    q.e(f'v_mul_f32 v{vK2}, v{vK2}, v30')
    return q

def gelu_tile(acc, tmp, soff_code, tok, pk=False):
    q = P()
    if pk:
        T = lambda k: vr(tmp + 2 * k, 2); G = lambda k: vr(acc + 2 * k, 2); Uu = lambda k: vr(acc + 8 + 2 * k, 2)
        KK = vr(vK1, 2)
        for k in range(4): q.e(f'v_pk_mul_f32 {T(k)}, {G(k)}, {G(k)}')
        for k in range(4): q.e(f'v_pk_fma_f32 {T(k)}, {T(k)}, {KK}, {KK} op_sel:[0,1,0] op_sel_hi:[1,1,0]')
        for k in range(4): q.e(f'v_pk_mul_f32 {T(k)}, {T(k)}, {G(k)}')
        for k in range(8): q.e(f'v_exp_f32 v{tmp + k}, v{tmp + k}')
        for k in range(4): q.e(f'v_pk_mul_f32 {Uu(k)}, {G(k)}, {Uu(k)}')
        for k in range(4): q.e(f'v_pk_fma_f32 {T(k)}, {T(k)}, {vr(vIR2, 2)}, {vr(vIR2, 2)} op_sel_hi:[1,0,0]')
        for k in range(8): q.e(f'v_rcp_f32 v{tmp + k}, v{tmp + k}')
        for k in range(4): q.e(f'v_pk_mul_f32 {Uu(k)}, {Uu(k)}, {T(k)}')
    else:
        for h4 in range(0, 8, 4):
            t = [tmp + k for k in range(4)]; g = [acc + h4 + k for k in range(4)]; u = [acc + 8 + h4 + k for k in range(4)]
            for k in range(4): q.e(f'v_mul_f32 v{t[k]}, v{g[k]}, v{g[k]}')
            for k in range(4): q.e(f'v_fma_f32 v{t[k]}, v{t[k]}, v{vK2}, v{vK1}')
            for k in range(4): q.e(f'v_mul_f32 v{t[k]}, v{t[k]}, v{g[k]}')
            for k in range(4): q.e(f'v_exp_f32 v{t[k]}, v{t[k]}')
            for k in range(4): q.e(f'v_mul_f32 v{u[k]}, v{g[k]}, v{u[k]}')
            for k in range(4): q.e(f'v_fma_f32 v{t[k]}, v{t[k]}, v{vIR2}, v{vIR2}')
            for k in range(4): q.e(f'v_rcp_f32 v{t[k]}, v{t[k]}')
            for k in range(4): q.e(f'v_mul_f32 v{u[k]}, v{u[k]}, v{t[k]}')
    for k in range(4): q.e(f'v_cvt_pk_bf16_f32 v{acc + k}, v{acc + 8 + 2 * k}, v{acc + 9 + 2 * k}')
    q.append(Group(list(soff_code) + [I(f'buffer_store_dwordx4 {vr(acc, 4)}, v{vL16}, {srd(SWS)}, s{sT1} offen sc1', tok)]))
    return q

def softmax_pm(Pa, E, s0, scale_r=False, pk=False):
    q = P(); a, b, c, d = s0, s0 + 1, s0 + 2, s0 + 3
    q.e(f'v_max3_f32 v{a}, v{Pa}, v{Pa+1}, v{Pa+2}')
    q.e(f'v_max3_f32 v{b}, -v{Pa}, -v{Pa+1}, -v{Pa+2}')
    q.e(f'v_max3_f32 v{c}, v{Pa+3}, v{Pa+4}, v{Pa+5}')
    q.e(f'v_max3_f32 v{d}, -v{Pa+3}, -v{Pa+4}, -v{Pa+5}')
    for k in range(6, 16, 4):
        q.e(f'v_max3_f32 v{a}, v{a}, v{Pa+k}, v{Pa+k+1}')
        q.e(f'v_max3_f32 v{b}, v{b}, -v{Pa+k}, -v{Pa+k+1}')
        if k + 3 < 16:
            q.e(f'v_max3_f32 v{c}, v{c}, v{Pa+k+2}, v{Pa+k+3}')
            q.e(f'v_max3_f32 v{d}, v{d}, -v{Pa+k+2}, -v{Pa+k+3}')
    q.e(f'v_max_f32 v{a}, v{a}, v{c}')
    q.e(f'v_max_f32 v{b}, v{b}, v{d}')
    q.e(f'v_permlane32_swap_b32 v{a}, v{b}')
    q.e(f'v_max_f32 v{a}, v{a}, v{b}')
    q.e(f'v_mul_f32_e64 v{a}, -v{vCR}, v{a}')
    q.e(f'v_mov_b32 v{b}, v{a}')
    q.e(f'v_permlane32_swap_b32 v{a}, v{b}')
    AB = vr(a, 2); CD = vr(c, 2); CR = vr(vCR - 1, 2)
    if pk:
        for k in range(0, 16, 2):
            q.e(f'v_pk_fma_f32 {vr(E+k,2)}, {vr(Pa+k,2)}, {CR}, {AB} op_sel:[0,1,0] op_sel_hi:[1,1,0]')
            q.e(f'v_pk_fma_f32 {vr(Pa+k,2)}, {vr(Pa+k,2)}, {CR}, {AB} op_sel:[0,1,1] op_sel_hi:[1,1,1] neg_lo:[1,0,0] neg_hi:[1,0,0]')
        for k in range(16):
            q.e(f'v_exp_f32 v{E+k}, v{E+k}'); q.e(f'v_exp_f32 v{Pa+k}, v{Pa+k}')
        e2, f2, g2, h2 = vr(s0, 2), vr(s0 + 2, 2), vr(s0 + 4, 2), vr(s0 + 6, 2)
        q.e(f'v_pk_add_f32 {e2}, {vr(E,2)}, {vr(E+2,2)}'); q.e(f'v_pk_add_f32 {f2}, {vr(Pa,2)}, {vr(Pa+2,2)}')
        q.e(f'v_pk_add_f32 {g2}, {vr(E+12,2)}, {vr(E+14,2)}'); q.e(f'v_pk_add_f32 {h2}, {vr(Pa+12,2)}, {vr(Pa+14,2)}')
        for k in range(4, 12, 2):
            q.e(f'v_pk_add_f32 {e2}, {e2}, {vr(E+k,2)}'); q.e(f'v_pk_add_f32 {f2}, {f2}, {vr(Pa+k,2)}')
        GM = vr(vGM - 1, 2)
        q.e(f'v_pk_fma_f32 {e2}, {g2}, {GM}, {e2} op_sel:[0,1,0]'); q.e(f'v_pk_fma_f32 {f2}, {h2}, {GM}, {f2} op_sel:[0,1,0]')
        q.e(f'v_add_f32 v{a}, v{s0}, v{s0+1}'); q.e(f'v_add_f32 v{b}, v{s0+2}, v{s0+3}')
    else:
        for k in range(16):
            q.e(f'v_fma_f32 v{E+k}, v{Pa+k}, v{vCR}, v{a}')
            q.e(f'v_fma_f32 v{Pa+k}, -v{Pa+k}, v{vCR}, v{b}')
            if k:
                q.e(f'v_exp_f32 v{E+k-1}, v{E+k-1}'); q.e(f'v_exp_f32 v{Pa+k-1}, v{Pa+k-1}')
        q.e(f'v_exp_f32 v{E+15}, v{E+15}'); q.e(f'v_exp_f32 v{Pa+15}, v{Pa+15}')
        q.e(f'v_add_f32 v{a}, v{E}, v{E+1}'); q.e(f'v_add_f32 v{b}, v{Pa}, v{Pa+1}')
        q.e(f'v_add_f32 v{c}, v{E+12}, v{E+13}'); q.e(f'v_add_f32 v{d}, v{Pa+12}, v{Pa+13}')
        for k in range(2, 12):
            q.e(f'v_add_f32 v{a}, v{a}, v{E+k}'); q.e(f'v_add_f32 v{b}, v{b}, v{Pa+k}')
            if k in (2, 3):
                q.e(f'v_add_f32 v{c}, v{c}, v{E+12+k}'); q.e(f'v_add_f32 v{d}, v{d}, v{Pa+12+k}')
        q.e(f'v_fmac_f32 v{a}, v{c}, v{vGM}'); q.e(f'v_fmac_f32 v{b}, v{d}, v{vGM}')
    q.e(f'v_permlane32_swap_b32 v{a}, v{b}')
    q.e(f'v_add_f32 v{a}, v{a}, v{b}')
    if scale_r: q.e(f'v_mul_f32 v{a}, {hx(f2u(LOG2E))}, v{a}')
    q.e(f'v_rcp_f32 v{a}, v{a}')
    if scale_r: q.e(f'v_mul_f32 v{a}, v{a}, v{vCR}')
    q.e(f'v_mov_b32 v{b}, v{a}')
    q.e(f'v_permlane32_swap_b32 v{a}, v{b}')
    q.e(f'v_mul_f32 v{c}, v{a}, v{vGM}'); q.e(f'v_mul_f32 v{d}, v{b}, v{vGM}')
    for k in range(0, 16, 2):
        ra, rb = (a, b) if k < 12 else (c, d)
        if pk:
            S = AB if k < 12 else CD
            q.e(f'v_pk_mul_f32 {vr(E+k,2)}, {vr(E+k,2)}, {S} op_sel_hi:[1,0]')
            q.e(f'v_pk_mul_f32 {vr(Pa+k,2)}, {vr(Pa+k,2)}, {S} op_sel:[0,1] op_sel_hi:[1,1]')
        else:
            q.e(f'v_mul_f32 v{E+k}, v{E+k}, v{ra}'); q.e(f'v_mul_f32 v{E+k+1}, v{E+k+1}, v{ra}')
            q.e(f'v_mul_f32 v{Pa+k}, v{Pa+k}, v{rb}'); q.e(f'v_mul_f32 v{Pa+k+1}, v{Pa+k+1}, v{rb}')
        q.e(f'v_cvt_pk_bf16_f32 v{E + k // 2}, v{E+k}, v{E+k+1}')
        q.e(f'v_cvt_pk_bf16_f32 v{Pa + k // 2}, v{Pa+k}, v{Pa+k+1}')
    return q

vFL16, vFL32 = 23, 22

def hsoff(texts):
    return [I(t) for t in texts] + [I(f's_lshl_b32 s{sT1}, s{sT1}, 10'), I(f's_add_u32 s{sT1}, s{sT1}, s{sHST}')]
def rem_soff(r):
    return hsoff([f's_cmp_gt_u32 s{sJM}, {r}', f's_cselect_b32 s{sT1}, {r}, {r + 4}', f's_mul_i32 s{sT2}, s{sJ}, 7', f's_add_u32 s{sT1}, s{sT1}, s{sT2}'])

def wphi(q, W):
    q.e(f'ds_read_b64_tr_b16 {vr(W, 2)}, v31', None, 'PHI')
    q.e(f'ds_read_b64_tr_b16 {vr(W + 2, 2)}, v31 offset:{8 * 56}', None, 'PHI')
    q.e(f'ds_read_b64_tr_b16 {vr(W + 4, 2)}, v31 offset:{16 * 56}', None, 'PHI')
    q.e(f'ds_read_b64_tr_b16 {vr(W + 6, 2)}, v30 offset:{24 * 56}', None, 'PHI')
def wmask(q, W):
    q.append(Group([I(f'v_cmp_lt_u32 vcc, 31, v{vLANE}'), I(f'v_cndmask_b32 v{W + 6}, 0, v{W + 6}, vcc'), I(f'v_cndmask_b32 v{W + 7}, 0, v{W + 7}, vcc')]))
GDST = [64 + 4 * e for e in range(8)] + [32 + 4 * e for e in range(8)]
def gl(e): return Group([I(f'buffer_load_dwordx4 {vr(GDST[e], 4)}, v{vL16}, {srd(SWS)}, s{sT4} offen sc1'), I(f's_add_u32 s{sT4}, s{sT4}, 4096')])

def phase1_main(p, half, nd):
    mf = []
    n2 = 0
    for s in range(7):
        for ks in range(4):
            for t in range(2):
                pre = []
                isq = half == 0 and t == 0
                if ks == 0:
                    if isq: pre.append(I(f'v_add_u32 v{vTQ}, {hx(DU[s] - (DU[s-1] if s else CU[5]))}, v{vTQ}'))
                    elif s == 4 and (half == 0 or t == 0):
                        for a in vTR: pre.append(I(f'v_add_u32 v{a}, {hx(DU[4] - DU[0])}, v{a}'))
                if isq: rd = [(vTQ, ks * 1024 + r * 256, f'D{s}') for r in range(2)]
                else: rd = [(vTR[r], DU[s] - DU[s & 4] + ks * 1536 + (0 if half == 0 else 1 + t) * 32, f'D{s}') for r in range(2)]
                mf.append(dict(acc=ACC2 + 16 * t, xf=4 * s + ks, rd=rd, pre=pre, first=s == 0 and ks == 0))
    n3 = len(mf)
    for s in range(7):
        for ks in range(4):
            for t in range(2):
                pre = [I(f'v_add_u32 v{vTA[t]}, {hx(AU[4])}, v{vTA[t]}')] if ks == 0 and s == 4 else []
                mf.append(dict(acc=ACC3 + 16 * t, xf=4 * s + ks, rd=[(vTA[t], AU[s] - AU[s & 4] + ks * 2048 + r * 512, f'A{s}') for r in range(2)], pre=pre, first=s == 0 and ks == 0))
    NB = len(AFR); D = NB - 1
    def reads(n):
        q = list(mf[n]['pre']); b = AFR[n % NB]
        for r, (a, off, obj) in enumerate(mf[n]['rd']):
            assert 0 <= off < 65536
            q.append(I(f'ds_read_b64_tr_b16 {vr(b + 2 * r, 2)}, v{a} offset:{off}', None, obj))
        return q
    km = next(k for k, x in enumerate(p) if isinstance(x, Pseudo) and x.kind == 'mark')
    p[km:km + 1] = [x for n in range(D) for x in reads(n)]
    slots = []
    for n, m in enumerate(mf):
        acc = m['acc']
        sl = [I(f'{MF32} {vr(acc, 16)}, {vr(AFR[n % NB], 4)}, {vr(XF + 4 * m["xf"], 4)}, {"0" if m["first"] else vr(acc, 16)}')]
        if n + D < len(mf): sl += reads(n + D)
        slots.append(sl)
    def bar(n, tokwait, after, end, dswait=None, name=None):
        q = P()
        if dswait: q.append(WaitDs(dswait))
        if tokwait: q.append(WaitVm(tokwait))
        q.e('s_barrier'); stamp(q, name or f'b{n}')
        if dswait: slots[n].extend(q)
        else: slots[n][1:1] = q
        if after: spread(slots, after, n + 1 + (half if end - n > 3 else 0), end)
    BO = 8 - D - 1
    b2 = lambda s: n2 + 8 * s + BO
    b3 = lambda s: n3 + 8 * s + BO
    def duty(slot, rd, d16, first, pre=()):
        slots[slot].extend(list(pre) + [I(f'ds_read_b64_tr_b16 {vr(CFR + 2 * r, 2)}, v{a} offset:{off}', None, obj) for r, (a, off, obj) in enumerate(rd)])
        slots[slot + 2].insert(1, I(f'{MF16} {vr(d16, 4)}, {vr(ASEL, 4)}, {vr(CFR, 4)}, {"0" if first else vr(d16, 4)}'))
    vCS = 254
    def cs_write(slot, d16s, obj):
        for t, d in enumerate(d16s): slots[slot].append(I(f'ds_write_b32 v{vCS}, v{d} offset:{t * 512}', 'cs', obj))
    def cs_fix(slot, accs, obj):
        for t, acc in enumerate(accs):
            slots[slot + 3 * t].append(I(f'ds_read_b128 {vr(CFR, 4)}, v{vCS + 1} offset:{t * 512}', None, obj))
            q = P()
            q.e(f'v_add_f32 v{CFR}, v{CFR}, v{CFR + 1}'); q.e(f'v_add_f32 v{CFR + 2}, v{CFR + 2}, v{CFR + 3}')
            q.e(f'v_add_f32 v{CFR}, v{CFR}, v{CFR + 2}')
            q.e(f'v_and_b32 v{CFR + 1}, 0xffff0000, v{CFR}')
            q.e(f'v_sub_f32 v{CFR + 1}, v{CFR}, v{CFR + 1}')
            q.e(f'v_and_b32 v{CFR + 2}, 0xffff0000, v{CFR + 1}')
            q.e(f'v_perm_b32 v{ACS}, v{CFR + 1}, v{CFR}, s{sPERM}')
            q.e(f'v_sub_f32 v{CFR + 2}, v{CFR + 1}, v{CFR + 2}')
            q.e(f'v_lshrrev_b32 v{ACS + 1}, 16, v{CFR + 2}')
            slots[slot + 3 * t + 2].extend(q)
            slots[slot + 3 * t + 3].insert(1, I(f'{MF32} {vr(acc, 16)}, {vr(ACS, 4)}, {vr(BM, 4)}, {vr(acc, 16)}'))
    q = P()
    q.e(f'v_lshrrev_b32 v30, 1, v{vL16}')
    q.e(f's_lshr_b32 s{sT1}, s{sW1K}, 1')
    q.e(f's_add_u32 s{sT1}, s{sT1}, {STAT}')
    q.e(f'v_add_u32 v30, s{sT1}, v30')
    q.e(f's_mov_b32 s{sPERM}, 0x07060302')
    q.e(f'v_and_b32 v{vCS + 1}, 31, v{vLANE}')
    q.e(f'v_lshlrev_b32 v{vCS + 1}, 4, v{vCS + 1}')
    q.e(f'v_add_u32 v{vCS + 1}, {CSB + half * 1024}, v{vCS + 1}')
    q.e(f's_lshl_b32 s{sT1}, s{sTT}, 2'); q.e(f'v_add_u32 v{vCS}, s{sT1}, v{vCS + 1}')
    q.e(f'ds_write_b64 v30, v[28:29]', 'cs', 'STAT')
    q.e(f'ds_write_b32 v{vCS}, v{D1}', 'cs', 'CS1')
    q.e(f'v_xor_b32 v30, 2048, v30')
    stamp(p, 'end1')
    slots[0].append(Group(q))
    slots[b2(0) + 1].append(I(f'ds_read_b64 v[30:31], v30', None, 'STAT'))
    interleave(slots, stats_code(half), b2(0) + 3, b2(0) + 7)
    cs_fix(b2(0) + 5, [ACC1], 'CS1')
    E2 = b2(0) + 11
    D2 = [56, 60]; D3 = [8, 12]
    def dslots(n0, s):
        if n0 == n2 and s < 4: return [(1, 3), (12, 14), (16, 18), (21, 23)][s]
        return (n0 + 4, n0 + 6) if s == 0 else ((n0 + BO + 4, n0 + BO + 6) if s == 1 else (n0 + 8 * (s - 1) + BO + 1, n0 + 8 * (s - 1) + BO + 3))
    for s in range(7):
        for t in range(2):
            isq = half == 0 and t == 0
            pre = []
            if isq: pre = [I(f'v_add_u32 v{vDU[0]}, {hx(DU[s] - (DU[s-1] if s else CU[5]))}, v{vDU[0]}')]
            elif s == 4 and (half == 0 or t == 0): pre = [I(f'v_add_u32 v{a}, {hx(DU[4] - DU[0])}, v{a}') for a in vDU[1:]]
            if isq: rd = [(vDU[0], r * 256, f'D{s}') for r in range(2)]
            else: rd = [(vDU[1 + r], DU[s] - DU[s & 4] + (0 if half == 0 else 1 + t) * 32, f'D{s}') for r in range(2)]
            duty(dslots(n2, s)[t], rd, D2[t], s == 0, pre)
            pre = []
            if s == 0: pre = [I(f's_lshl_b32 s{sT3}, s{sTT}, 11'), I(f'v_add_u32 v{vDA[t]}, s{sT3}, v{vTA[t]}')]
            if s == 4: pre = [I(f'v_add_u32 v{vDA[t]}, {hx(AU[4])}, v{vDA[t]}')]
            duty(dslots(n3, s)[t], [(vDA[t], AU[s] - AU[s & 4] + r * 512, f'A{s}') for r in range(2)], D3[t], s == 0, pre)
    cs_write(b2(6) - 1, D2, 'CS2'); cs_fix(b2(6) + 1, [ACC2, ACC2 + 16], 'CS2')
    cs_write(b3(6) - 1, D3, 'CS3')
    E3 = n3 + 7
    q = P()
    q.e(f'v_readfirstlane_b32 s{sTAG}, v44'); q.e(f'v_readfirstlane_b32 s{sTAG+1}, v45')
    q.e(f's_add_u32 s{sTAG}, s{sTAG}, 0x9e3779b9'); q.e(f's_add_u32 s{sTAG+1}, s{sTAG+1}, 0x7f4a7c15')
    q.e('v_mov_b32 v42, 0')
    slots[0].extend(q)
    KB = opt('kb', 4)
    K = V = ACC1
    if half == 0:
        f = P()
        f.e(f'v_bfe_u32 v24, v{vLANE}, 2, 2')
        f.e(f'v_lshrrev_b32 v25, 5, v{vLANE}')
        f.e(f'v_bfe_u32 v26, v{vLANE}, 4, 1')
        f.e(f'v_and_b32 v27, 3, v{vLANE}')
        f.e(f'v_lshl_or_b32 v26, v26, 2, v27')
        f.e(f'v_subrev_u32 v27, 1, v26')
        f.e(f'v_mul_u32_u24 v44, 56, v24')
        f.append(Group([I(f'v_cmp_lt_u32 vcc, 5, v26'), I(f'v_cndmask_b32 v26, v26, v27, vcc')]))
        f.e(f'v_lshl_add_u32 v44, v26, 3, v44')
        f.e(f'v_add_u32 v44, {MISC}, v44')
        f.e(f'v_mul_u32_u24 v45, 224, v25')
        f.e(f'v_add_u32 v45, v44, v45')
        f.e(f'v_and_b32 v24, 31, v{vLANE}')
        f.append(Group([I(f's_lshl_b32 s{sT2}, s{sTT}, 5'), I(f'v_add_u32 v24, s{sT2}, v24')]))
        f.e(f'v_and_b32 v26, 9, v{vLANE}')
        f.e(f'v_bfe_u32 v27, v{vLANE}, 1, 1')
        f.e(f'v_lshl_or_b32 v26, v27, 2, v26')
        f.e(f'v_bfe_u32 v27, v{vLANE}, 2, 1')
        f.e(f'v_lshl_or_b32 v26, v27, 1, v26')
        f.e(f'v_xor_b32 v46, v26, v25')
        f.e(f'v_lshlrev_b32 v47, 7, v24')
        f.e(f'v_add_u32 v47, {TRK}, v47')
        interleave(slots, f, 1, b2(0) + 3)
        W = 48
        f = P()
        for k in range(4): f.e(f'v_mov_b32 v{(30, 31, 28, 29)[k]}, v{44 + k}')
        wphi(f, W); slots[b2(0) + 7].extend(f)
        f = P(); wmask(f, W)
        for k in range(8): f.e(f'v_cvt_pk_bf16_f32 v{K + k}, v{K + 2 * k}, v{K + 2 * k + 1}')
        f.e(f'{MF32} {vr(LOG, 16)}, {vr(W, 4)}, {vr(K, 4)}, 0')
        f.e(f'{MF32} {vr(LOG, 16)}, {vr(W + 4, 4)}, {vr(K + 4, 4)}, {vr(LOG, 16)}')
        f.append(Gap(2))
        f.extend(softmax_pm(LOG, K, 24, True))
        for ft, src in ((0, K), (1, LOG)):
            for i in range(4):
                f.e(f'v_xor_b32 v23, {8 * ft + 2 * i}, v28')
                f.e(f'v_lshl_add_u32 v23, v23, 3, v29')
                f.e(f'ds_write_b64 v23, {vr(src + 2 * i, 2)}', 'tr', 'TRK')
        interleave(slots, f, E2, b2(KB) + 1)
        interleave(slots, gelu_tile(ACC2 + 16, 24, rem_soff(0), 'HR'), E3, n3 + opt('g0end', 24))
        q = P(); q.append(WaitVm('HR')); set_flag(q, f's{sFLP}', 28, 0)
        slots[n3 + opt('rf0', 34)].extend(q)
    else:
        f = P()
        f.e(f'v_bfe_u32 v24, v{vLANE}, 2, 2')
        f.e(f'v_lshrrev_b32 v25, 4, v{vLANE}')
        f.e(f'v_lshl_add_u32 v24, v25, 3, v24')
        f.e(f'v_and_b32 v25, 3, v{vLANE}')
        f.e(f'v_and_b32 v26, 9, v24')
        f.e(f'v_bfe_u32 v27, v24, 1, 1')
        f.e(f'v_lshl_or_b32 v26, v27, 2, v26')
        f.append(Group([I(f's_lshl_b32 s{sT2}, s{sTT}, 2'), I(f'v_or_b32 v27, s{sT2}, v25')]))
        f.e(f'v_xor_b32 v26, v26, v27')
        f.e(f'v_lshlrev_b32 v27, 7, v24')
        f.e(f'v_add_u32 v27, {TRK}, v27')
        f.e(f'v_lshl_add_u32 v28, v26, 3, v27')
        f.e(f'v_bfe_u32 v26, v24, 1, 3')
        f.e(f'v_xor_b32 v26, v26, v25')
        f.e(f'v_lshlrev_b32 v27, 6, v24')
        f.e(f'v_add_u32 v27, {TRV}, v27')
        f.e(f'v_lshl_add_u32 v29, v26, 3, v27')
        f.e(f'v_bfe_u32 v24, v{vLANE}, 4, 1')
        f.e(f'v_and_b32 v25, 15, v{vLANE}')
        f.e(f'v_lshl_or_b32 v24, v24, 5, v25')
        f.e(f'v_lshrrev_b32 v25, 5, v{vLANE}')
        f.e(f'v_lshlrev_b32 v26, 3, v25')
        f.e(f'v_lshl_or_b32 v23, v24, 4, v26')
        f.e(f's_lshl_b32 s{sT4}, s{sH}, 4')
        f.e(f's_add_u32 s{sT4}, s{sT4}, s{sRB}')
        f.e(f's_lshl_b32 s{sT4}, s{sT4}, 2')
        f.e(f's_add_u32 s{sT4}, s{sT4}, s{sTT}')
        f.e(f's_lshl_b32 s{sT4}, s{sT4}, 10')
        f.e(f's_add_u32 s{sT4}, s{sT4}, {KVP}')
        f.e(f's_lshl_b32 s{sT5}, s{sRB}, 3')
        f.e(f's_add_u32 s{sT5}, s{sT5}, s{sKVFL}')
        f.e(f'v_and_b32 v24, 31, v{vLANE}')
        f.append(Group([I(f's_lshl_b32 s{sT2}, s{sTT}, 5'), I(f'v_add_u32 v24, s{sT2}, v24')]))
        f.e(f'v_bfe_u32 v26, v{vLANE}, 1, 3')
        f.e(f'v_xor_b32 v26, v26, v25')
        f.e(f'v_lshlrev_b32 v27, 6, v24')
        f.e(f'v_add_u32 v27, {TRV}, v27')
        f.append(Group([I(f'v_cmp_lt_u32 vcc, 31, v{vLANE}'), I(f'v_cndmask_b32 v{V + 12}, v{vCR}, v{V + 12}, vcc')]))
        for k in range(8): f.e(f'v_cvt_pk_bf16_f32 v{V + k}, v{V + 2 * k}, v{V + 2 * k + 1}')
        for i in range(4):
            f.e(f'v_xor_b32 v24, {2 * i}, v26')
            f.e(f'v_lshl_add_u32 v24, v24, 3, v27')
            f.e(f'ds_write_b64 v24, {vr(V + 2 * i, 2)}', 'tr', 'TRV')
        f.e(f'v_xor_b32 v72, 16, v28')
        f.e(f'v_xor_b32 v73, 32, v29'); f.e(f'v_xor_b32 v74, 16, v29'); f.e(f'v_xor_b32 v75, 48, v29')
        interleave(slots, f, b2(0) + 8, b2(KB))
        f = P()
        KA, KB0, KB1, KD = ACC3, ACC3 + 4, ACC3 + 8, ACC3 + 12
        for kk in range(4):
            f.e(f'ds_read_b64_tr_b16 {vr(KA, 2)}, v28 offset:{kk * 4096}', None, 'TRK')
            f.e(f'ds_read_b64_tr_b16 {vr(KA + 2, 2)}, v72 offset:{kk * 4096 + 512}', None, 'TRK')
            f.e(f'ds_read_b64_tr_b16 {vr(KB0, 2)}, v29 offset:{kk * 2048}', None, 'TRV')
            f.e(f'ds_read_b64_tr_b16 {vr(KB0 + 2, 2)}, v74 offset:{kk * 2048 + 256}', None, 'TRV')
            f.e(f'ds_read_b64_tr_b16 {vr(KB1, 2)}, v73 offset:{kk * 2048}', None, 'TRV')
            f.e(f'ds_read_b64_tr_b16 {vr(KB1 + 2, 2)}, v75 offset:{kk * 2048 + 256}', None, 'TRV')
            f.append(Gap(2))
            f.e(f'{MF16} {vr(KD, 4)}, {vr(KA, 4)}, {vr(KB0, 4)}, {"0" if kk == 0 else vr(KD, 4)}')
            f.e(f'{MF16} {vr(KD + 4, 4)}, {vr(KA, 4)}, {vr(KB1, 4)}, {"0" if kk == 0 else vr(KD + 4, 4)}')
        f.append(Gap(2))
        for k in range(4): f.e(f'v_cvt_pk_bf16_f32 v{24 + k}, v{KD + 2 * k}, v{KD + 2 * k + 1}')
        f.e(f'buffer_store_dwordx2 v[24:25], v23, {srd(SWS)}, s{sT4} offen sc1', 'KV')
        f.e(f'buffer_store_dwordx2 v[26:27], v23, {srd(SWS)}, s{sT4} offen offset:256 sc1', 'KV')
        interleave(slots, f, b2(KB) + 1, b2(KB) + 12)
        q = P(); q.append(WaitVm('KV')); set_flag(q, f's{sT5}', 28); stamp(q, 'KVflag')
        slots[b2(KB) + 12 + opt('kvf', 8)].extend(q)
        GE = n3 + opt('g1end', 28); KP = n3 + opt('kp', 46)
        interleave(slots, gelu_tile(ACC2, 24, rem_soff(1), 'HR') + gelu_tile(ACC2 + 16, 24, rem_soff(2), 'HR'), E3, GE)
        f = P()
        f.e(f'v_and_b32 v{vFL16}, 15, v{vLANE}'); f.e(f'v_lshlrev_b32 v{vFL16}, 3, v{vFL16}')
        f.e(f's_lshl_b32 s{sT4}, s{sH}, 16'); f.e(f's_lshl_b32 s{sT2}, s{sTT}, 10')
        f.e(f's_add_u32 s{sT4}, s{sT4}, s{sT2}'); f.e(f's_add_u32 s{sT4}, s{sT4}, {KVP}')
        flag_load(f, 28, vFL16, f's{sKVFL}')
        slots[KP - 6].append(Group(f))
        q = P(); stamp(q, 'prekv'); poll(q, 'kv', 28, vFL16, f's{sKVFL}'); stamp(q, 'kvpoll')
        slots[KP].extend(q)
        q = P(); q.append(WaitVm('HR')); set_flag(q, f's{sFLP}', 24, 128)
        slots[GE + opt('rf1', 8)].extend(q)
        spread(slots, [gl(e) for e in range(8)], KP, len(slots))
    sched2 = [[f'D{k}' for k in range(nd, 4)], ['D4'], ['D5', 'A0'], ['D6', 'A1'], ['A2', 'A3'], ['A4'], ['A5']]
    for s in range(7):
        q = P()
        SO = opt('solo2', 1)
        for x in sched2[s]: (dma_D(q, half, int(x[1]), SO) if x[0] == 'D' else dma_A(q, int(x[1]), half, (1 if s <= KB else 0) if SO else None))
        if s == KB + 2:
            for n in range(3): dma_L(q, n, half, 0)
        bar(b2(s), ([f'D{s+1}', 'PHI'] if s == 0 else f'D{s+1}') if s < 6 else 'A0', q, b2(s + 1), dswait='tr' if s == KB else ('cs' if s in (0, 6) else None), name=f'b2_{s}')
    for s in range(7):
        q = P()
        if s == 0: dma_A(q, 6, half, 0)
        if s == KB + 2 - 7:
            for n in range(3): dma_L(q, n, half, 0)
        for n in (3 + 2 * s, 4 + 2 * s): dma_L(q, n, half, 0)
        bar(b3(s), f'A{s+1}' if s < 6 else None, q, min(b3(s + 1), len(slots)), dswait='cs' if s == 6 else None, name=f'b3_{s}')
    q = P()
    if half == 0: q.e(f'v_and_b32 v{vFL16}, 15, v{vLANE}'); q.e(f'v_lshlrev_b32 v{vFL16}, 3, v{vFL16}')
    q.e(f'v_and_b32 v{vFL32}, 31, v{vLANE}'); q.e(f'v_lshlrev_b32 v{vFL32}, 3, v{vFL32}')
    flag_load(q, 26, vFL32, f's{sFLD}')
    slots[len(slots) - 4].extend(q)
    for k in range(5): slots.append([I('s_nop 0')])
    cs_fix(b3(6) + 1, [ACC3, ACC3 + 16], 'CS3')
    for sl in slots: p.extend(x for x in sl if not (isinstance(x, Ins) and x.text == 's_nop 0' and sl.index(x) == 0))

NBR = 25
BR = [XF + 4 * k for k in range(NBR)]
SS = XF + 100
XR = XF + 108
def bload(k):
    return Group([I(f's_add_u32 s{sT1}, s{sHLD}, {LINES[k] * 4096}'),
                  I(f'buffer_load_dwordx4 {vr(BR[k % NBR], 4)}, v{vL16}, {srd(SWS)}, s{sT1} offen sc1')])

def att_late(half):
    K, Q = ACC1, ACC2
    f = P(); o = P(); o2 = P()
    if half == 0:
        W = 32
        wphi(f, W)
        for k in range(8): f.e(f'v_cvt_pk_bf16_f32 v{Q + k}, v{Q + 2 * k}, v{Q + 2 * k + 1}')
        wmask(f, W)
        f.e(f'{MF32} {vr(K, 16)}, {vr(W, 4)}, {vr(Q, 4)}, 0')
        f.e(f'{MF32} {vr(K, 16)}, {vr(W + 4, 4)}, {vr(Q + 4, 4)}, {vr(K, 16)}')
        sm = softmax_pm(K, Q, 40, pk=True)
        pre_n = len(f); f.extend(sm)
        KVF, NUM, PHQ, OP = [72, 76, 88, 92], 48, [80, 84, 64, 68], 72
        o.e(f'v_add_u32 v40, {KVBUF}, v{vL16}')
        for s in range(4): o.e(f'ds_read_b128 {vr(KVF[s], 4)}, v40 offset:{s * 1024}', None, 'KVBUF')
        o.append(Gap(2))
        for s in range(4): o.e(f'{MF32} {vr(NUM, 16)}, {vr(KVF[s], 4)}, {vr(PHQ[s], 4)}, {"0" if s == 0 else vr(NUM, 16)}')
        o2.e(f'v_add_f32 v40, {hx(f2u(1e-6))}, v{NUM + 12}')
        o2.e(f'v_rcp_f32 v40, v40')
        o2.e(f'v_mov_b32 v41, v40')
        o2.e(f'v_permlane32_swap_b32 v40, v41')
        o2.e(f'v_mul_f32 v41, v40, v{vGM}')
        for k in range(16): o2.e(f'v_mul_f32 v{NUM + k}, v{NUM + k}, v{40 if k < 12 else 41}')
        for k in range(8): o2.e(f'v_cvt_pk_bf16_f32 v{OP + k}, v{NUM + 2 * k}, v{NUM + 2 * k + 1}')
        o2.append(Group(hsoff([f's_lshl_b32 s{sT1}, s{sH}, 1', f's_add_u32 s{sT1}, s{sT1}, 112']) +
            [I(f'buffer_store_dwordx4 {vr(OP, 4)}, v{vL16}, {srd(SWS)}, s{sT1} offen sc1', 'O'),
             I(f'buffer_store_dwordx4 {vr(OP + 4, 4)}, v{vL16}, {srd(SWS)}, s{sT1} offen offset:1024 sc1', 'O')]))
    else:
        for k in range(8): f.e(f'v_mov_b32 v{SS + k}, 0')
        for e0 in range(0, 16, 4):
            blk = []
            for e in range(e0, e0 + 4):
                for k in range(4):
                    blk.append(I(f'v_dot2c_f32_bf16 v{SS + 2 * k}, s{sSEL0}, v{GDST[e] + k}'))
                    blk.append(I(f'v_dot2c_f32_bf16 v{SS + 2 * k + 1}, s{sSEL1}, v{GDST[e] + k}'))
            f.append(Group(blk))
        for k in range(4): f.e(f'v_cvt_pk_bf16_f32 v{SS + k}, v{SS + 2 * k}, v{SS + 2 * k + 1}')
        f.append(Group([I(f's_lshl_b32 s{sT2}, s{sTT}, 10'), I(f's_add_u32 s{sT2}, s{sT2}, {KVBUF}'), I(f'v_add_u32 v{SS + 4}, s{sT2}, v{vL16}')]))
        f.e(f'ds_write_b128 v{SS + 4}, {vr(SS, 4)}', 'kvb', 'KVBUF')
    return f, o, o2, (pre_n if half == 0 else 8)

NBAR_KV = 0
def phase1_tail(p, half):
    stamp(p, 'endA')
    poll(p, f'R{half}', 26, vFL32, f's{sFLD}')
    stamp(p, 'Rpoll')
    if half == 1 and opt('tprio', 0): p.e('s_setprio 1')
    code = P()
    for t in range(2):
        so = hsoff([f's_mul_i32 s{sT1}, s{sJ}, 7', f's_add_u32 s{sT1}, s{sT1}, s{sJM}', f's_add_u32 s{sT1}, s{sT1}, {2 * half + t}'])
        code.extend(gelu_tile(ACC3 + 16 * t, 112, so, 'HA', pk=True))
    NR1 = opt('nr1', 8)
    p.extend(mix(code, [bload(k) for k in range(NR1)], 0.0, 0.95))
    if half == 1 and opt('tprio', 0): p.e('s_setprio 0')
    stamp(p, 'gelu')
    p.e(f's_cmp_ge_u32 s{sI}, 28')
    p.e(f's_cbranch_scc1 L_exit{half}')
    q = P(); q.append(Reset()); q.e(f'L_exit{half}:')
    q.e('s_waitcnt vmcnt(0) lgkmcnt(0)'); q.e('s_nop 7'); set_flag(q, f's{sFLP}', 24, 256 + 128 * half)
    f, o, o2, _ = att_late(half)
    if half == 1:
        for e in range(8, 16): q.append(gl(e))
    q.extend(f); q.append(WaitDs()); q.e('s_barrier'); q.extend(o); q.extend(o2)
    if half == 0: q.e('s_waitcnt vmcnt(0)'); set_flag(q, f's{sFLP}', 24, 512)
    q.e('s_endpgm')
    slow_paths.append(q)
    return NR1

def phase2(p, half, NR1):
    AY, AS = 96, ACC3
    AR = [240, 244, 248, 252]
    vW = [[8, 9, 10], [11, 12, 13]]
    vO = [[14, 15], [16, 17]]
    vOUT = 18
    code = P()
    code.e(f'v_bfe_u32 v24, v{vLANE}, 2, 2')
    code.e(f'v_bfe_u32 v26, v{vLANE}, 4, 1')
    code.e(f'v_and_b32 v27, 2, v24')
    code.e(f'v_xor_b32 v26, v26, v27')
    code.e(f'v_and_b32 v27, 3, v{vLANE}')
    code.e(f'v_lshlrev_b32 v27, 3, v27')
    code.e(f'v_lshl_add_u32 v27, v24, 7, v27')
    code.e(f'v_lshl_add_u32 v27, v26, 5, v27')
    code.e(f'v_lshrrev_b32 v25, 5, v{vLANE}')
    code.e(f'v_lshl_add_u32 v26, v25, 9, v27')
    code.e(f's_lshl_b32 s{sT2}, s{sTT}, 11')
    code.e(f'v_add_u32 v{vW[0][0]}, s{sT2}, v26')
    code.e(f'v_xor_b32 v{vW[1][0]}, 64, v{vW[0][0]}')
    for nt in range(2):
        code.e(f'v_add_u32 v{vW[nt][1]}, 0x10000, v{vW[nt][0]}')
        code.e(f'v_add_u32 v{vW[nt][2]}, 0x20000, v{vW[nt][0]}')
    p.extend(mix(code, [bload(k) for k in range(NR1, min(12, NR1 + 2))]))
    ks = []
    for n in range(36):
        u = LU[n]; isO = n >= 28
        if not isO: rd = [[(vW[nt][u // 8], (u % 8) * U + r * 1024) for r in range(2)] for nt in range(2)]
        else: rd = [[(vO[nt][r], u * U - OW) for r in range(2)] for nt in range(2)]
        ks.append(dict(acc=AS if isO else AY, first=n in (0, 28), rd=rd))
    NB = len(AR); D = NB - 1; BO = 8 - D - 1
    mf = [(k, nt) for k in range(36) for nt in range(2)]
    def reads(n):
        k, nt = mf[n]; b = AR[n % NB]
        return [I(f'ds_read_b64_tr_b16 {vr(b + 2 * r, 2)}, v{a} offset:{off}', None, f'L{k}') for r, (a, off) in enumerate(ks[k]['rd'][nt])]
    p.append(WaitVm(['L0', 'L1', 'L2', 'L3'])); p.e('s_barrier')
    stamp(p, 'bPopen')
    for n in range(D): p.extend(reads(n))
    slots = []
    for n, (k, nt) in enumerate(mf):
        acc = ks[k]['acc'] + 16 * nt
        sl = [I(f'{MF32} {vr(acc, 16)}, {vr(AR[n % NB], 4)}, {vr(BR[k % NBR], 4)}, {"0" if ks[k]["first"] else vr(acc, 16)}')]
        if n + D < len(mf): sl += reads(n + D)
        slots.append(sl)
    bP = lambda s: 8 * s + BO
    q = P(); q.extend(bload(k) for k in range(min(12, NR1 + 2), 12)); dma_L(q, 17, half); dma_L(q, 18, half)
    spread(slots, q, 0, 6)
    q = P()
    q.e(f's_lshr_b32 s{sT2}, s{sTT}, 1')
    q.e(f's_mul_i32 s{sT2}, s{sT2}, {28 * 128}')
    q.e(f's_and_b32 s{sT3}, s{sTT}, 1')
    q.append(Group([I(f's_cmp_eq_u32 s{sT3}, 0'), I(f's_cselect_b64 vcc, -1, 0'), I(f'v_cndmask_b32 v27, v27, v26, vcc')]))
    q.e(f's_lshl_b32 s{sT3}, s{sT3}, 11')
    q.e(f's_add_u32 s{sT2}, s{sT2}, s{sT3}')
    q.e(f's_add_u32 s{sT2}, s{sT2}, {OW}')
    q.e(f'v_add_u32 v{vO[0][0]}, s{sT2}, v26')
    q.e(f's_add_u32 s{sT2}, s{sT2}, 1024')
    q.e(f'v_add_u32 v{vO[0][1]}, s{sT2}, v27')
    for r in range(2): q.e(f'v_xor_b32 v{vO[1][r]}, 64, v{vO[0][r]}')
    q.e(f'v_and_b32 v24, 31, v{vLANE}')
    q.e(f's_lshl_b32 s{sT2}, s{sT2K}, 5')
    q.e(f'v_add_u32 v24, s{sT2}, v24')
    q.e(f'v_mul_u32_u24 v24, 896, v24')
    q.e(f'v_lshl_add_u32 v24, v25, 4, v24')
    q.e(f's_lshl_b32 s{sT2}, s{sNG}, 7')
    q.e(f's_lshl_b32 s{sT3}, s{sTT}, 5')
    q.e(f's_add_u32 s{sT2}, s{sT2}, s{sT3}')
    q.e(f'v_add_u32 v{vOUT}, s{sT2}, v24')
    q.e(f's_add_u32 s{sT5}, s{sFLD}, 512')
    slots[0].append(Group(q))
    KVB = 'x'
    BS = opt('bs', 1)
    BE = 8 * BS
    f, o, o2, pre_n = att_late(half)
    if BS: interleave(slots, P(f[:pre_n]), 1, BE - 2)
    if half == 1 and BS: spread(slots, [gl(e) for e in range(8, 16)], 1, min(10, BE - 2))
    AFP = opt('afp', 2); OPOS = opt('opos', 44)
    blk = P(f[pre_n:] if BS else f)
    at = P()
    if not BS:
        if half == 1: at.extend(gl(e) for e in range(8, 16))
    else:
        for n in range(15 + 4 * BS, 19 + 4 * BS): dma_L(at, n, half)
    qa = P(); qa.append(WaitVm('HA')); set_flag(qa, f's{sFLP}', 24, 256 + 128 * half); stamp(qa, 'Aflag')
    ACUT = opt('acut', 100); NA0 = opt('na0', 6) if ACUT < 100 else 0
    cut = int(len(blk) * ACUT / 100)
    q = P()
    if BS: q.append(WaitDs()); q.e('s_barrier'); slots[AFP].extend(qa)
    stamp(q, 'blk0')
    fl = P(); flag_load(fl, 28, vFL16, f's{sFLA}')
    ap = P(); stamp(ap, 'preApoll'); poll(ap, f'A{half}', 28, vFL16, f's{sFLA}'); stamp(ap, 'Apoll')
    q.extend(mix(P(blk[:cut]), list(at) + ([Group(qa)] if not BS else []) + ([Group(fl)] if ACUT < 100 else []), 0.0, 0.7))
    if ACUT < 100:
        q.extend(ap); q.extend(mix(P(blk[cut:]), [bload(k) for k in range(12, 12 + NA0)])); A1 = BE
    else:
        A1 = BE + opt('a1', 2)
        if A1 - 4 >= BE: slots[A1 - 4].extend(fl)
        else: q.extend(fl)
    q.append(WaitDs('kvb')); q.e('s_barrier'); stamp(q, 'bKV')
    if BS: slots[BE - 1].extend(q)
    else: pre_block = q
    if o: interleave(slots, o, BE, BE + 3); interleave(slots, o2, BE + 5, BE + 9)
    if ACUT >= 100: slots[A1].extend(ap)
    if half == 0:
        q = P(); q.append(WaitVm('O')); set_flag(q, f's{sFLP}', 24, 512); stamp(q, 'Oflag'); slots[BE + 9 + opt('ofl', 6)].extend(q)
    spread(slots, [bload(k) for k in range(12 + NA0, 28)], A1, opt('aend', 40))
    q = P(); flag_load(q, 26, vFL16, f's{sT5}'); slots[OPOS - 4].extend(q)
    q = P(); stamp(q, 'preOpoll'); poll(q, f'O{half}', 26, vFL16, f's{sT5}'); stamp(q, 'Opoll')
    slots[OPOS].extend(q)
    spread(slots, [bload(k) for k in range(28, 36)], OPOS, OPOS + opt('ospan', 6))
    q = P(); q.e(f'buffer_load_dwordx4 {vr(XR, 4)}, v{vOUT}, {srd(SX)}, 0 offen'); slots[54].extend(q)
    q = P()
    for n in range(19, 36): dma_L(q, n, half)
    for n in range(19, 36):
        if BS and 15 + 4 * BS <= n < 19 + 4 * BS: continue
        slots[bP((n - 15) // 4) + 1 + (n - 15) % 4 * 2].append(q[n - 19])
    def red_addr(q, base, dstw, dstr):
        q.append(Group([I(f's_mul_i32 s{sT2}, s{sTT}, 6144'), I(f's_add_u32 s{sT2}, s{sT2}, {base}'), I(f'v_add_u32 v{dstr}, s{sT2}, v{vL16}')]))
        q.e(f'v_add_u32 v{dstw}, {base}, v{vL16}')
    def red_write(q, acc, own, aw, uid, obj):
        for kq in range(4):
            if kq < 3:
                q.e(f's_cmp_lg_u32 s{sTT}, {kq}'); q.e(f's_cbranch_scc1 L_red{uid}_{kq + 1}')
            for part in range(4):
                if part == kq: continue
                slot = kq if kq < part else kq - 1
                for hh in range(2):
                    q.e(f'ds_write_b128 v{aw}, {vr(acc + 8 * part + 4 * hh, 4)} offset:{part * 6144 + slot * 2048 + hh * 1024}', 'red' if kq == 0 else 'NOTRACK', obj)
            for k in range(0, 8, 2): q.e(f'v_mov_b64 {vr(own + k, 2)}, {vr(acc + 8 * kq + k, 2)}')
            if kq < 3: q.e(f's_branch L_red{uid}_4'); q.e(f'L_red{uid}_{kq + 1}:')
        q.e(f'L_red{uid}_4:')
    YO, SO, YR, SR, G, XU_ = 64, 72, 184, 128, 80, 88
    q = P(); red_addr(q, REDY[half], 24, 25); red_write(q, AY, YO, 24, f'Y{half}', f'REDY{half}'); slots[bP(7) + 1].extend(q)
    for s in range(9):
        q = P()
        if s < 8: q.append(WaitVm([f'L{4 * (s + 1) + i}' for i in range(4)]))
        ds = 'kvb' if s == KVB else ('red' if s == 8 else None)
        if ds: q.append(WaitDs(ds))
        q.e('s_barrier'); stamp(q, f'bP{s}')
        pos = bP(s) if s < 8 else 66
        if ds: slots[pos].extend(q)
        else: slots[pos][1:1] = q
    q = P()
    for src in range(3):
        for hh in range(2): q.e(f'ds_read_b128 {vr(YR + 8 * src + 4 * hh, 4)}, v25 offset:{src * 2048 + hh * 1024}', None, f'REDY{half}')
    red_addr(q, REDS[half], 24, 26)
    q.e(f'v_permlane32_swap_b32 v{XR}, v{XR + 2}')
    q.e(f'v_permlane32_swap_b32 v{XR + 1}, v{XR + 3}')
    for k in range(4):
        q.e(f'v_lshlrev_b32 v{XU_ + 2 * k}, 16, v{XR + k}')
        q.e(f'v_and_b32 v{XU_ + 2 * k + 1}, 0xffff0000, v{XR + k}')
    for k in range(8): q.e(f'v_add_f32 v{YR + 8 + k}, v{YR + 8 + k}, v{YR + 16 + k}')
    for k in range(8): q.e(f'v_add_f32 v{YO + k}, v{YO + k}, v{YR + k}')
    interleave(slots, q, 67, 72)
    if not BS: p.extend(pre_block)
    for sl in slots: p.extend(sl)
    stamp(p, 'endP')
    pr = lambda b, k: vr(b + 2 * k, 2)
    for k in range(4): p.e(f'v_pk_add_f32 {pr(YO, k)}, {pr(YO, k)}, {pr(YR + 8, k)}')
    for k in range(4): p.e(f'v_pk_mul_f32 {pr(G, k)}, {pr(YO, k)}, s[{sC}:{sC+1}] op_sel_hi:[1,0] neg_lo:[1,0] neg_hi:[1,0]')
    p.append(WaitDs())
    p.e('s_nop 3')
    red_write(p, AS, SO, 24, f'S{half}', f'REDS{half}')
    for k in range(8): p.e(f'v_exp_f32 v{G + k}, v{G + k}')
    for k in range(4): p.e(f'v_pk_add_f32 {pr(G, k)}, {pr(G, k)}, 1.0 op_sel_hi:[1,0]')
    for k in range(8): p.e(f'v_rcp_f32 v{G + k}, v{G + k}')
    for k in range(4): p.e(f'v_pk_mul_f32 {pr(G, k)}, {pr(G, k)}, {pr(YO, k)}')
    p.append(WaitDs())
    p.e('s_barrier')
    stamp(p, 'bS')
    for src in range(3):
        for hh in range(2): p.e(f'ds_read_b128 {vr(SR + 8 * src + 4 * hh, 4)}, v26 offset:{src * 2048 + hh * 1024}', None, f'REDS{half}')
    for k in range(4): p.e(f'v_pk_fma_f32 {pr(XU_, k)}, {pr(SO, k)}, {pr(G, k)}, {pr(XU_, k)}')
    for src in range(3):
        for k in range(4): p.e(f'v_pk_fma_f32 {pr(XU_, k)}, {pr(SR + 8 * src, k)}, {pr(G, k)}, {pr(XU_, k)}')
    for k in range(4): p.e(f'v_cvt_pk_bf16_f32 v{G + k}, v{XU_ + 2 * k}, v{XU_ + 2 * k + 1}')
    p.e(f'v_permlane32_swap_b32 v{G}, v{G + 2}')
    p.e(f'v_permlane32_swap_b32 v{G + 1}, v{G + 3}')
    p.e(f'buffer_store_dwordx4 {vr(G, 4)}, v{vOUT}, {srd(SOUT)}, 0 offen')
    stamp(p, 'end'); dump(p)
    if half == 0:
        p.e(f's_or_b32 s{sT1}, s2, s{sW}')
        p.e(f's_cmp_lg_u32 s{sT1}, 0')
        p.e(f's_cbranch_scc1 L_end')
        set_flag(p, '0', 24)
    p.e('s_endpgm')

def build():
    pro = prologue()
    outs = []; fulls = []
    for half in range(2):
        p = P()
        nd = pass1(p, half); phase1_main(p, half, nd); nr = phase1_tail(p, half); phase2(p, half, nr)
        mark = I(f'L_half{half}:')
        full = finalize(list(pro) + [mark] + list(p)); fulls.append(full)
        outs.append(full[full.index(mark):])
    if not (opt('nobar', 0) or opt('nodma', 0)): check_lds(fulls, RANGES)
    assert len({sum(x.op == 's_barrier' for x in f) for f in fulls}) == 1
    pro_f = finalize(list(pro))
    slow = []
    for q in slow_paths: slow += finalize(list(q))
    hdr = open('recurrent_scan__linear_kernel_hedgehog__geglu_ffn__prompt.s.ref').read().split('\n')
    top = [l for l in hdr if l.startswith(';') and '@launch' not in l and 'Override' not in l and 'grid=ceil' not in l]
    s = '\n'.join(top) + '\n; @launch grid=(256,1,1) block=(512,1,1) lds=163840\n'
    s += f'.amdgcn_target "amdgcn-amd-amdhsa--gfx950"\n.text\n.globl {NAME}\n.p2align 8\n.type {NAME},@function\n{NAME}:\n'
    s += text(pro_f) + text(outs[0]) + text(outs[1]) + text(slow)
    s += 'L_end:\n    s_endpgm\nL_codeend:\n'
    s += f'''.section .rodata,"a"
.p2align 6
.amdhsa_kernel {NAME}
  .amdhsa_next_free_vgpr 256
  .amdhsa_next_free_sgpr 96
  .amdhsa_accum_offset 256
  .amdhsa_group_segment_fixed_size 0
  .amdhsa_kernarg_size 88
  .amdhsa_user_sgpr_count 2
  .amdhsa_user_sgpr_kernarg_segment_ptr 1
  .amdhsa_system_sgpr_workgroup_id_x 1
.end_amdhsa_kernel
'''
    return s

if __name__ == '__main__':
    open(sys.argv[1], 'w').write(build())
    if DEBUG: json.dump(STAMPS, open('stamps.json', 'w'))
```

```python
import sys, struct, math, json
sys.path.insert(0, 'work')
from asmlib import *

NAME = 'recurrent_scan__linear_kernel_hedgehog__geglu_ffn__prompt_kernel'
def f2u(x): return struct.unpack('<I', struct.pack('<f', x))[0]
def hx(x): return '0x%08x' % (x & 0xffffffff)
LOG2E = 1.4426950408889634
ARGS = sys.argv[2:]
DEBUG = 'dbg' in ARGS
def opt(name, default):
    for a in ARGS:
        if a.startswith(name + '='): return int(a.split('=')[1])
    return default

EP, KVFL, HFL, KVP, HB = 0x0, 0x1000, 0x10000, 0x40000, 0x200000
FLT = 1024
TBLK = 148 * 1024
WS_SIZE = HB + 64 * TBLK
DBGOFF = 0xC00000
if DEBUG: WS_SIZE = 0xD00000
SX, SQKV, SG, SU, SWD, SWO, SWS, SOUT, SPHI, SREM = 8, 12, 16, 20, 24, 28, 32, 36, 40, 44
def srd(b): return f's[{b}:{b+3}]'
sW, sRB, sH, sJ, sJM, sCH, sW1K, sREML = 48, 49, 50, 51, 52, 53, 54, 55
sTAG = 56
sTT, sT, sXI, sI = 58, 59, 60, 61
sC = 62; sHST = 63
sT0, sT1, sT2, sT3, sT4, sT5 = 64, 65, 66, 67, 68, 69
sONE2, sSEL0, sSEL1 = 70, 71, 72
sHLD, sFLD, sNG, sT2K, sFLA, sFLP, sKVFL, sRDY = 73, 74, 75, 76, 77, 78, 82, 83
sSPIN = 79
sPERM = 83
sT1K = 90
vOR3 = 22
sPC = 80
vLANE, vL16, vGM, vIR2, vCR, vK1, vK2 = 1, 2, 3, 4, 5, 6, 7
vOQ = 8; vOR = [9, 10]; vTQ = 11; vTR = [12, 13]; vDU = [14, 15, 16]
vOA = [17, 18]; vOW2 = 19; vTA = [20, 21]; vDA = [16, 22]
vOX = 31
ACC3, ACC1, ACC2, XF = 32, 64, 80, 128
AFR = [112, 116, 120, 124]
ASEL, ACS, BM, CFR = 240, 244, 246, 250
def vr(b, n=1): return f'v{b}' if n == 1 else f'v[{b}:{b+n-1}]'

U = 8192
XU = lambda p: 2 * p * U
CU = [14 * U, 15 * U, 16 * U, 17 * U, 18 * U, 0, U]
DU = [2 * U, 4 * U, 6 * U, 8 * U, 10 * U, 12 * U, 14 * U]
AU = [0, 2 * U, 4 * U, 6 * U, 8 * U, 10 * U, 12 * U]
TRV, TRK = 16 * U, 17 * U
MISC = 19 * U; CSB = MISC + 2048; STAT = MISC + 4096; KVBUF = MISC + 4096
LINES = [L for L in range(28) if L % 7 in (1, 3, 5)] + [L for L in range(28) if L % 7 in (0, 2, 4, 6)] + list(range(28, 36))
LU = [16, 17, 18, 14, 15, 0, 1, 2, 3, 4, 5, 6, 7, 8, 9, 10, 11, 12, 13,
      16, 17, 18, 14, 15, 0, 1, 2, 3, 4, 5, 6, 7, 8, 9, 10, 11]
OW = 4 * U
REDS, REDY = [4 * U, 15 * U], [0, 12 * U]
LOG = 32
RANGES = {'PHI': (MISC, MISC + 2048), 'STAT': (STAT, STAT + 4096), 'KVBUF': (KVBUF, KVBUF + 4096), 'TRV': (TRV, TRV + U), 'TRK': (TRK, TRK + 2 * U),
          'CS1': (CSB, CSB + 2048), 'CS2': (CSB, CSB + 2048), 'CS3': (CSB, CSB + 2048)}
for h_ in range(2):
    RANGES[f'REDS{h_}'] = (REDS[h_], REDS[h_] + 3 * U); RANGES[f'REDY{h_}'] = (REDY[h_], REDY[h_] + 3 * U)
for c in range(7):
    RANGES[f'X{c}'] = (XU(c), XU(c) + 2 * U); RANGES[f'C{c}'] = (CU[c], CU[c] + U)
    RANGES[f'D{c}'] = (DU[c], DU[c] + 2 * U); RANGES[f'A{c}'] = (AU[c], AU[c] + 2 * U)
for n in range(36): RANGES[f'L{n}'] = (LU[n] * U, LU[n] * U + U)

MF32 = 'v_mfma_f32_32x32x16_bf16'
MF16 = 'v_mfma_f32_16x16x32_bf16'

class P(list):
    def e(self, t, tok=None, obj=None): self.append(I(t, tok, obj)); return self

STAMPS = {}
def stamp(p, name, rt=False):
    if not DEBUG: return
    if opt('prew', 0) and name.startswith(('bP', 'b3', 'bX', 'pre')): return
    if opt('light', 0) and name not in ('karg', 'bX0', 'bX7', 'end1', 'b2_0', 'b3_0', 'b2_6', 'endA', 'bPopen', 'bP2', 'bP4', 'bP5', 'endP', 'end', 'rt_end'): return
    k = STAMPS.setdefault(name, len(STAMPS)); assert k < 64
    p.append(Group([I(f'{"s_memrealtime" if rt else "s_memtime"} s[84:85]'), I('s_waitcnt lgkmcnt(0)'), I(f'v_writelane_b32 v0, s84, {k}')]))
def dump(p):
    if not DEBUG: return
    stamp(p, 'rt_end', True)
    p.e(f's_lshl_b32 s84, s2, 3'); p.e(f's_add_u32 s84, s84, s{sW}'); p.e('s_lshl_b32 s84, s84, 8'); p.e(f's_add_u32 s84, s84, {DBGOFF}')
    p.e(f'v_lshlrev_b32 v31, 2, v{vLANE}')
    p.e(f'buffer_store_dword v0, v31, {srd(SWS)}, s84 offen')
    if opt('dbgwg', -1) >= 0:
        p.e(f's_lshl_b32 s84, s2, 3'); p.e(f's_add_u32 s84, s84, s{sW}')
        p.e(f's_cmp_lg_u32 s84, {opt("dbgwg", 0) * 8}')
        p.e(f's_cbranch_scc1 L_nodbg{len(slow_paths)}')
        p.e('s_load_dwordx2 s[90:91], s[0:1], 72'); p.e('v_readlane_b32 s86, v0, 0'); p.e('v_readlane_b32 s87, v0, 1'); p.e('s_waitcnt lgkmcnt(0)')
        p.e('v_subrev_u32 v30, s86, v0'); p.e('v_subrev_u32 v29, s87, v0')
        p.e(f'v_cmp_eq_u32 vcc, {STAMPS["rt_end"]}, v{vLANE}'); p.e('v_cndmask_b32 v30, v30, v29, vcc')
        p.e('global_store_dword v31, v30, s[90:91]')
        p.e(f'L_nodbg{len(slow_paths)}:')

def dma(p, s, voff, pre, m0base, m0const, tok):
    p.append(Group([I(f's_add_u32 m0, s{m0base}, {m0const}')] + [I(t) for t in pre] +
                   [I(f'buffer_load_dwordx4 v{voff}, {srd(s)}, s{sT0} offen lds', tok, tok)]))
def cidx(pos): return f's_bfe_u32 s{sT0}, s{sCH}, {hx((4 << 16) | (4 * pos))}'
def dma_X(p, c):
    dma(p, SX, vOX, [cidx(c), f's_lshl_b32 s{sT0}, s{sT0}, 7'], sW1K, XU(c), f'X{c}')
    dma(p, SX, vOX, [f's_add_u32 s{sT0}, s{sT0}, {64 * 896}'], sW1K, XU(c) + U, f'X{c}')
def dma_C(p, half, c):
    dma(p, SQKV, vOQ, [cidx(c), f's_mul_i32 s{sT0}, s{sT0}, {64 * 2688}', f's_add_u32 s{sT0}, s{sT0}, {896 * (1 + half)}'], sW1K, CU[c], f'C{c}')
def dma_D(p, half, c, solo=False):
    k26 = [cidx(c), f's_mul_i32 s{sT0}, s{sT0}, {64 * 2688}']; k35 = [cidx(c), f's_mul_i32 s{sT0}, s{sT0}, {64 * 3584}']
    if solo:
        if half == 0: return
        dma(p, SQKV, vOQ, k26, sT1K, DU[c], f'D{c}')
        dma(p, SG, vOR3, k35, sT1K, DU[c] + 4096, f'D{c}')
    if half == 0:
        dma(p, SQKV, vOQ, k26, sT1K, DU[c], f'D{c}')
        dma(p, SREM, vOR[0], k35, sREML, DU[c] + 4096, f'D{c}')
    else:
        dma(p, SREM, vOR[0], [] if solo else k35, sREML, DU[c] + 4096, f'D{c}')
        dma(p, SREM, vOR[1], [], sREML, DU[c] + 5120, f'D{c}')
def dma_A(p, pos, half, solo=None):
    k35 = [cidx(pos), f's_mul_i32 s{sT0}, s{sT0}, {64 * 3584}']; up = [f's_add_u32 s{sT0}, s{sT0}, {32 * 3584}']
    if solo is not None and half != solo: return
    for hh in ((0, 1) if solo is not None else (half,)):
        pre = (k35 if hh == 0 or solo is None else []) + (up if hh else [])
        dma(p, SG, vOA[0], pre, sT1K, AU[pos] + 4096 * hh, f'A{pos}')
        dma(p, SU, vOA[1], [], sT1K, AU[pos] + U + 4096 * hh, f'A{pos}')
def dma_L(p, n, half, solo=None):
    L = LINES[n]
    s, row = (SWD, L * 64) if L < 28 else (SWO, (L - 28) * 56)
    if solo is not None and half != solo: return
    for hh in ((0, 1) if solo is not None else (half,)):
        dma(p, s, vOW2, [f's_mov_b32 s{sT0}, {(row + 32 * hh) * 896}'], sT1K, LU[n] * U + 4096 * hh, f'L{n}')
def spread(slots, atoms, start, end):
    n = len(atoms)
    for k, x in enumerate(atoms): slots[start + (k * (end - start)) // n].append(x)
def mix(code, atoms, lead=0.0, tail=1.0):
    total = sum(x.cost for x in code); out = P(); acc = 0; k = 0; n = len(atoms)
    for x in code:
        while k < n and acc >= total * (lead + (tail - lead) * k / n): out.append(atoms[k]); k += 1
        out.append(x); acc += x.cost
    out.extend(atoms[k:])
    return out

slow_paths = []
def flag_load(p, vflag, vaddr, soff):
    p.e(f'buffer_load_dwordx2 {vr(vflag, 2)}, v{vaddr}, {srd(SWS)}, {soff} offen sc1')
def poll(p, uid, vflag, vaddr, soff):
    p.e(f'v_cmp_ne_u64 vcc, s[{sTAG}:{sTAG+1}], {vr(vflag, 2)}')
    p.e(f's_cbranch_vccnz L_slow_{uid}')
    p.e(f'L_res_{uid}:')
    q = P(); q.append(Reset())
    q.e(f'L_slow_{uid}:')
    q.e(f's_mov_b32 s{sSPIN}, 0x40000')
    q.e(f'L_spin_{uid}:')
    flag_load(q, vflag, vaddr, soff)
    q.e('s_waitcnt vmcnt(0)')
    q.e(f'v_cmp_ne_u64 vcc, s[{sTAG}:{sTAG+1}], {vr(vflag, 2)}')
    q.e(f's_cbranch_vccz L_res_{uid}')
    q.e(f's_sleep {opt("sleep", 2)}')
    q.e(f's_sub_u32 s{sSPIN}, s{sSPIN}, 1')
    q.e(f's_cmp_lg_u32 s{sSPIN}, 0')
    q.e(f's_cbranch_scc1 L_spin_{uid}')
    q.e(f's_branch L_res_{uid}')
    slow_paths.append(q)
def set_flag(p, soff, vt, off=0):
    p.append(Group([I(f'v_mov_b32 v{vt}, s{sTAG}'), I(f'v_mov_b32 v{vt+1}, s{sTAG+1}'),
        I(f's_mov_b64 exec, 1'),
        I(f'buffer_store_dwordx2 {vr(vt, 2)}, off, {srd(SWS)}, {soff} offset:{off} sc1'),
        I(f's_mov_b64 exec, -1')]))
def srd_consts(p, b, n):
    p.e(f's_mov_b32 s{b+2}, {n}'); p.e(f's_mov_b32 s{b+3}, 0x20000')

def prologue():
    p = P()
    p.e('s_cmp_ge_u32 s2, 256')
    p.e('s_cbranch_scc1 L_end')
    if DEBUG: p.e('s_memtime s[86:87]'); p.e('s_memrealtime s[88:89]')
    p.e(f's_load_dwordx4 s[{SX}:{SX+3}], s[0:1], 0')
    p.e(f's_getpc_b64 s[{sPC}:{sPC+1}]')
    p.e('L_pcbase:')
    p.e(f's_lshr_b32 s{sI}, s2, 3')
    p.e(f'v_lshrrev_b32 v48, 6, v0')
    p.e(f'v_and_b32 v49, 1, v0')
    p.e(f'v_lshl_or_b32 v49, v48, 1, v49')
    p.e(f's_lshl_b32 s{sT0}, s{sI}, 4')
    p.e(f'v_add_u32 v49, s{sT0}, v49')
    p.e(f'v_lshlrev_b32 v49, 7, v49')
    p.e(f'v_min_u32 v49, (L_codeend - L_pcbase - 4), v49')
    if opt('cpf', 1): p.e(f'global_load_dword v56, v49, s[{sPC}:{sPC+1}]')
    p.e(f'v_readfirstlane_b32 s{sW}, v48')
    p.e(f's_and_b32 s{sXI}, s2, 7')
    p.e(f'v_and_b32 v{vLANE}, 63, v0')
    p.e(f's_and_b32 s{sT0}, s{sXI}, 1')
    p.e(f's_lshl_b32 s{sT0}, s{sT0}, 3')
    p.e(f's_and_b32 s{sT1}, s{sI}, 7')
    p.e(f's_add_u32 s{sRB}, s{sT0}, s{sT1}')
    p.e(f's_lshr_b32 s{sT2}, s{sI}, 3')
    p.e(f's_lshr_b32 s{sT0}, s{sXI}, 1')
    p.e(f's_lshl_b32 s{sT0}, s{sT0}, 2')
    p.e(f's_add_u32 s{sH}, s{sT0}, s{sT2}')
    p.e(f'v_lshrrev_b32 v50, 3, v{vLANE}')
    p.e(f's_lshl_b32 s{sT2}, s{sT2}, 1')
    p.e(f's_add_u32 s{sT1}, s{sT1}, s{sT2}')
    p.e(f'v_lshrrev_b32 v51, 4, v{vLANE}')
    p.e(f's_sub_u32 s{sT2}, s{sT1}, 7')
    p.e(f's_cmp_ge_u32 s{sT1}, 7')
    p.e(f's_cselect_b32 s{sT1}, s{sT2}, s{sT1}')
    p.e(f'v_and_b32 v52, 7, v{vLANE}')
    p.e(f's_lshl_b32 s{sT1}, s{sT1}, 2')
    p.e(f's_mov_b32 s{sT2}, 0x06543210')
    p.e(f's_mov_b32 s{sT3}, 0x00654321')
    p.e(f's_lshr_b64 s[{sT2}:{sT3}], s[{sT2}:{sT3}], s{sT1}')
    p.e(f's_mov_b32 s{sCH}, s{sT2}')
    p.e(f's_lshl_b32 s{sW1K}, s{sW}, 10')
    p.e(f's_lshl_b32 s{sT0}, s{sRB}, 7')
    p.e(f's_lshl_b32 s{sT1}, s{sW}, 3')
    p.e(f's_add_u32 s{sT0}, s{sT0}, s{sT1}')
    p.e(f'v_add_u32 v{vOX}, s{sT0}, v50')
    p.e(f'v_mul_u32_u24 v{vOX}, 896, v{vOX}')
    p.e(f's_and_b32 s{sT1}, s{sW}, 1')
    p.e(f's_lshl_b32 s{sT1}, s{sT1}, 2')
    p.e(f'v_xor_b32 v51, s{sT1}, v51')
    p.e(f'v_xor_b32 v51, v51, v52')
    p.e(f'v_lshl_add_u32 v{vOX}, v51, 4, v{vOX}')
    srd_consts(p, SQKV, 448 * 2688)
    p.e('s_waitcnt lgkmcnt(0)')
    p.e(f's_mov_b32 s{SQKV}, s{SX+2}'); p.e(f's_mov_b32 s{SQKV+1}, s{SX+3}')
    srd_consts(p, SX, 1835008)
    if DEBUG:
        STAMPS['start'] = 0; STAMPS['rt_start'] = 1
        p.e('v_writelane_b32 v0, s86, 0'); p.e('v_writelane_b32 v0, s88, 1')
    stamp(p, 'karg')
    dma_X(p, 0)
    for b, off in ((SG, 40), (SU, 48), (SPHI, 16), (SWO, 24), (SWD, 56), (SOUT, 64), (SWS, 80)):
        p.e(f's_load_dwordx2 s[{b}:{b+1}], s[0:1], {off}')
    p.e(f's_and_b32 s{sTT}, s{sW}, 3')
    p.e(f's_cmp_ge_u32 s{sW}, 4')
    p.e('s_cbranch_scc1 L_half1')
    return p

def setup(half):
    e = P(); f = e; g = e
    f.e(f's_lshl_b32 s{sT1}, s{sTT}, 4')
    f.e(f'v_lshrrev_b32 v53, 2, v{vLANE}')
    f.e(f'v_add_u32 v53, s{sT1}, v53')
    f.e(f'v_mul_u32_u24 v{vOQ}, 2688, v53')
    f.e(f'v_and_b32 v53, 3, v{vLANE}')
    f.e(f'v_lshlrev_b32 v53, 4, v53')
    f.e(f'v_min_u32 v53, 40, v53')
    f.e(f's_mul_i32 s{sT1}, s{sH}, 56')
    f.e(f'v_add3_u32 v{vOQ}, v{vOQ}, v53, s{sT1}')
    f.e(f'v_and_b32 v53, 31, v{vLANE}')
    f.e(f'v_lshrrev_b32 v54, 5, v{vLANE}')
    f.e(f'v_bfe_u32 v49, v{vLANE}, 1, 3')
    f.e(f'v_xor_b32 v49, v49, v54')
    f.e(f'v_lshlrev_b32 v53, 7, v53')
    f.e(f's_lshl_b32 s{sT1}, s{sTT}, 12')
    f.e(f'v_add_u32 v53, s{sT1}, v53')
    f.e(f's_mov_b32 s{sONE2}, 0x3f803f80')
    for ks in range(4):
        f.e(f'v_xor_b32 v{24 + ks}, {2 * ks}, v49')
        f.e(f'v_lshl_add_u32 v{24 + ks}, v{24 + ks}, 4, v53')
    g.e(f'v_bfe_u32 v39, v{vLANE}, 4, 1')
    g.e(f'v_bfe_u32 v36, v{vLANE}, 2, 2')
    g.e(f'v_lshrrev_b32 v37, 5, v{vLANE}')
    g.e(f'v_and_b32 v38, 3, v{vLANE}')
    g.e(f'v_lshl_add_u32 v37, v37, 3, v36')
    g.e(f'v_lshlrev_b32 v{vTQ}, 6, v37')
    g.e(f'v_lshl_add_u32 v{vTQ}, v39, 5, v{vTQ}')
    g.e(f'v_lshl_add_u32 v{vTQ}, v38, 3, v{vTQ}')
    g.e(f'v_add_u32 v{vTQ}, {CU[0] + half * 4096}, v{vTQ}')
    g.e(f's_lshl_b32 s{sT1}, s{sTT}, 10')
    g.e(f'v_add_u32 v{vDU[0]}, s{sT1}, v{vTQ}')
    g.e(f'v_lshrrev_b32 v35, 2, v{vLANE}')
    g.e(f'v_xor_b32 v35, v35, v39')
    g.e(f'v_and_b32 v35, 1, v35')
    g.e(f'v_cmp_eq_u32 vcc, 0, v35')
    g.e(f'v_mov_b32 v35, s{sONE2}')
    g.e(f's_nop 0')
    g.e(f'v_cndmask_b32 v{ASEL}, 0, v35, vcc')
    for k in range(1, 4): g.e(f'v_mov_b32 v{ASEL + k}, v{ASEL}')
    f = P()
    for b, n in ((SG, 448 * 3584), (SU, 448 * 3584), (SPHI, 16 * 1568), (SWO, 448 * 896), (SWD, 1792 * 896), (SOUT, 1835008), (SWS, WS_SIZE)):
        srd_consts(f, b, n)
    f.e(f's_lshl_b32 s{sT1K}, s{sTT}, 10')
    f.e('s_waitcnt lgkmcnt(0)')
    if opt('wsoff', 0): f.append(Group([I(f's_add_u32 s{SWS}, s{SWS}, {opt("wsoff", 0) << 20}'), I(f's_addc_u32 s{SWS+1}, s{SWS+1}, 0')]))
    sl = [0, 1, 3, 2, 4, 5, 7, 6, 9, 8, 10, 11, 13, 12, 14, 15]
    lo = sum(sl[k] << (4 * k) for k in range(8)); hi = sum(sl[8 + k] << (4 * k) for k in range(8))
    f.e(f's_mov_b32 s{sT2}, {hx(lo)}')
    f.e(f's_mov_b32 s{sT3}, {hx(hi)}')
    f.e(f's_lshl_b32 s{sT1}, s{sH}, 2')
    f.e(f's_lshr_b64 s[{sT2}:{sT3}], s[{sT2}:{sT3}], s{sT1}')
    f.e(f's_and_b32 s{sJ}, s{sT2}, 15')
    f.e(f's_and_b32 s{sJM}, s{sJ}, 3')
    if half == 0:
        f.e(f's_mov_b32 s{SREM}, s{SG}'); f.e(f's_mov_b32 s{SREM+1}, s{SG+1}')
        f.e(f's_lshl_b32 s{sREML}, s{sTT}, 10')
        f.e(f's_lshl_b32 s{sT2}, s{sTT}, 6')
        f.e(f's_mov_b32 s{sT1}, 0')
    else:
        f.append(Group([I(f's_cmp_eq_u32 s{sTT}, 0'), I(f's_cselect_b32 s{SREM}, s{SG}, s{SU}'), I(f's_cselect_b32 s{SREM+1}, s{SG+1}, s{SU+1}'),
                        I(f's_cselect_b32 s{sT1}, 0, 4'), I(f's_cselect_b32 s{sT2}, 3, s{sTT}')]))
        f.e(f's_lshl_b32 s{sREML}, s{sTT}, 11')
        f.e(f's_add_u32 s{sREML}, s{sREML}, 4096')
        f.e(f's_lshl_b32 s{sT2}, s{sT2}, 7')
        f.e(f's_sub_u32 s{sT2}, s{sT2}, 128')
    srd_consts(f, SREM, 448 * 3584)
    f.e(f's_mul_i32 s{sT3}, s{sJ}, 224')
    for n in range(1 + 2 * half):
        if n == 1: f.e(f's_add_u32 s{sT2}, s{sT2}, 64')
        if n == 2: f.e(f's_lshl_b32 s{sT2}, s{sTT}, 6'); f.e(f's_mov_b32 s{sT1}, 0')
        f.e(f'v_add_u32 v53, s{sT2}, v{vLANE}')
        f.e(f'v_mul_u32_u24 v54, 683, v53')
        f.e(f'v_lshrrev_b32 v54, 12, v54')
        f.e(f'v_mul_u32_u24 v55, 6, v54')
        f.e(f'v_sub_u32 v55, v53, v55')
        f.e(f'v_xor_b32 v54, s{sT1}, v54')
        f.e(f'v_mul_u32_u24 v{(vOR + [vOR3])[n]}, 3584, v54')
        f.e(f'v_lshrrev_b32 v54, 1, v55')
        f.e(f'v_add_u32 v53, 4, v54')
        f.e(f'v_cmp_gt_u32 vcc, s{sJM}, v54')
        f.e(f'v_and_b32 v55, 1, v55')
        f.e(f'v_cndmask_b32 v54, v53, v54, vcc')
        f.e(f'v_lshl_or_b32 v54, v54, 1, v55')
        f.e(f'v_lshlrev_b32 v54, 4, v54')
        f.e(f'v_add3_u32 v{(vOR + [vOR3])[n]}, v{(vOR + [vOR3])[n]}, v54, s{sT3}')
    g = f
    g.e(f's_lshl_b32 s{sT1}, s{sTT}, 3')
    g.e(f'v_add_u32 v53, s{sT1}, v50')
    g.e(f'v_bfe_u32 v51, v{vLANE}, 4, 1')
    g.e(f'v_lshlrev_b32 v49, 1, v51')
    g.e(f'v_xor_b32 v49, v49, v52')
    g.e(f's_lshl_b32 s{sT2}, s{sJM}, 5')
    g.e(f's_add_u32 s{sT2}, s{sT2}, s{sT3}')
    g.e(f'v_mul_u32_u24 v{vOW2}, 3584, v53')
    g.e(f'v_add_u32 v{vOW2}, s{sT2}, v{vOW2}')
    g.e(f'v_lshl_add_u32 v{vOA[0]}, v49, 4, v{vOW2}')
    g.e(f'v_xor_b32 v49, 4, v49')
    g.e(f'v_lshl_add_u32 v{vOA[1]}, v49, 4, v{vOW2}')
    g.e(f's_mul_i32 s{sT2}, s{sI}, 37')
    g.e(f's_lshr_b32 s{sT2}, s{sT2}, 8')
    g.e(f's_mul_i32 s{sT3}, s{sT2}, 7')
    g.e(f's_sub_u32 s{sNG}, s{sI}, s{sT3}')
    g.e(f's_lshl_b32 s{sT3}, s{sXI}, 2')
    g.e(f's_add_u32 s{sT2}, s{sT2}, s{sT3}')
    g.e(f's_lshl_b32 s{sT2}, s{sT2}, 1')
    g.e(f's_add_u32 s{sT2K}, s{sT2}, {half}')
    g.e(f's_and_b32 s{sT2K}, s{sT2K}, {1 if opt("fakeH", 0) else 63}')
    if opt('fakeW', 0): g.e(f's_mov_b32 s{sNG}, 0')
    g.e(f'v_lshlrev_b32 v49, 2, v51')
    g.e(f'v_xor_b32 v49, v49, v52')
    g.e(f'v_mul_u32_u24 v53, 896, v53')
    g.e(f's_lshl_b32 s{sT2}, s{sNG}, 7')
    g.e(f'v_add_u32 v53, s{sT2}, v53')
    g.e(f'v_lshl_add_u32 v{vOW2}, v49, 4, v53')
    g.e(f'v_lshlrev_b32 v{vL16}, 4, v{vLANE}')
    g.e(f'v_cmp_lt_u32 vcc, 31, v{vLANE}')
    g.e(f'v_mov_b32 v{BM + 2}, 0')
    g.e(f'v_mov_b32 v{BM + 3}, 0')
    g.e(f'v_cndmask_b32 v{vGM}, 0, 1.0, vcc')
    g.e(f's_mov_b32 s{sC}, {hx(f2u(LOG2E))}')
    g.e(f's_mov_b32 s{sSEL0}, 0x00003f80')
    g.e(f's_mov_b32 s{sSEL1}, 0x3f800000')
    g.e(f's_lshl_b32 s{sT}, s{sRB}, 2')
    g.e(f's_add_u32 s{sT}, s{sT}, s{sTT}')
    g.e(f's_mul_i32 s{sHST}, s{sT}, {TBLK}')
    g.e(f's_add_u32 s{sHST}, s{sHST}, {HB}')
    g.e(f's_lshl_b32 s{sFLP}, s{sT}, 10')
    g.e(f's_lshl_b32 s{sT2}, s{sJ}, 3')
    g.e(f's_add_u32 s{sFLP}, s{sFLP}, s{sT2}')
    g.e(f's_add_u32 s{sFLP}, s{sFLP}, {HFL}')
    g.e(f's_mul_i32 s{sHLD}, s{sT2K}, {TBLK}')
    g.e(f's_lshl_b32 s{sT2}, s{sTT}, 10')
    g.e(f's_add_u32 s{sHLD}, s{sHLD}, s{sT2}')
    g.e(f's_add_u32 s{sHLD}, s{sHLD}, {HB}')
    g.e(f's_lshl_b32 s{sFLD}, s{sT2K}, 10')
    g.e(f's_add_u32 s{sFLD}, s{sFLD}, {HFL}')
    g.e(f's_lshr_b32 s{sFLA}, s{sTT}, 1')
    g.e(f's_add_u32 s{sFLA}, s{sFLA}, 2')
    g.e(f's_lshl_b32 s{sFLA}, s{sFLA}, 7')
    g.e(f's_add_u32 s{sFLA}, s{sFLA}, s{sFLD}')
    g.e(f's_lshl_b32 s{sKVFL}, s{sH}, 2')
    g.e(f's_add_u32 s{sKVFL}, s{sKVFL}, s{sTT}')
    g.e(f's_lshl_b32 s{sKVFL}, s{sKVFL}, 7')
    g.e(f's_add_u32 s{sKVFL}, s{sKVFL}, {KVFL}')
    g.e(f's_mov_b32 s{sT2}, {DU[0] + 4096}')
    for rd in range(2):
        g.e(f'v_xor_b32 v49, {rd}, v39')
        g.e(f'v_lshl_add_u32 v49, v49, 2, v37')
        g.e(f'v_mul_u32_u24 v49, 96, v49')
        g.e(f'v_mul_u32_u24 v{vTR[rd]}, 6144, v39')
        g.e(f'v_lshl_add_u32 v49, v38, 3, v49')
        g.e(f'v_add3_u32 v{vTR[rd]}, v{vTR[rd]}, v49, s{sT2}')
    g.e(f'v_lshrrev_b32 v49, 1, v36')
    g.e(f'v_lshl_or_b32 v49, v39, 1, v49')
    g.e(f'v_lshlrev_b32 v37, 7, v37')
    g.e(f'v_lshl_add_u32 v37, v39, 13, v37')
    g.e(f'v_lshl_add_u32 v37, v38, 3, v37')
    for t in range(2):
        g.e(f'v_xor_b32 v{vTA[t]}, {2 * half + t}, v49')
        g.e(f'v_lshl_add_u32 v{vTA[t]}, v{vTA[t]}, 5, v37')
    g.e(f's_mul_i32 s{sT1}, s{sTT}, 1536')
    g.e(f'v_add_u32 v{vDU[1]}, s{sT1}, v{vTR[0]}')
    g.e(f'v_add_u32 v{vDU[2]}, s{sT1}, v{vTR[1]}')
    return e, f

def touch(half, sT, vt):
    g = P()
    g.e(f's_lshl_b32 s{sT}, s2, 2')
    g.e(f's_add_u32 s{sT}, s{sT}, s{sTT}')
    for k, (s, nl) in enumerate(((SG, 13), (SU, 13), (SWD, 13), (SWO, 4))):
        g.e(f'v_min_u32 v{vt}, {nl - 1}, v{vLANE}')
        g.e(f'v_lshlrev_b32 v{vt}, 7, v{vt}')
        g.e(f's_mul_i32 s{sT0}, s{sT}, {nl * 128}')
        g.e(f'buffer_load_dword v{vt - 1}, v{vt}, {srd(s)}, s{sT0} offen'); g[-1].defs = []
    return g

def late_loads(half):
    g = P()
    g.e(f'buffer_load_dwordx2 v[44:45], off, {srd(SWS)}, 0 sc1', 'EP')
    if opt('tlb', 1):
        g.e(f's_add_u32 s{sT3}, s{sHST if half == 0 else sHLD}, {144 * 1024}')
        g.e(f'buffer_load_dword v42, off, {srd(SWS)}, s{sT3}'); g[-1].defs = []
        g.e(f's_mul_i32 s{sT3}, s{sT2K}, {32 * 896}')
        g.e(f'buffer_load_dword v42, off, {srd(SOUT)}, s{sT3}')
    return g

D1 = 56
def pass1(p, half):
    own = [2 * half, 2 * half + 1]
    NU = opt('nu', 3)
    st, rest = setup(half)
    kq = next(k for k, x in enumerate(st) if isinstance(x, Ins) and x.text.startswith(f'v_add3_u32 v{vOQ},')) + 1
    p.extend(st[:kq])
    at = P(); dma_C(at, half, 0)
    seq = [(k, c) for c in range(NU, 7) for k in 'XC'] if NU <= 5 else [('X', c) for c in range(NU, 7)] + [('C', 5), ('C', 6)]
    for c in range(1, NU):
        dma_X(at, c)
        if c < 5: dma_C(at, half, c)
    p.extend(mix(P(st[kq:]), at, 0.0, 0.9))
    parts = [[] for _ in range(7)]
    if opt('restup', 1): p.extend(rest)
    else: interleave(parts, rest, 0, min(4, opt('d0at', 2)) if NU > 3 else 4)
    p.e('v_mov_b32 v28, 0'); p.e('v_mov_b32 v29, 0')
    stamp(p, 'setup')
    reg = lambda c, ks: XF + 16 * c + 4 * ks
    AB = [80, 96]
    def rds(c):
        q = P()
        if c == 4:
            for a in range(4): q.e(f'v_add_u32 v{24 + a}, 0x10000, v{24 + a}')
        if c == 5: q.e(f'v_add_u32 v{vTQ}, {hx(CU[5] - CU[0])}, v{vTQ}')
        base = CU[0] if c < 5 else CU[5]
        for ks in range(4):
            q.e(f'ds_read_b128 {vr(reg(c, ks), 4)}, v{24 + ks} offset:{XU(c) & 0xffff}', None, f'X{c}')
            for r in range(2): q.e(f'ds_read_b64_tr_b16 {vr(AB[c & 1] + 4 * ks + 2 * r, 2)}, v{vTQ} offset:{CU[c] - base + ks * 1024 + r * 256}', None, f'C{c}')
        return q
    def drd(c):
        q = P()
        if c == 5: q.e(f'v_add_u32 v{vDU[0]}, {hx(CU[5] - CU[0])}, v{vDU[0]}')
        for r in range(2): q.e(f'ds_read_b64_tr_b16 {vr(CFR + 2 * r, 2)}, v{vDU[0]} offset:{CU[c] - (CU[0] if c < 5 else CU[5]) + r * 256}', None, f'C{c}')
        return q
    p.append(WaitVm(['X0', 'C0'])); p.e('s_barrier'); stamp(p, 'bX0')
    p.extend(rds(0)); p.extend(drd(0))
    nd = 0
    for c in range(7):
        p.append(WaitDs())
        p.append(WaitVm([f'X{c+1}', f'C{c+1}'] if c < 6 else 'D0')); p.e('s_barrier'); stamp(p, f'bX{c+1}')
        mm = [I(f'{MF32} {vr(ACC1, 16)}, {vr(AB[c & 1] + 4 * ks, 4)}, {vr(reg(c, ks), 4)}, {"0" if c == 0 and ks == 0 else vr(ACC1, 16)}') for ks in range(4)]
        sl = [[m] for m in mm]
        sl[0].append(I(f'{MF16} {vr(D1, 4)}, {vr(ASEL, 4)}, {vr(CFR, 4)}, {"0" if c == 0 else vr(D1, 4)}'))
        if c < 6: interleave(sl, rds(c + 1) + drd(c + 1), 0, 4)
        else: sl[3].append(Pseudo('mark'))
        code = P(x for s_ in sl for x in s_)
        for ks in own:
            for k in range(4):
                r = reg(c, ks) + k
                code.e(f'v_dot2c_f32_bf16 v28, s{sONE2}, v{r}'); code.e(f'v_dot2c_f32_bf16 v29, v{r}, v{r}')
        code.extend(parts[c])
        at = P()
        took = 0
        while seq and took < 2:
            k_, c_ = seq.pop(0); took += 1
            (dma_X(at, c_) if k_ == 'X' else dma_C(at, half, c_))
        if (not took or c == 5) and c >= max(nd + 1, opt('d0at', 2)) and nd < 4:
            dma_D(at, half, nd); nd += 1
        if True:
            if c == 5 and half == 0:
                at.append(Group([I(f's_and_b32 s{sT1}, s{sW1K}, 1024'), I(f's_add_u32 m0, s{sT1}, {MISC}'), I(f's_mul_i32 s{sT0}, s{sH}, 1568'),
                    I(f's_add_u32 s{sT0}, s{sT0}, s{sT1}'), I(f'buffer_load_dwordx4 v{vL16}, {srd(SPHI)}, s{sT0} offen lds', 'PHI', 'PHI')]))
            if c == opt('tpos', 6) and half == 1: at.append(Group(touch(half, sT5, 34)))
        if c == 4: at.append(Group(late_loads(half)))
        p.extend(mix(code, at, 0.05, 0.95))
    return nd

def stats_code(half):
    q = P()
    q.e('v_add_f32 v28, v28, v30'); q.e('v_add_f32 v29, v29, v31')
    q.e('v_permlane32_swap_b32 v28, v29')
    q.e('v_add_f32 v28, v28, v29')
    q.e(f'v_mul_f32 v28, {hx(f2u(1 / 448))}, v28')
    q.e('v_mov_b32 v29, v28')
    q.e('v_permlane32_swap_b32 v28, v29')
    q.e('v_fma_f32 v29, -v28, v28, v29')
    q.e('v_max_f32 v29, 0, v29')
    q.e('v_sub_f32 v28, 0, v28')
    q.e('v_cvt_pk_bf16_f32 v30, v28, v29')
    q.e('v_and_b32 v29, 0xffff0000, v30')
    q.e(f'v_add_f32 v29, {hx(f2u(1e-5))}, v29')
    q.e('v_and_b32 v30, 0xffff, v30')
    q.e('v_cvt_pk_bf16_f32 v29, v29, v29')
    q.e(f'v_cmp_gt_u32 vcc, 32, v{vLANE}')
    q.e('v_and_b32 v29, 0xffff0000, v29')
    q.e('v_sqrt_f32 v29, v29')
    q.e(f'v_cndmask_b32 v{BM + 1}, 0, v30, vcc')
    q.e('v_cvt_pk_bf16_f32 v29, v29, v29')
    q.e(f'v_lshl_or_b32 v{BM}, v{BM + 1}, 16, v{BM + 1}')
    q.e('v_and_b32 v29, 0xffff0000, v29')
    q.e('v_rcp_f32 v28, v29')
    q.e(f'v_mul_f32 v{vIR2}, v29, v29')
    if half == 0: q.e(f'v_mul_f32 v{vCR}, {hx(f2u(LOG2E))}, v28')
    else: q.e(f'v_mov_b32 v{vCR}, v29')
    K1 = -2 * math.sqrt(2 / math.pi) * LOG2E
    q.e(f'v_mul_f32 v{vK1}, {hx(f2u(K1))}, v28')
    q.e(f'v_mul_f32 v30, v28, v28')
    q.e(f'v_mul_f32 v{vK2}, {hx(f2u(0.044715))}, v{vK1}')
    q.e(f'v_mul_f32 v{vK2}, v{vK2}, v30')
    return q

def gelu_tile(acc, tmp, soff_code, tok, pk=False):
    q = P()
    if pk:
        T = lambda k: vr(tmp + 2 * k, 2); G = lambda k: vr(acc + 2 * k, 2); Uu = lambda k: vr(acc + 8 + 2 * k, 2)
        KK = vr(vK1, 2)
        for k in range(4): q.e(f'v_pk_mul_f32 {T(k)}, {G(k)}, {G(k)}')
        for k in range(4): q.e(f'v_pk_fma_f32 {T(k)}, {T(k)}, {KK}, {KK} op_sel:[0,1,0] op_sel_hi:[1,1,0]')
        for k in range(4): q.e(f'v_pk_mul_f32 {T(k)}, {T(k)}, {G(k)}')
        for k in range(8): q.e(f'v_exp_f32 v{tmp + k}, v{tmp + k}')
        for k in range(4): q.e(f'v_pk_mul_f32 {Uu(k)}, {G(k)}, {Uu(k)}')
        for k in range(4): q.e(f'v_pk_fma_f32 {T(k)}, {T(k)}, {vr(vIR2, 2)}, {vr(vIR2, 2)} op_sel_hi:[1,0,0]')
        for k in range(8): q.e(f'v_rcp_f32 v{tmp + k}, v{tmp + k}')
        for k in range(4): q.e(f'v_pk_mul_f32 {Uu(k)}, {Uu(k)}, {T(k)}')
    else:
        for h4 in range(0, 8, 4):
            t = [tmp + k for k in range(4)]; g = [acc + h4 + k for k in range(4)]; u = [acc + 8 + h4 + k for k in range(4)]
            for k in range(4): q.e(f'v_mul_f32 v{t[k]}, v{g[k]}, v{g[k]}')
            for k in range(4): q.e(f'v_fma_f32 v{t[k]}, v{t[k]}, v{vK2}, v{vK1}')
            for k in range(4): q.e(f'v_mul_f32 v{t[k]}, v{t[k]}, v{g[k]}')
            for k in range(4): q.e(f'v_exp_f32 v{t[k]}, v{t[k]}')
            for k in range(4): q.e(f'v_mul_f32 v{u[k]}, v{g[k]}, v{u[k]}')
            for k in range(4): q.e(f'v_fma_f32 v{t[k]}, v{t[k]}, v{vIR2}, v{vIR2}')
            for k in range(4): q.e(f'v_rcp_f32 v{t[k]}, v{t[k]}')
            for k in range(4): q.e(f'v_mul_f32 v{u[k]}, v{u[k]}, v{t[k]}')
    for k in range(4): q.e(f'v_cvt_pk_bf16_f32 v{acc + k}, v{acc + 8 + 2 * k}, v{acc + 9 + 2 * k}')
    q.append(Group(list(soff_code) + [I(f'buffer_store_dwordx4 {vr(acc, 4)}, v{vL16}, {srd(SWS)}, s{sT1} offen sc1', tok)]))
    return q

def softmax_pm(Pa, E, s0, scale_r=False, pk=False):
    q = P(); a, b, c, d = s0, s0 + 1, s0 + 2, s0 + 3
    q.e(f'v_max3_f32 v{a}, v{Pa}, v{Pa+1}, v{Pa+2}')
    q.e(f'v_max3_f32 v{b}, -v{Pa}, -v{Pa+1}, -v{Pa+2}')
    q.e(f'v_max3_f32 v{c}, v{Pa+3}, v{Pa+4}, v{Pa+5}')
    q.e(f'v_max3_f32 v{d}, -v{Pa+3}, -v{Pa+4}, -v{Pa+5}')
    for k in range(6, 16, 4):
        q.e(f'v_max3_f32 v{a}, v{a}, v{Pa+k}, v{Pa+k+1}')
        q.e(f'v_max3_f32 v{b}, v{b}, -v{Pa+k}, -v{Pa+k+1}')
        if k + 3 < 16:
            q.e(f'v_max3_f32 v{c}, v{c}, v{Pa+k+2}, v{Pa+k+3}')
            q.e(f'v_max3_f32 v{d}, v{d}, -v{Pa+k+2}, -v{Pa+k+3}')
    q.e(f'v_max_f32 v{a}, v{a}, v{c}')
    q.e(f'v_max_f32 v{b}, v{b}, v{d}')
    q.e(f'v_permlane32_swap_b32 v{a}, v{b}')
    q.e(f'v_max_f32 v{a}, v{a}, v{b}')
    q.e(f'v_mul_f32_e64 v{a}, -v{vCR}, v{a}')
    q.e(f'v_mov_b32 v{b}, v{a}')
    q.e(f'v_permlane32_swap_b32 v{a}, v{b}')
    AB = vr(a, 2); CD = vr(c, 2); CR = vr(vCR - 1, 2)
    if pk:
        for k in range(0, 16, 2):
            q.e(f'v_pk_fma_f32 {vr(E+k,2)}, {vr(Pa+k,2)}, {CR}, {AB} op_sel:[0,1,0] op_sel_hi:[1,1,0]')
            q.e(f'v_pk_fma_f32 {vr(Pa+k,2)}, {vr(Pa+k,2)}, {CR}, {AB} op_sel:[0,1,1] op_sel_hi:[1,1,1] neg_lo:[1,0,0] neg_hi:[1,0,0]')
        for k in range(16):
            q.e(f'v_exp_f32 v{E+k}, v{E+k}'); q.e(f'v_exp_f32 v{Pa+k}, v{Pa+k}')
        e2, f2, g2, h2 = vr(s0, 2), vr(s0 + 2, 2), vr(s0 + 4, 2), vr(s0 + 6, 2)
        q.e(f'v_pk_add_f32 {e2}, {vr(E,2)}, {vr(E+2,2)}'); q.e(f'v_pk_add_f32 {f2}, {vr(Pa,2)}, {vr(Pa+2,2)}')
        q.e(f'v_pk_add_f32 {g2}, {vr(E+12,2)}, {vr(E+14,2)}'); q.e(f'v_pk_add_f32 {h2}, {vr(Pa+12,2)}, {vr(Pa+14,2)}')
        for k in range(4, 12, 2):
            q.e(f'v_pk_add_f32 {e2}, {e2}, {vr(E+k,2)}'); q.e(f'v_pk_add_f32 {f2}, {f2}, {vr(Pa+k,2)}')
        GM = vr(vGM - 1, 2)
        q.e(f'v_pk_fma_f32 {e2}, {g2}, {GM}, {e2} op_sel:[0,1,0]'); q.e(f'v_pk_fma_f32 {f2}, {h2}, {GM}, {f2} op_sel:[0,1,0]')
        q.e(f'v_add_f32 v{a}, v{s0}, v{s0+1}'); q.e(f'v_add_f32 v{b}, v{s0+2}, v{s0+3}')
    else:
        for k in range(16):
            q.e(f'v_fma_f32 v{E+k}, v{Pa+k}, v{vCR}, v{a}')
            q.e(f'v_fma_f32 v{Pa+k}, -v{Pa+k}, v{vCR}, v{b}')
            if k:
                q.e(f'v_exp_f32 v{E+k-1}, v{E+k-1}'); q.e(f'v_exp_f32 v{Pa+k-1}, v{Pa+k-1}')
        q.e(f'v_exp_f32 v{E+15}, v{E+15}'); q.e(f'v_exp_f32 v{Pa+15}, v{Pa+15}')
        q.e(f'v_add_f32 v{a}, v{E}, v{E+1}'); q.e(f'v_add_f32 v{b}, v{Pa}, v{Pa+1}')
        q.e(f'v_add_f32 v{c}, v{E+12}, v{E+13}'); q.e(f'v_add_f32 v{d}, v{Pa+12}, v{Pa+13}')
        for k in range(2, 12):
            q.e(f'v_add_f32 v{a}, v{a}, v{E+k}'); q.e(f'v_add_f32 v{b}, v{b}, v{Pa+k}')
            if k in (2, 3):
                q.e(f'v_add_f32 v{c}, v{c}, v{E+12+k}'); q.e(f'v_add_f32 v{d}, v{d}, v{Pa+12+k}')
        q.e(f'v_fmac_f32 v{a}, v{c}, v{vGM}'); q.e(f'v_fmac_f32 v{b}, v{d}, v{vGM}')
    q.e(f'v_permlane32_swap_b32 v{a}, v{b}')
    q.e(f'v_add_f32 v{a}, v{a}, v{b}')
    if scale_r: q.e(f'v_mul_f32 v{a}, {hx(f2u(LOG2E))}, v{a}')
    q.e(f'v_rcp_f32 v{a}, v{a}')
    if scale_r: q.e(f'v_mul_f32 v{a}, v{a}, v{vCR}')
    q.e(f'v_mov_b32 v{b}, v{a}')
    q.e(f'v_permlane32_swap_b32 v{a}, v{b}')
    q.e(f'v_mul_f32 v{c}, v{a}, v{vGM}'); q.e(f'v_mul_f32 v{d}, v{b}, v{vGM}')
    for k in range(0, 16, 2):
        ra, rb = (a, b) if k < 12 else (c, d)
        if pk:
            S = AB if k < 12 else CD
            q.e(f'v_pk_mul_f32 {vr(E+k,2)}, {vr(E+k,2)}, {S} op_sel_hi:[1,0]')
            q.e(f'v_pk_mul_f32 {vr(Pa+k,2)}, {vr(Pa+k,2)}, {S} op_sel:[0,1] op_sel_hi:[1,1]')
        else:
            q.e(f'v_mul_f32 v{E+k}, v{E+k}, v{ra}'); q.e(f'v_mul_f32 v{E+k+1}, v{E+k+1}, v{ra}')
            q.e(f'v_mul_f32 v{Pa+k}, v{Pa+k}, v{rb}'); q.e(f'v_mul_f32 v{Pa+k+1}, v{Pa+k+1}, v{rb}')
        q.e(f'v_cvt_pk_bf16_f32 v{E + k // 2}, v{E+k}, v{E+k+1}')
        q.e(f'v_cvt_pk_bf16_f32 v{Pa + k // 2}, v{Pa+k}, v{Pa+k+1}')
    return q

vFL16, vFL32 = 23, 22

def hsoff(texts):
    return [I(t) for t in texts] + [I(f's_lshl_b32 s{sT1}, s{sT1}, 10'), I(f's_add_u32 s{sT1}, s{sT1}, s{sHST}')]
def rem_soff(r):
    return hsoff([f's_cmp_gt_u32 s{sJM}, {r}', f's_cselect_b32 s{sT1}, {r}, {r + 4}', f's_mul_i32 s{sT2}, s{sJ}, 7', f's_add_u32 s{sT1}, s{sT1}, s{sT2}'])

def wphi(q, W):
    q.e(f'ds_read_b64_tr_b16 {vr(W, 2)}, v31', None, 'PHI')
    q.e(f'ds_read_b64_tr_b16 {vr(W + 2, 2)}, v31 offset:{8 * 56}', None, 'PHI')
    q.e(f'ds_read_b64_tr_b16 {vr(W + 4, 2)}, v31 offset:{16 * 56}', None, 'PHI')
    q.e(f'ds_read_b64_tr_b16 {vr(W + 6, 2)}, v30 offset:{24 * 56}', None, 'PHI')
def wmask(q, W):
    q.append(Group([I(f'v_cmp_lt_u32 vcc, 31, v{vLANE}'), I(f'v_cndmask_b32 v{W + 6}, 0, v{W + 6}, vcc'), I(f'v_cndmask_b32 v{W + 7}, 0, v{W + 7}, vcc')]))
GDST = [64 + 4 * e for e in range(12)] + [36 + 4 * e for e in range(3)] + [XF + 96]
def gl(e): return Group([I(f'buffer_load_dwordx4 {vr(GDST[e], 4)}, v{vL16}, {srd(SWS)}, s{sT4} offen sc1'), I(f's_add_u32 s{sT4}, s{sT4}, 4096')])

def phase1_main(p, half, nd):
    mf = []
    n2 = 0
    for s in range(7):
        for ks in range(4):
            for t in range(2):
                pre = []
                isq = half == 0 and t == 0
                if ks == 0:
                    if isq: pre.append(I(f'v_add_u32 v{vTQ}, {hx(DU[s] - (DU[s-1] if s else CU[5]))}, v{vTQ}'))
                    elif s == 4 and (half == 0 or t == 0):
                        for a in vTR: pre.append(I(f'v_add_u32 v{a}, {hx(DU[4] - DU[0])}, v{a}'))
                if isq: rd = [(vTQ, ks * 1024 + r * 256, f'D{s}') for r in range(2)]
                else: rd = [(vTR[r], DU[s] - DU[s & 4] + ks * 1536 + (0 if half == 0 else 1 + t) * 32, f'D{s}') for r in range(2)]
                mf.append(dict(acc=ACC2 + 16 * t, xf=4 * s + ks, rd=rd, pre=pre, first=s == 0 and ks == 0))
    n3 = len(mf)
    for s in range(7):
        for ks in range(4):
            for t in range(2):
                pre = [I(f'v_add_u32 v{vTA[t]}, {hx(AU[4])}, v{vTA[t]}')] if ks == 0 and s == 4 else []
                mf.append(dict(acc=ACC3 + 16 * t, xf=4 * s + ks, rd=[(vTA[t], AU[s] - AU[s & 4] + ks * 2048 + r * 512, f'A{s}') for r in range(2)], pre=pre, first=s == 0 and ks == 0))
    NB = len(AFR); D = NB - 1
    def reads(n):
        q = list(mf[n]['pre']); b = AFR[n % NB]
        for r, (a, off, obj) in enumerate(mf[n]['rd']):
            assert 0 <= off < 65536
            q.append(I(f'ds_read_b64_tr_b16 {vr(b + 2 * r, 2)}, v{a} offset:{off}', None, obj))
        return q
    km = next(k for k, x in enumerate(p) if isinstance(x, Pseudo) and x.kind == 'mark')
    p[km:km + 1] = [x for n in range(D) for x in reads(n)]
    slots = []
    for n, m in enumerate(mf):
        acc = m['acc']
        sl = [I(f'{MF32} {vr(acc, 16)}, {vr(AFR[n % NB], 4)}, {vr(XF + 4 * m["xf"], 4)}, {"0" if m["first"] else vr(acc, 16)}')]
        if n + D < len(mf): sl += reads(n + D)
        slots.append(sl)
    def bar(n, tokwait, after, end, dswait=None, name=None):
        q = P()
        if dswait: q.append(WaitDs(dswait))
        if opt('prew', 0) and name.startswith('b2'): stamp(q, 'w' + name)
        if tokwait: q.append(WaitVm(tokwait))
        if opt('prew', 0) and name.startswith('b2'): stamp(q, 'v' + name)
        q.e('s_barrier'); stamp(q, name or f'b{n}')
        if dswait: slots[n].extend(q)
        else: slots[n][1:1] = q
        if after: spread(slots, after, n + 1 + (half if end - n > 3 else 0), end)
    BO = 8 - D - 1
    b2 = lambda s: n2 + 8 * s + BO
    b3 = lambda s: n3 + 8 * s + BO
    def duty(slot, rd, d16, first, pre=()):
        slots[slot].extend(list(pre) + [I(f'ds_read_b64_tr_b16 {vr(CFR + 2 * r, 2)}, v{a} offset:{off}', None, obj) for r, (a, off, obj) in enumerate(rd)])
        slots[slot + 2].insert(1, I(f'{MF16} {vr(d16, 4)}, {vr(ASEL, 4)}, {vr(CFR, 4)}, {"0" if first else vr(d16, 4)}'))
    vCS = 254
    def cs_write(slot, d16s, obj):
        for t, d in enumerate(d16s): slots[slot].append(I(f'ds_write_b32 v{vCS}, v{d} offset:{t * 512}', 'cs', obj))
    def cs_fix(slot, accs, obj):
        for t, acc in enumerate(accs):
            slots[slot + 3 * t].append(I(f'ds_read_b128 {vr(CFR, 4)}, v{vCS + 1} offset:{t * 512}', None, obj))
            q = P()
            q.e(f'v_add_f32 v{CFR}, v{CFR}, v{CFR + 1}'); q.e(f'v_add_f32 v{CFR + 2}, v{CFR + 2}, v{CFR + 3}')
            q.e(f'v_add_f32 v{CFR}, v{CFR}, v{CFR + 2}')
            q.e(f'v_and_b32 v{CFR + 1}, 0xffff0000, v{CFR}')
            q.e(f'v_sub_f32 v{CFR + 1}, v{CFR}, v{CFR + 1}')
            q.e(f'v_and_b32 v{CFR + 2}, 0xffff0000, v{CFR + 1}')
            q.e(f'v_perm_b32 v{ACS}, v{CFR + 1}, v{CFR}, s{sPERM}')
            q.e(f'v_sub_f32 v{CFR + 2}, v{CFR + 1}, v{CFR + 2}')
            q.e(f'v_lshrrev_b32 v{ACS + 1}, 16, v{CFR + 2}')
            slots[slot + 3 * t + 2].extend(q)
            slots[slot + 3 * t + 3].insert(1, I(f'{MF32} {vr(acc, 16)}, {vr(ACS, 4)}, {vr(BM, 4)}, {vr(acc, 16)}'))
    q = P()
    q.e(f'v_lshrrev_b32 v30, 1, v{vL16}')
    q.e(f's_lshr_b32 s{sT1}, s{sW1K}, 1')
    q.e(f's_add_u32 s{sT1}, s{sT1}, {STAT}')
    q.e(f'v_add_u32 v30, s{sT1}, v30')
    q.e(f's_mov_b32 s{sPERM}, 0x07060302')
    q.e(f'v_and_b32 v{vCS + 1}, 31, v{vLANE}')
    q.e(f'v_lshlrev_b32 v{vCS + 1}, 4, v{vCS + 1}')
    q.e(f'v_add_u32 v{vCS + 1}, {CSB + half * 1024}, v{vCS + 1}')
    q.e(f's_lshl_b32 s{sT1}, s{sTT}, 2'); q.e(f'v_add_u32 v{vCS}, s{sT1}, v{vCS + 1}')
    q.e(f'ds_write_b64 v30, v[28:29]', 'cs', 'STAT')
    q.e(f'ds_write_b32 v{vCS}, v{D1}', 'cs', 'CS1')
    q.e(f'v_xor_b32 v30, 2048, v30')
    stamp(p, 'end1')
    slots[0].append(Group(q))
    slots[b2(0) + 1].append(I(f'ds_read_b64 v[30:31], v30', None, 'STAT'))
    interleave(slots, stats_code(half), b2(0) + 3, b2(0) + 7)
    cs_fix(b2(0) + 5, [ACC1], 'CS1')
    E2 = b2(0) + 11
    D2 = [56, 60]; D3 = [8, 12]
    def dslots(n0, s):
        if n0 == n2 and s < 4: return [(1, 3), (12, 14), (16, 18), (21, 23)][s]
        return (n0 + 4, n0 + 6) if s == 0 else ((n0 + BO + 4, n0 + BO + 6) if s == 1 else (n0 + 8 * (s - 1) + BO + 1, n0 + 8 * (s - 1) + BO + 3))
    for s in range(7):
        for t in range(2):
            isq = half == 0 and t == 0
            pre = []
            if isq: pre = [I(f'v_add_u32 v{vDU[0]}, {hx(DU[s] - (DU[s-1] if s else CU[5]))}, v{vDU[0]}')]
            elif s == 4 and (half == 0 or t == 0): pre = [I(f'v_add_u32 v{a}, {hx(DU[4] - DU[0])}, v{a}') for a in vDU[1:]]
            if isq: rd = [(vDU[0], r * 256, f'D{s}') for r in range(2)]
            else: rd = [(vDU[1 + r], DU[s] - DU[s & 4] + (0 if half == 0 else 1 + t) * 32, f'D{s}') for r in range(2)]
            duty(dslots(n2, s)[t], rd, D2[t], s == 0, pre)
            pre = []
            if s == 0: pre = [I(f's_lshl_b32 s{sT3}, s{sTT}, 11'), I(f'v_add_u32 v{vDA[t]}, s{sT3}, v{vTA[t]}')]
            if s == 4: pre = [I(f'v_add_u32 v{vDA[t]}, {hx(AU[4])}, v{vDA[t]}')]
            duty(dslots(n3, s)[t], [(vDA[t], AU[s] - AU[s & 4] + r * 512, f'A{s}') for r in range(2)], D3[t], s == 0, pre)
    cs_write(b2(6) - 1, D2, 'CS2'); cs_fix(b2(6) + 1, [ACC2, ACC2 + 16], 'CS2')
    cs_write(b3(6) - 1, D3, 'CS3')
    E3 = n3 + 7
    q = P()
    q.e(f'v_readfirstlane_b32 s{sTAG}, v44'); q.e(f'v_readfirstlane_b32 s{sTAG+1}, v45')
    q.e(f's_add_u32 s{sTAG}, s{sTAG}, 0x9e3779b9'); q.e(f's_add_u32 s{sTAG+1}, s{sTAG+1}, 0x7f4a7c15')
    q.e('v_mov_b32 v42, 0')
    slots[0].extend(q)
    KB = opt('kb', 4)
    K = V = ACC1
    if half == 0:
        f = P()
        f.e(f'v_bfe_u32 v24, v{vLANE}, 2, 2')
        f.e(f'v_lshrrev_b32 v25, 5, v{vLANE}')
        f.e(f'v_bfe_u32 v26, v{vLANE}, 4, 1')
        f.e(f'v_and_b32 v27, 3, v{vLANE}')
        f.e(f'v_lshl_or_b32 v26, v26, 2, v27')
        f.e(f'v_subrev_u32 v27, 1, v26')
        f.e(f'v_mul_u32_u24 v44, 56, v24')
        f.append(Group([I(f'v_cmp_lt_u32 vcc, 5, v26'), I(f'v_cndmask_b32 v26, v26, v27, vcc')]))
        f.e(f'v_lshl_add_u32 v44, v26, 3, v44')
        f.e(f'v_add_u32 v44, {MISC}, v44')
        f.e(f'v_mul_u32_u24 v45, 224, v25')
        f.e(f'v_add_u32 v45, v44, v45')
        f.e(f'v_and_b32 v24, 31, v{vLANE}')
        f.append(Group([I(f's_lshl_b32 s{sT2}, s{sTT}, 5'), I(f'v_add_u32 v24, s{sT2}, v24')]))
        f.e(f'v_and_b32 v26, 9, v{vLANE}')
        f.e(f'v_bfe_u32 v27, v{vLANE}, 1, 1')
        f.e(f'v_lshl_or_b32 v26, v27, 2, v26')
        f.e(f'v_bfe_u32 v27, v{vLANE}, 2, 1')
        f.e(f'v_lshl_or_b32 v26, v27, 1, v26')
        f.e(f'v_xor_b32 v46, v26, v25')
        f.e(f'v_lshlrev_b32 v47, 7, v24')
        f.e(f'v_add_u32 v47, {TRK}, v47')
        interleave(slots, f, 1, b2(0) + 3)
        W = 48
        f = P()
        for k in range(4): f.e(f'v_mov_b32 v{(30, 31, 28, 29)[k]}, v{44 + k}')
        wphi(f, W); slots[b2(0) + 7].extend(f)
        f = P(); wmask(f, W)
        for k in range(8): f.e(f'v_cvt_pk_bf16_f32 v{K + k}, v{K + 2 * k}, v{K + 2 * k + 1}')
        f.e(f'{MF32} {vr(LOG, 16)}, {vr(W, 4)}, {vr(K, 4)}, 0')
        f.e(f'{MF32} {vr(LOG, 16)}, {vr(W + 4, 4)}, {vr(K + 4, 4)}, {vr(LOG, 16)}')
        f.append(Gap(2))
        f.extend(softmax_pm(LOG, K, 24, True))
        for ft, src in ((0, K), (1, LOG)):
            for i in range(4):
                f.e(f'v_xor_b32 v23, {8 * ft + 2 * i}, v28')
                f.e(f'v_lshl_add_u32 v23, v23, 3, v29')
                f.e(f'ds_write_b64 v23, {vr(src + 2 * i, 2)}', 'tr', 'TRK')
        interleave(slots, f, E2, b2(KB) + 1)
        interleave(slots, gelu_tile(ACC2 + 16, 24, rem_soff(0), 'HR'), E3, n3 + opt('g0end', 18))
        W = 100; Q = ACC2
        f = P(); wphi(f, W)
        for k in range(8): f.e(f'v_cvt_pk_bf16_f32 v{Q + k}, v{Q + 2 * k}, v{Q + 2 * k + 1}')
        wmask(f, W)
        f.e(f'{MF32} {vr(K, 16)}, {vr(W, 4)}, {vr(Q, 4)}, 0')
        f.e(f'{MF32} {vr(K, 16)}, {vr(W + 4, 4)}, {vr(Q + 4, 4)}, {vr(K, 16)}')
        f.append(Gap(2))
        f.extend(softmax_pm(K, Q, 24))
        interleave(slots, f, n3 + opt('g0end', 18), len(slots) - 4)
        q = P(); q.append(WaitVm('HR')); set_flag(q, f's{sFLP}', 28, 0)
        slots[n3 + opt('rf0', 30)].extend(q)
    else:
        f = P()
        f.e(f'v_bfe_u32 v24, v{vLANE}, 2, 2')
        f.e(f'v_lshrrev_b32 v25, 4, v{vLANE}')
        f.e(f'v_lshl_add_u32 v24, v25, 3, v24')
        f.e(f'v_and_b32 v25, 3, v{vLANE}')
        f.e(f'v_and_b32 v26, 9, v24')
        f.e(f'v_bfe_u32 v27, v24, 1, 1')
        f.e(f'v_lshl_or_b32 v26, v27, 2, v26')
        f.append(Group([I(f's_lshl_b32 s{sT2}, s{sTT}, 2'), I(f'v_or_b32 v27, s{sT2}, v25')]))
        f.e(f'v_xor_b32 v26, v26, v27')
        f.e(f'v_lshlrev_b32 v27, 7, v24')
        f.e(f'v_add_u32 v27, {TRK}, v27')
        f.e(f'v_lshl_add_u32 v28, v26, 3, v27')
        f.e(f'v_bfe_u32 v26, v24, 1, 3')
        f.e(f'v_xor_b32 v26, v26, v25')
        f.e(f'v_lshlrev_b32 v27, 6, v24')
        f.e(f'v_add_u32 v27, {TRV}, v27')
        f.e(f'v_lshl_add_u32 v29, v26, 3, v27')
        f.e(f'v_bfe_u32 v24, v{vLANE}, 4, 1')
        f.e(f'v_and_b32 v25, 15, v{vLANE}')
        f.e(f'v_lshl_or_b32 v24, v24, 5, v25')
        f.e(f'v_lshrrev_b32 v25, 5, v{vLANE}')
        f.e(f'v_lshlrev_b32 v26, 3, v25')
        f.e(f'v_lshl_or_b32 v23, v24, 4, v26')
        f.e(f's_lshl_b32 s{sT4}, s{sH}, 4')
        f.e(f's_add_u32 s{sT4}, s{sT4}, s{sRB}')
        f.e(f's_lshl_b32 s{sT4}, s{sT4}, 2')
        f.e(f's_add_u32 s{sT4}, s{sT4}, s{sTT}')
        f.e(f's_lshl_b32 s{sT4}, s{sT4}, 10')
        f.e(f's_add_u32 s{sT4}, s{sT4}, {KVP}')
        f.e(f's_lshl_b32 s{sT5}, s{sRB}, 3')
        f.e(f's_add_u32 s{sT5}, s{sT5}, s{sKVFL}')
        f.e(f'v_and_b32 v24, 31, v{vLANE}')
        f.append(Group([I(f's_lshl_b32 s{sT2}, s{sTT}, 5'), I(f'v_add_u32 v24, s{sT2}, v24')]))
        f.e(f'v_bfe_u32 v26, v{vLANE}, 1, 3')
        f.e(f'v_xor_b32 v26, v26, v25')
        f.e(f'v_lshlrev_b32 v27, 6, v24')
        f.e(f'v_add_u32 v27, {TRV}, v27')
        f.append(Group([I(f'v_cmp_lt_u32 vcc, 31, v{vLANE}'), I(f'v_cndmask_b32 v{V + 12}, v{vCR}, v{V + 12}, vcc')]))
        for k in range(8): f.e(f'v_cvt_pk_bf16_f32 v{V + k}, v{V + 2 * k}, v{V + 2 * k + 1}')
        for i in range(4):
            f.e(f'v_xor_b32 v24, {2 * i}, v26')
            f.e(f'v_lshl_add_u32 v24, v24, 3, v27')
            f.e(f'ds_write_b64 v24, {vr(V + 2 * i, 2)}', 'tr', 'TRV')
        f.e(f'v_xor_b32 v72, 16, v28')
        f.e(f'v_xor_b32 v73, 32, v29'); f.e(f'v_xor_b32 v74, 16, v29'); f.e(f'v_xor_b32 v75, 48, v29')
        interleave(slots, f, b2(0) + 8, b2(KB))
        f = P()
        KA, KB0, KB1, KD = ACC3, ACC3 + 4, ACC3 + 8, ACC3 + 12
        for kk in range(4):
            f.e(f'ds_read_b64_tr_b16 {vr(KA, 2)}, v28 offset:{kk * 4096}', None, 'TRK')
            f.e(f'ds_read_b64_tr_b16 {vr(KA + 2, 2)}, v72 offset:{kk * 4096 + 512}', None, 'TRK')
            f.e(f'ds_read_b64_tr_b16 {vr(KB0, 2)}, v29 offset:{kk * 2048}', None, 'TRV')
            f.e(f'ds_read_b64_tr_b16 {vr(KB0 + 2, 2)}, v74 offset:{kk * 2048 + 256}', None, 'TRV')
            f.e(f'ds_read_b64_tr_b16 {vr(KB1, 2)}, v73 offset:{kk * 2048}', None, 'TRV')
            f.e(f'ds_read_b64_tr_b16 {vr(KB1 + 2, 2)}, v75 offset:{kk * 2048 + 256}', None, 'TRV')
            f.append(Gap(2))
            f.e(f'{MF16} {vr(KD, 4)}, {vr(KA, 4)}, {vr(KB0, 4)}, {"0" if kk == 0 else vr(KD, 4)}')
            f.e(f'{MF16} {vr(KD + 4, 4)}, {vr(KA, 4)}, {vr(KB1, 4)}, {"0" if kk == 0 else vr(KD + 4, 4)}')
        f.append(Gap(2))
        for k in range(4): f.e(f'v_cvt_pk_bf16_f32 v{24 + k}, v{KD + 2 * k}, v{KD + 2 * k + 1}')
        f.e(f'buffer_store_dwordx2 v[24:25], v23, {srd(SWS)}, s{sT4} offen sc1', 'KV')
        f.e(f'buffer_store_dwordx2 v[26:27], v23, {srd(SWS)}, s{sT4} offen offset:256 sc1', 'KV')
        interleave(slots, f, b2(KB) + 1, b2(KB) + 12)
        q = P(); q.append(WaitVm('KV')); set_flag(q, f's{sT5}', 28); stamp(q, 'KVflag')
        slots[b2(KB) + 12 + opt('kvf', 8)].extend(q)
        GE = n3 + opt('g1end', 28); KP = n3 + opt('kp', 42)
        interleave(slots, gelu_tile(ACC2, 24, rem_soff(1), 'HR') + gelu_tile(ACC2 + 16, 24, rem_soff(2), 'HR'), E3, GE)
        f = P()
        f.e(f'v_and_b32 v{vFL16}, 15, v{vLANE}'); f.e(f'v_lshlrev_b32 v{vFL16}, 3, v{vFL16}')
        f.e(f's_lshl_b32 s{sT4}, s{sH}, 16'); f.e(f's_lshl_b32 s{sT2}, s{sTT}, 10')
        f.e(f's_add_u32 s{sT4}, s{sT4}, s{sT2}'); f.e(f's_add_u32 s{sT4}, s{sT4}, {KVP}')
        flag_load(f, 28, vFL16, f's{sKVFL}')
        slots[KP - 6].append(Group(f))
        q = P(); stamp(q, 'prekv'); poll(q, 'kv', 28, vFL16, f's{sKVFL}'); stamp(q, 'kvpoll')
        slots[KP].extend(q)
        q = P(); q.append(WaitVm('HR')); set_flag(q, f's{sFLP}', 24, 128)
        slots[GE + opt('rf1', 8)].extend(q)
        spread(slots, [gl(e) for e in range(12)], KP, len(slots))
    sched2 = [[f'D{k}' for k in range(nd, 4)], ['D4'], ['D5', 'A0'], ['D6', 'A1'], ['A2', 'A3'], ['A4'], ['A5']]
    for s in range(7):
        q = P()
        SO = opt('solo2', 1)
        for x in sched2[s]: (dma_D(q, half, int(x[1]), SO) if x[0] == 'D' else dma_A(q, int(x[1]), half, (1 if s <= KB else 0) if SO else None))
        if s == KB + 2:
            for n in range(3): dma_L(q, n, half, 0)
        bar(b2(s), ([f'D{s+1}', 'PHI'] if s == 0 else f'D{s+1}') if s < 6 else 'A0', q, b2(s + 1), dswait='tr' if s == KB else ('cs' if s in (0, 6) else None), name=f'b2_{s}')
    for s in range(7):
        q = P()
        if s == 0: dma_A(q, 6, half, 0)
        if s == KB + 2 - 7:
            for n in range(3): dma_L(q, n, half, 0)
        for n in (3 + 2 * s, 4 + 2 * s): dma_L(q, n, half, 0)
        bar(b3(s), f'A{s+1}' if s < 6 else None, q, min(b3(s + 1), len(slots)), dswait='cs' if s == 6 else None, name=f'b3_{s}')
    q = P()
    if half == 0: q.e(f'v_and_b32 v{vFL16}, 15, v{vLANE}'); q.e(f'v_lshlrev_b32 v{vFL16}, 3, v{vFL16}')
    q.e(f'v_and_b32 v{vFL32}, 31, v{vLANE}'); q.e(f'v_lshlrev_b32 v{vFL32}, 3, v{vFL32}')
    flag_load(q, 26, vFL32, f's{sFLD}')
    slots[len(slots) - 4].extend(q)
    for k in range(5): slots.append([I('s_nop 0')])
    cs_fix(b3(6) + 1, [ACC3, ACC3 + 16], 'CS3')
    for sl in slots: p.extend(x for x in sl if not (isinstance(x, Ins) and x.text == 's_nop 0' and sl.index(x) == 0))

NBR = 24
BR = [XF + 4 * k for k in range(NBR)]
SS = XF + 100
XR = XF + 108
def bload(k):
    return Group([I(f's_add_u32 s{sT1}, s{sHLD}, {LINES[k] * 4096}'),
                  I(f'buffer_load_dwordx4 {vr(BR[k % NBR], 4)}, v{vL16}, {srd(SWS)}, s{sT1} offen sc1')])

def att_late(half):
    K, Q = ACC1, ACC2
    f = P(); o = P(); o2 = P()
    if half == 0:
        KVF, NUM, PHQ, OP = [72, 76, 88, 92], 48, [80, 84, 64, 68], 72
        o.e(f'v_add_u32 v40, {KVBUF}, v{vL16}')
        for s in range(4): o.e(f'ds_read_b128 {vr(KVF[s], 4)}, v40 offset:{s * 1024}', None, 'KVBUF')
        o.append(Gap(2))
        for s in range(4): o.e(f'{MF32} {vr(NUM, 16)}, {vr(KVF[s], 4)}, {vr(PHQ[s], 4)}, {"0" if s == 0 else vr(NUM, 16)}')
        o2.e(f'v_add_f32 v40, {hx(f2u(1e-6))}, v{NUM + 12}')
        o2.e(f'v_rcp_f32 v40, v40')
        o2.e(f'v_mov_b32 v41, v40')
        o2.e(f'v_permlane32_swap_b32 v40, v41')
        o2.e(f'v_mul_f32 v41, v40, v{vGM}')
        for k in range(16): o2.e(f'v_mul_f32 v{NUM + k}, v{NUM + k}, v{40 if k < 12 else 41}')
        for k in range(8): o2.e(f'v_cvt_pk_bf16_f32 v{OP + k}, v{NUM + 2 * k}, v{NUM + 2 * k + 1}')
        o2.append(Group(hsoff([f's_lshl_b32 s{sT1}, s{sH}, 1', f's_add_u32 s{sT1}, s{sT1}, 112']) +
            [I(f'buffer_store_dwordx4 {vr(OP, 4)}, v{vL16}, {srd(SWS)}, s{sT1} offen sc1', 'O'),
             I(f'buffer_store_dwordx4 {vr(OP + 4, 4)}, v{vL16}, {srd(SWS)}, s{sT1} offen offset:1024 sc1', 'O')]))
    else:
        for k in range(8): f.e(f'v_mov_b32 v{SS + k}, 0')
        for e0 in range(0, 16, 4):
            blk = []
            for e in range(e0, e0 + 4):
                for k in range(4):
                    blk.append(I(f'v_dot2c_f32_bf16 v{SS + 2 * k}, s{sSEL0}, v{GDST[e] + k}'))
                    blk.append(I(f'v_dot2c_f32_bf16 v{SS + 2 * k + 1}, s{sSEL1}, v{GDST[e] + k}'))
            f.append(Group(blk))
        for k in range(4): f.e(f'v_cvt_pk_bf16_f32 v{SS + k}, v{SS + 2 * k}, v{SS + 2 * k + 1}')
        f.append(Group([I(f's_lshl_b32 s{sT2}, s{sTT}, 10'), I(f's_add_u32 s{sT2}, s{sT2}, {KVBUF}'), I(f'v_add_u32 v{SS + 4}, s{sT2}, v{vL16}')]))
        f.e(f'ds_write_b128 v{SS + 4}, {vr(SS, 4)}', 'kvb', 'KVBUF')
    return f, o, o2, 0

NBAR_KV = 0
def phase1_tail(p, half):
    stamp(p, 'endA')
    if opt('tprio', 1) == 2 - half: p.e('s_setprio 1')
    for t in range(2):
        so = hsoff([f's_mul_i32 s{sT1}, s{sJ}, 7', f's_add_u32 s{sT1}, s{sT1}, s{sJM}', f's_add_u32 s{sT1}, s{sT1}, {2 * half + t}'])
        code = gelu_tile(ACC3 + 16 * t, 112, so, 'HA', pk=True)
        if half == 1 and t == 1: code = mix(code, [gl(e) for e in range(12, 16)], 0.0, 0.6)
        p.extend(code)
    stamp(p, 'gelu')
    poll(p, f'R{half}', 26, vFL32, f's{sFLD}')
    stamp(p, 'Rpoll')
    NR1 = 0
    p.e(f's_cmp_ge_u32 s{sI}, 28')
    p.e(f's_cbranch_scc1 L_exit{half}')
    q = P(); q.append(Reset()); q.e(f'L_exit{half}:')
    q.e('s_waitcnt vmcnt(0) lgkmcnt(0)'); q.e('s_nop 7'); set_flag(q, f's{sFLP}', 24, 256 + 128 * half)
    f, o, o2, _ = att_late(half)
    q.extend(f); q.append(WaitDs()); q.e('s_barrier'); q.extend(o); q.extend(o2)
    if half == 0: q.e('s_waitcnt vmcnt(0)'); set_flag(q, f's{sFLP}', 24, 512)
    q.e('s_endpgm')
    slow_paths.append(q)
    return NR1

def phase2(p, half, NR1):
    AY, AS = 96, ACC3
    AR = [240, 244, 248, 252]
    vW = [[8, 9, 10], [11, 12, 13]]
    vO = [[14, 15], [16, 17]]
    vOUT = 18
    code = P()
    code.e(f'v_bfe_u32 v24, v{vLANE}, 2, 2')
    code.e(f'v_bfe_u32 v26, v{vLANE}, 4, 1')
    code.e(f'v_and_b32 v27, 2, v24')
    code.e(f'v_xor_b32 v26, v26, v27')
    code.e(f'v_and_b32 v27, 3, v{vLANE}')
    code.e(f'v_lshlrev_b32 v27, 3, v27')
    code.e(f'v_lshl_add_u32 v27, v24, 7, v27')
    code.e(f'v_lshl_add_u32 v27, v26, 5, v27')
    code.e(f'v_lshrrev_b32 v25, 5, v{vLANE}')
    code.e(f'v_lshl_add_u32 v26, v25, 9, v27')
    code.e(f's_lshl_b32 s{sT2}, s{sTT}, 11')
    code.e(f'v_add_u32 v{vW[0][0]}, s{sT2}, v26')
    code.e(f'v_xor_b32 v{vW[1][0]}, 64, v{vW[0][0]}')
    for nt in range(2):
        code.e(f'v_add_u32 v{vW[nt][1]}, 0x10000, v{vW[nt][0]}')
        code.e(f'v_add_u32 v{vW[nt][2]}, 0x20000, v{vW[nt][0]}')
    f, o, o2, _ = att_late(half)
    NR1 = opt('nr1', 8)
    p.extend(mix(P(code + f), [bload(k) for k in range(NR1)]))
    p.append(WaitDs())
    ks = []
    for n in range(36):
        u = LU[n]; isO = n >= 28
        if not isO: rd = [[(vW[nt][u // 8], (u % 8) * U + r * 1024) for r in range(2)] for nt in range(2)]
        else: rd = [[(vO[nt][r], u * U - OW) for r in range(2)] for nt in range(2)]
        ks.append(dict(acc=AS if isO else AY, first=n in (0, 28), rd=rd))
    NB = len(AR); D = NB - 1; BO = 8 - D - 1
    mf = [(k, nt) for k in range(36) for nt in range(2)]
    def reads(n):
        k, nt = mf[n]; b = AR[n % NB]
        return [I(f'ds_read_b64_tr_b16 {vr(b + 2 * r, 2)}, v{a} offset:{off}', None, f'L{k}') for r, (a, off) in enumerate(ks[k]['rd'][nt])]
    if opt('tprio', 1) == 2 - half: p.e('s_setprio 0')
    open_pos = len(p)
    p.append(WaitVm(['L0', 'L1', 'L2', 'L3'])); p.e('s_barrier')
    stamp(p, 'bPopen')
    for n in range(D): p.extend(reads(n))
    slots = []
    for n, (k, nt) in enumerate(mf):
        acc = ks[k]['acc'] + 16 * nt
        sl = [I(f'{MF32} {vr(acc, 16)}, {vr(AR[n % NB], 4)}, {vr(BR[k % NBR], 4)}, {"0" if ks[k]["first"] else vr(acc, 16)}')]
        if n + D < len(mf): sl += reads(n + D)
        slots.append(sl)
    bP = lambda s: 8 * s + BO
    q = P(); q.extend(bload(k) for k in range(NR1, 12)); dma_L(q, 17, half); dma_L(q, 18, half)
    spread(slots, q, 0, 6)
    q = P()
    q.e(f's_lshr_b32 s{sT2}, s{sTT}, 1')
    q.e(f's_mul_i32 s{sT2}, s{sT2}, {28 * 128}')
    q.e(f's_and_b32 s{sT3}, s{sTT}, 1')
    q.append(Group([I(f's_cmp_eq_u32 s{sT3}, 0'), I(f's_cselect_b64 vcc, -1, 0'), I(f'v_cndmask_b32 v27, v27, v26, vcc')]))
    q.e(f's_lshl_b32 s{sT3}, s{sT3}, 11')
    q.e(f's_add_u32 s{sT2}, s{sT2}, s{sT3}')
    q.e(f's_add_u32 s{sT2}, s{sT2}, {OW}')
    q.e(f'v_add_u32 v{vO[0][0]}, s{sT2}, v26')
    q.e(f's_add_u32 s{sT2}, s{sT2}, 1024')
    q.e(f'v_add_u32 v{vO[0][1]}, s{sT2}, v27')
    for r in range(2): q.e(f'v_xor_b32 v{vO[1][r]}, 64, v{vO[0][r]}')
    q.e(f'v_and_b32 v24, 31, v{vLANE}')
    q.e(f's_lshl_b32 s{sT2}, s{sT2K}, 5')
    q.e(f'v_add_u32 v24, s{sT2}, v24')
    q.e(f'v_mul_u32_u24 v24, 896, v24')
    q.e(f'v_lshl_add_u32 v24, v25, 4, v24')
    q.e(f's_lshl_b32 s{sT2}, s{sNG}, 7')
    q.e(f's_lshl_b32 s{sT3}, s{sTT}, 5')
    q.e(f's_add_u32 s{sT2}, s{sT2}, s{sT3}')
    q.e(f'v_add_u32 v{vOUT}, s{sT2}, v24')
    q.e(f's_add_u32 s{sT5}, s{sFLD}, 512')
    slots[0].append(Group(q))
    KVB = 'x'; BS = 0
    AFP = opt(f'afp{half}', (4, -1)[half]); OPOS = opt('opos', 44); A1 = opt('a1', 22)
    qa = P(); qa.append(WaitVm('HA')); set_flag(qa, f's{sFLP}', 28, 256 + 128 * half); stamp(qa, 'Aflag')
    if AFP >= 0: slots[AFP].extend(qa)
    else: p[open_pos:open_pos] = qa
    if o: interleave(slots, o, 1, 4); interleave(slots, o2, 6, 10)
    if half == 0:
        q = P(); q.append(WaitVm('O')); set_flag(q, f's{sFLP}', 24, 512); stamp(q, 'Oflag'); slots[10 + opt('ofl', 8)].extend(q)
    q = P(); flag_load(q, 28, vFL16, f's{sFLA}'); slots[A1 - opt('alead', 4)].extend(q)
    q = P(); stamp(q, 'preApoll'); poll(q, f'A{half}', 28, vFL16, f's{sFLA}'); stamp(q, 'Apoll'); slots[A1].extend(q)
    NA0 = opt('na0', 6)
    slots[A1].extend(bload(k) for k in range(12, 12 + NA0))
    spread(slots, [bload(k) for k in range(12 + NA0, 28)], A1 + 1, opt('aend', 40))
    q = P(); flag_load(q, 26, vFL16, f's{sT5}'); slots[OPOS - 4].extend(q)
    q = P(); stamp(q, 'preOpoll'); poll(q, f'O{half}', 26, vFL16, f's{sT5}'); stamp(q, 'Opoll')
    slots[OPOS].extend(q)
    spread(slots, [bload(k) for k in range(28, 36)], OPOS, OPOS + opt('ospan', 6))
    q = P(); q.e(f'buffer_load_dwordx4 {vr(XR, 4)}, v{vOUT}, {srd(SX)}, 0 offen'); slots[54].extend(q)
    q = P()
    for n in range(19, 36): dma_L(q, n, half)
    for n in range(19, 36):
        if BS and 15 + 4 * BS <= n < 19 + 4 * BS: continue
        slots[bP((n - 15) // 4) + 1 + (n - 15) % 4 * 2].append(q[n - 19])
    def red_addr(q, base, dstw, dstr):
        q.append(Group([I(f's_mul_i32 s{sT2}, s{sTT}, 6144'), I(f's_add_u32 s{sT2}, s{sT2}, {base}'), I(f'v_add_u32 v{dstr}, s{sT2}, v{vL16}')]))
        q.e(f'v_add_u32 v{dstw}, {base}, v{vL16}')
    def red_write(q, acc, own, aw, uid, obj):
        for kq in range(4):
            if kq < 3:
                q.e(f's_cmp_lg_u32 s{sTT}, {kq}'); q.e(f's_cbranch_scc1 L_red{uid}_{kq + 1}')
            for part in range(4):
                if part == kq: continue
                slot = kq if kq < part else kq - 1
                for hh in range(2):
                    q.e(f'ds_write_b128 v{aw}, {vr(acc + 8 * part + 4 * hh, 4)} offset:{part * 6144 + slot * 2048 + hh * 1024}', 'red' if kq == 0 else 'NOTRACK', obj)
            for k in range(0, 8, 2): q.e(f'v_mov_b64 {vr(own + k, 2)}, {vr(acc + 8 * kq + k, 2)}')
            if kq < 3: q.e(f's_branch L_red{uid}_4'); q.e(f'L_red{uid}_{kq + 1}:')
        q.e(f'L_red{uid}_4:')
    YO, SO, YR, SR, G, XU_ = 64, 72, 184, 128, 80, 88
    q = P(); red_addr(q, REDY[half], 24, 25); red_write(q, AY, YO, 24, f'Y{half}', f'REDY{half}'); slots[bP(7) + 1].extend(q)
    for s in range(9):
        q = P()
        if s < 8: q.append(WaitVm([f'L{4 * (s + 1) + i}' for i in range(4)]))
        ds = 'kvb' if s == KVB else ('red' if s == 8 else None)
        if ds: q.append(WaitDs(ds))
        q.e('s_barrier'); stamp(q, f'bP{s}')
        pos = bP(s) if s < 8 else 66
        if ds: slots[pos].extend(q)
        else: slots[pos][1:1] = q
    q = P()
    for src in range(3):
        for hh in range(2): q.e(f'ds_read_b128 {vr(YR + 8 * src + 4 * hh, 4)}, v25 offset:{src * 2048 + hh * 1024}', None, f'REDY{half}')
    red_addr(q, REDS[half], 24, 26)
    q.e(f'v_permlane32_swap_b32 v{XR}, v{XR + 2}')
    q.e(f'v_permlane32_swap_b32 v{XR + 1}, v{XR + 3}')
    for k in range(4):
        q.e(f'v_lshlrev_b32 v{XU_ + 2 * k}, 16, v{XR + k}')
        q.e(f'v_and_b32 v{XU_ + 2 * k + 1}, 0xffff0000, v{XR + k}')
    for k in range(8): q.e(f'v_add_f32 v{YR + 8 + k}, v{YR + 8 + k}, v{YR + 16 + k}')
    for k in range(8): q.e(f'v_add_f32 v{YO + k}, v{YO + k}, v{YR + k}')
    interleave(slots, q, 67, 72)
    for sl in slots: p.extend(sl)
    stamp(p, 'endP')
    pr = lambda b, k: vr(b + 2 * k, 2)
    for k in range(4): p.e(f'v_pk_add_f32 {pr(YO, k)}, {pr(YO, k)}, {pr(YR + 8, k)}')
    for k in range(4): p.e(f'v_pk_mul_f32 {pr(G, k)}, {pr(YO, k)}, s[{sC}:{sC+1}] op_sel_hi:[1,0] neg_lo:[1,0] neg_hi:[1,0]')
    p.append(WaitDs())
    p.e('s_nop 3')
    red_write(p, AS, SO, 24, f'S{half}', f'REDS{half}')
    for k in range(8): p.e(f'v_exp_f32 v{G + k}, v{G + k}')
    for k in range(4): p.e(f'v_pk_add_f32 {pr(G, k)}, {pr(G, k)}, 1.0 op_sel_hi:[1,0]')
    for k in range(8): p.e(f'v_rcp_f32 v{G + k}, v{G + k}')
    for k in range(4): p.e(f'v_pk_mul_f32 {pr(G, k)}, {pr(G, k)}, {pr(YO, k)}')
    p.append(WaitDs())
    p.e('s_barrier')
    stamp(p, 'bS')
    for src in range(3):
        for hh in range(2): p.e(f'ds_read_b128 {vr(SR + 8 * src + 4 * hh, 4)}, v26 offset:{src * 2048 + hh * 1024}', None, f'REDS{half}')
    for k in range(4): p.e(f'v_pk_fma_f32 {pr(XU_, k)}, {pr(SO, k)}, {pr(G, k)}, {pr(XU_, k)}')
    for src in range(3):
        for k in range(4): p.e(f'v_pk_fma_f32 {pr(XU_, k)}, {pr(SR + 8 * src, k)}, {pr(G, k)}, {pr(XU_, k)}')
    for k in range(4): p.e(f'v_cvt_pk_bf16_f32 v{G + k}, v{XU_ + 2 * k}, v{XU_ + 2 * k + 1}')
    p.e(f'v_permlane32_swap_b32 v{G}, v{G + 2}')
    p.e(f'v_permlane32_swap_b32 v{G + 1}, v{G + 3}')
    p.e(f'buffer_store_dwordx4 {vr(G, 4)}, v{vOUT}, {srd(SOUT)}, 0 offen')
    stamp(p, 'end'); dump(p)
    if half == 0:
        p.e(f's_or_b32 s{sT1}, s2, s{sW}')
        p.e(f's_cmp_lg_u32 s{sT1}, 0')
        p.e(f's_cbranch_scc1 L_end')
        set_flag(p, '0', 24)
    p.e('s_endpgm')

def build():
    pro = prologue()
    outs = []; fulls = []
    for half in range(2):
        p = P()
        nd = pass1(p, half); phase1_main(p, half, nd); nr = phase1_tail(p, half); phase2(p, half, nr)
        mark = I(f'L_half{half}:')
        full = finalize(list(pro) + [mark] + list(p)); fulls.append(full)
        outs.append(full[full.index(mark):])
    if not (opt('nobar', 0) or opt('nodma', 0)): check_lds(fulls, RANGES)
    print('dead-def check', all([check_dead(f, (0,)) for f in fulls]))
    assert len({sum(x.op == 's_barrier' for x in f) for f in fulls}) == 1
    pro_f = finalize(list(pro))
    slow = []
    for q in slow_paths: slow += finalize(list(q))
    hdr = open('recurrent_scan__linear_kernel_hedgehog__geglu_ffn__prompt.s.ref').read().split('\n')
    top = [l for l in hdr if l.startswith(';') and '@launch' not in l and 'Override' not in l and 'grid=ceil' not in l]
    s = '\n'.join(top) + '\n; @launch grid=(256,1,1) block=(512,1,1) lds=163840\n'
    s += f'.amdgcn_target "amdgcn-amd-amdhsa--gfx950"\n.text\n.globl {NAME}\n.p2align 8\n.type {NAME},@function\n{NAME}:\n'
    s += text(pro_f) + text(outs[0]) + text(outs[1]) + text(slow)
    s += 'L_end:\n    s_endpgm\nL_codeend:\n'
    s += f'''.section .rodata,"a"
.p2align 6
.amdhsa_kernel {NAME}
  .amdhsa_next_free_vgpr 256
  .amdhsa_next_free_sgpr 96
  .amdhsa_accum_offset 256
  .amdhsa_group_segment_fixed_size 0
  .amdhsa_kernarg_size 88
  .amdhsa_user_sgpr_count 2
  .amdhsa_user_sgpr_kernarg_segment_ptr 1
  .amdhsa_system_sgpr_workgroup_id_x 1
.end_amdhsa_kernel
'''
    return s

if __name__ == '__main__':
    open(sys.argv[1], 'w').write(build())
    if DEBUG: json.dump(STAMPS, open('stamps.json', 'w'))
```

```python
import re

REG_RE = re.compile(r'^(-?)(abs\()?([vsa])(\d+|\[(\d+):(\d+)\])\)?$')
def regs_of(tok):
    tok = tok.strip()
    if tok in ('vcc', 'exec'): return [(tok, 0), (tok, 1)]
    if tok in ('vcc_lo',): return [('vcc', 0)]
    if tok in ('vcc_hi',): return [('vcc', 1)]
    if tok in ('exec_lo',): return [('exec', 0)]
    if tok in ('exec_hi',): return [('exec', 1)]
    if tok == 'm0': return [('m0', 0)]
    m = REG_RE.match(tok)
    if not m: return []
    f = m.group(3)
    if m.group(5) is not None:
        return [(f, i) for i in range(int(m.group(5)), int(m.group(6)) + 1)]
    return [(f, int(m.group(4)))]

TRANS = ('v_exp_f32', 'v_log_f32', 'v_rcp_f32', 'v_rsq_f32', 'v_sqrt_f32', 'v_sin_f32', 'v_cos_f32')
FAST = ('v_fma_f32', 'v_fmac_f32', 'v_add_f32', 'v_sub_f32', 'v_mul_f32', 'v_fmaak_f32', 'v_fmamk_f32', 'v_subrev_f32')

class Ins:
    __slots__ = ('text', 'op', 'kind', 'defs', 'uses', 'tok', 'srcC', 'passes', 'wide', 'data', 'note', 'cost', 'obj')
    def __init__(self, text, tok=None, obj=None):
        self.obj = obj
        self.text = text.strip(); self.tok = tok; self.srcC = []; self.passes = 0; self.wide = False; self.data = []
        t = self.text.split(';')[0].strip()
        if t.endswith(':'):
            self.op = 'label'; self.kind = 'label'; self.defs = []; self.uses = []; self.cost = 0; return
        if t.startswith('.'):
            self.op = 'dir'; self.kind = 'label'; self.defs = []; self.uses = []; self.cost = 0; return
        parts = t.split(None, 1); op = parts[0]; self.op = op
        rest = parts[1] if len(parts) > 1 else ''
        rest = re.sub(r'\s(op_sel|op_sel_hi|neg_lo|neg_hi):\[[^\]]*\]', '', rest)
        ops = [o.strip() for o in rest.split(',')] if rest else []
        mods = []
        if ops:
            last = ops[-1].split()
            if last:
                ops[-1] = last[0]; mods = last[1:]
        R = [regs_of(o) for o in ops]
        flat = lambda L: [r for x in L for r in x]
        defs, uses = [], []
        if op.startswith('v_mfma'):
            kind = 'mfma'; defs = R[0]; uses = flat(R[1:]); self.srcC = R[3]
            self.passes = 8 if '32x32' in op else 4
            cost = 8
        elif op.startswith('v_'):
            kind = 'valu'
            base = op.replace('_e32', '').replace('_e64', '')
            if base in TRANS: kind = 'trans'
            if base.startswith('v_dot2'): kind = 'dot'
            if base.startswith('v_cmp'):
                defs = R[0]; uses = flat(R[1:])
            elif base.startswith('v_permlane'):
                kind = 'perm'; defs = flat(R); uses = flat(R)
            elif base == 'v_writelane_b32':
                defs = R[0]; uses = flat(R)
            elif base in ('v_readfirstlane_b32', 'v_readlane_b32'):
                kind = 'rdlane'; defs = R[0]; uses = flat(R[1:])
            elif base in ('v_add_co_u32', 'v_sub_co_u32', 'v_addc_co_u32'):
                defs = R[0] + R[1]; uses = flat(R[2:])
            else:
                defs = R[0]; uses = flat(R[1:])
                if base in ('v_fmac_f32', 'v_dot2c_f32_bf16'): uses = uses + R[0]
                if base == 'v_cndmask_b32' and len(ops) == 3: uses = uses + regs_of('vcc')
            uses = uses + regs_of('exec')
            cost = 8 if kind in ('trans', 'perm') else 4
        elif op.startswith('ds_'):
            kind = 'ds'
            if op.startswith('ds_read') or op.startswith('ds_bpermute') or op.startswith('ds_swizzle'):
                defs = R[0]; uses = flat(R[1:])
            else:
                uses = flat(R)
            cost = 4
        elif op.startswith('buffer_') or op.startswith('global_'):
            kind = 'vmem'
            if 'lds' in mods or '_lds_' in op:
                uses = flat(R) + regs_of('m0'); kind = 'dma'
            elif '_load_' in op:
                defs = R[0]; uses = flat(R[1:])
            elif op.startswith('buffer_store'):
                uses = flat(R); self.data = R[0]; self.wide = ('x3' in op or 'x4' in op)
            elif op.startswith('global_store'):
                uses = flat(R); self.data = R[1]; self.wide = ('x3' in op or 'x4' in op)
            else:
                uses = flat(R)
            cost = 2
        elif op.startswith('s_'):
            kind = 'salu'
            if op in ('s_waitcnt', 's_barrier', 's_nop', 's_setprio', 's_sleep', 's_endpgm', 's_branch') or op.startswith('s_cbranch'):
                kind = 'sctl'
                if op.startswith('s_cbranch_vcc'): uses = regs_of('vcc')
            elif op.startswith('s_cmp') or op.startswith('s_bitcmp'):
                uses = flat(R)
            elif op.startswith('s_load') or op in ('s_memtime', 's_memrealtime'):
                kind = 'smem'; defs = R[0]; uses = flat(R[1:])
            else:
                defs = R[0]; uses = flat(R[1:])
                if op in ('s_addk_i32', 's_mulk_i32'): uses = uses + R[0]
                if 'saveexec' in op: defs = defs + regs_of('exec'); uses = uses + regs_of('exec')
            cost = 1
        else:
            raise ValueError('unknown instr: ' + text)
        self.kind = kind; self.defs = defs; self.uses = uses; self.cost = cost
    def __repr__(self): return self.text

class Pseudo:
    def __init__(self, kind, arg=None): self.kind = kind; self.arg = arg; self.cost = 0
    def __repr__(self): return f'<{self.kind} {self.arg}>'
def WaitVm(tok): return Pseudo('waitvm', tok)
def WaitDs(tok=None): return Pseudo('waitds', tok)
def Gap(n): return Pseudo('gap', n)
def Reset(): return Pseudo('reset')

def I(text, tok=None, obj=None): return Ins(text, tok, obj)

def insert_waits(prog):
    out = []; vm = []; ds = []
    def need(q, pred):
        for k in range(len(q) - 1, -1, -1):
            if pred(q[k]): return len(q) - 1 - k
        return None
    for x in prog:
        if isinstance(x, Pseudo):
            if x.kind == 'waitvm':
                toks = x.arg if isinstance(x.arg, (list, tuple, set)) else [x.arg]
                n = need(vm, lambda e: e['tok'] in toks)
                if n is not None:
                    n = min(n, 63); out.append(I(f's_waitcnt vmcnt({n})')); vm = vm[len(vm) - n:] if n else []
            elif x.kind == 'waitds':
                n = need(ds, lambda e: x.arg is None or e['tok'] == x.arg)
                if n is not None:
                    n = min(n, 15); out.append(I(f's_waitcnt lgkmcnt({n})')); ds = ds[len(ds) - n:] if n else []
            elif x.kind == 'reset':
                vm = []; ds = []; out.append(x)
            continue
        if x.kind == 'label': out.append(x); continue
        if x.op == 's_waitcnt':
            m = re.search(r'vmcnt\((\d+)\)', x.text)
            if m: n = int(m.group(1)); vm = vm[len(vm) - n:] if n and n < len(vm) else ([] if n == 0 else vm)
            m = re.search(r'lgkmcnt\((\d+)\)', x.text)
            if m: n = int(m.group(1)); ds = ds[len(ds) - n:] if n and n < len(ds) else ([] if n == 0 else ds)
            out.append(x); continue
        touched = set(x.uses) | set(x.defs)
        nv = need(vm, lambda e: e['regs'] & touched)
        nd = need(ds, lambda e: e['regs'] & touched)
        if nd is not None and any(e.get('smem') for e in ds): nd = 0
        w = []
        if nv is not None:
            nv = min(nv, 63); w.append(f'vmcnt({nv})'); vm = vm[len(vm) - nv:] if nv else []
        if nd is not None:
            nd = min(nd, 15); w.append(f'lgkmcnt({nd})'); ds = ds[len(ds) - nd:] if nd else []
        if w: out.append(I('s_waitcnt ' + ' '.join(w)))
        out.append(x)
        if x.tok == 'NOTRACK': pass
        elif x.kind in ('vmem', 'dma'):
            vm.append({'regs': set(x.defs), 'tok': x.tok})
            assert len(vm) <= 63 + 40, 'vm queue too deep'
        elif x.kind == 'ds':
            ds.append({'regs': set(x.defs), 'tok': x.tok})
        elif x.kind == 'smem':
            ds.append({'regs': set(x.defs), 'tok': x.tok, 'smem': True})
    return out

def states(x):
    if x.kind == 'label': return 0
    if x.op == 's_nop': return int(x.text.split()[1], 0) + 1
    return 1

VALUISH = ('valu', 'trans', 'dot', 'perm', 'rdlane')
def required(p, c):
    pd = set(p.defs); cu = set(c.uses); cd = set(c.defs); n = 0
    isv = lambda r: r[0] in ('v', 'a')
    iss = lambda r: r[0] in ('s', 'vcc')
    pdv = {r for r in pd if isv(r)}; pds = {r for r in pd if iss(r)}
    if p.kind == 'mfma':
        big = p.passes == 8
        if c.kind == 'mfma':
            if pdv & set(c.srcC):
                if not (c.op == p.op and c.srcC == p.defs): n = max(n, 10 if big else 6)
            ab = cu - set(c.srcC)
            if pdv & ab: n = max(n, 12 if big else 8)
            if pdv & cd and not (pdv & set(c.srcC)): n = max(n, 12 if big else 8)
        elif c.kind in VALUISH or c.kind in ('ds', 'vmem', 'dma'):
            if pdv & (cu | cd): n = max(n, 12 if big else 8)
        if c.kind in VALUISH and set(p.srcC) & cd: n = max(n, 7 if big else 3)
    if p.kind in VALUISH:
        if c.kind == 'mfma' and pdv & cu: n = max(n, 2)
        if (c.kind == 'perm' or c.op.endswith('_dpp')) and pdv & cu: n = max(n, 2)
        if c.kind == 'rdlane' and pdv & cu: n = max(n, 1)
        if p.kind == 'trans' and pdv & cu: n = max(n, 1)
        if p.kind == 'dot' and pdv & (cu | cd):
            if not (c.op == p.op and not (pdv & set(c.uses[:len(c.uses)]) - set(c.defs))): n = max(n, 3)
        if pds:
            if c.kind in VALUISH and pds & cu: n = max(n, 4 if c.kind == 'rdlane' else 2)
            if c.kind in ('vmem', 'dma') and pds & cu: n = max(n, 5)
            if c.kind in ('salu', 'smem') and pds & cu: n = max(n, 2)
    if p.kind == 'salu' and ('m0', 0) in pd and c.kind == 'dma': n = max(n, 1)
    if p.kind == 'vmem' and p.wide and set(p.data) & cd: n = max(n, 2 if c.kind in VALUISH else 1)
    return n

def insert_nops(prog):
    out = []; hist = []
    for x in prog:
        if isinstance(x, Pseudo):
            if x.kind == 'reset': hist = []
            continue
        if x.kind == 'label': out.append(x); continue
        need = 0; dist = 0
        for p in reversed(hist):
            r = required(p, x)
            if r > dist: need = max(need, r - dist)
            dist += states(p)
            if dist > 20: break
        while need > 0:
            k = min(need, 16); nop = I(f's_nop {k-1}'); out.append(nop); hist.append(nop); need -= k
        out.append(x); hist.append(x)
        if len(hist) > 40: hist = hist[-40:]
    return out

class Group(list):
    kind = 'group'
    @property
    def cost(self): return sum(x.cost for x in self)
def flat(L):
    out = []
    for x in L:
        if isinstance(x, Group): out.extend(flat(x))
        else: out.append(x)
    return out

def interleave(slots, filler, start, end):
    total = sum(f.cost for f in filler)
    gaps = sum(f.arg for f in filler if isinstance(f, Pseudo) and f.kind == 'gap')
    n = max(1, end - start - gaps)
    per = total / n
    k = 0; acc = 0.0; s = start
    while k < len(filler):
        if s >= end - 1:
            slots[end - 1].extend(f for f in filler[k:] if not (isinstance(f, Pseudo) and f.kind == 'gap')); break
        acc += per
        while k < len(filler) and acc > 0:
            f = filler[k]
            if isinstance(f, Pseudo) and f.kind == 'gap':
                k += 1; s += f.arg - 1; acc = 0; break
            slots[s].append(f); acc -= f.cost; k += 1
        s += 1

def finalize(prog):
    return insert_nops(insert_waits(flat(prog)))
def text(prog):
    return '\n'.join((x.text if x.kind == 'label' else '    ' + x.text) for x in prog) + '\n'


def lds_events(prog):
    ev = []; vm = []; ds = []; ep = 0
    def retire(q, n):
        while len(q) > n:
            e = q.pop(0)
            if e is not None: e[3] = ep
    for x in prog:
        if x.kind == 'label': continue
        if x.op == 's_barrier': ep += 1; continue
        if x.op == 's_endpgm': continue
        if x.op == 's_waitcnt':
            m = re.search(r'vmcnt\((\d+)\)', x.text)
            if m: retire(vm, int(m.group(1)))
            m = re.search(r'lgkmcnt\((\d+)\)', x.text)
            if m: retire(ds, int(m.group(1)))
            continue
        if x.tok == 'NOTRACK': continue
        if x.kind in ('vmem', 'dma', 'ds', 'smem'):
            e = None
            if x.kind in ('dma', 'ds'):
                assert x.obj is not None, 'LDS op without object: ' + x.text
                e = [x.obj, 'r' if x.op.startswith('ds_read') else 'w', ep, 10**6]; ev.append(e)
            (vm if x.kind in ('vmem', 'dma') else ds).append(e)
    return ev

def check_lds(progs, ranges, exempt=()):
    ev = [e for p in progs for e in lds_events(p)]
    objs = {}
    for o, k, i, c in ev: objs.setdefault(o, []).append((k, i, c))
    ok = True
    for o, L in objs.items():
        wc = max(c for k, i, c in L if k == 'w'); R = [i for k, i, c in L if k == 'r']
        if R and min(R) <= wc:
            print(f'LDS RAW violation {o}: write completes in epoch {wc}, first read in epoch {min(R)}'); ok = False
    names = list(objs)
    for a in names:
        for b in names:
            if a >= b or (a, b) in exempt or (b, a) in exempt: continue
            (s1, e1), (s2, e2) = ranges[a], ranges[b]
            if s1 < e2 and s2 < e1:
                fa = min(i for k, i, c in objs[a]); fb = min(i for k, i, c in objs[b])
                x, y = (a, b) if fa <= fb else (b, a)
                last = max(c for k, i, c in objs[x]); first = min(i for k, i, c in objs[y])
                if first <= last:
                    print(f'LDS overlap violation: {x} busy until epoch {last}, {y} starts in epoch {first}'); ok = False
    for o in names: assert ranges[o][1] <= 163840, o
    assert ok

def check_dead(prog, ignore=()):
    last = {}; bad = []
    for k, x in enumerate(prog):
        if x.kind == 'label' or x.tok == 'NOTRACK': continue
        for r in x.uses:
            if r[0] == 'v': last.pop(r, None)
        for r in x.defs:
            if r[0] != 'v' or r[1] in ignore: continue
            if r in last and last[r].kind not in ('mfma', 'perm') and last[r].op not in ('v_mov_b64', 'global_load_dword'): bad.append((last[r].text, x.text))
            last[r] = x
    seen = set()
    for a, b in bad:
        if (a, b) not in seen: seen.add((a, b)); print('DEAD DEF:', a, ' <- overwritten by ', b)
    return not bad
```

```python
import sys, struct, math, json
sys.path.insert(0, 'work')
from asmlib import *

NAME = 'recurrent_scan__linear_kernel_hedgehog__geglu_ffn__prompt_kernel'
def f2u(x): return struct.unpack('<I', struct.pack('<f', x))[0]
def hx(x): return '0x%08x' % (x & 0xffffffff)
LOG2E = 1.4426950408889634
ARGS = sys.argv[2:]
DEBUG = 'dbg' in ARGS
def opt(name, default):
    for a in ARGS:
        if a.startswith(name + '='): return int(a.split('=')[1])
    return default

EP, KVFL, HFL, KVP, HB = 0x0, 0x1000, 0x10000, 0x40000, 0x200000
FLT = 1024
TBLK = 148 * 1024
WS_SIZE = HB + 64 * TBLK
DBGOFF = 0xC00000
if DEBUG: WS_SIZE = 0xD00000
SX, SQKV, SG, SU, SWD, SWO, SWS, SOUT, SPHI, SREM = 8, 12, 16, 20, 24, 28, 32, 36, 40, 44
def srd(b): return f's[{b}:{b+3}]'
sW, sRB, sH, sJ, sJM, sCH, sW1K, sREML = 48, 49, 50, 51, 52, 53, 54, 55
sTAG = 56
sTT, sT, sXI, sI = 58, 59, 60, 61
sC = 62; sHST = 63
sT0, sT1, sT2, sT3, sT4, sT5 = 64, 65, 66, 67, 68, 69
sONE2, sSEL0, sSEL1 = 70, 71, 72
sHLD, sFLD, sNG, sT2K, sFLA, sFLP, sKVFL, sRDY = 73, 74, 75, 76, 77, 78, 82, 83
sSPIN = 79
sPERM = 83
sT1K = 90
vOR3 = 22
sPC = 80
vLANE, vL16, vGM, vIR2, vCR, vK1, vK2 = 1, 2, 3, 4, 5, 6, 7
vOQ = 8; vOR = [9, 10]; vTQ = 11; vTR = [12, 13]; vDU = [14, 15, 16]
vOA = [17, 18]; vOW2 = 19; vTA = [20, 21]; vDA = [16, 22]
vOX = 31
ACC3, ACC1, ACC2, XF = 32, 64, 80, 128
AFR = [112, 116, 120, 124]
ASEL, ACS, BM, CFR = 240, 244, 246, 250
def vr(b, n=1): return f'v{b}' if n == 1 else f'v[{b}:{b+n-1}]'

U = 8192
XU = lambda p: 2 * p * U
CU = [14 * U, 15 * U, 16 * U, 17 * U, 18 * U, 0, U]
DU = [2 * U, 4 * U, 6 * U, 8 * U, 10 * U, 12 * U, 14 * U]
AU = [0, 2 * U, 4 * U, 6 * U, 8 * U, 10 * U, 12 * U]
TRV, TRK = 16 * U, 17 * U
MISC = 19 * U; CSB = MISC + 2048; STAT = MISC + 4096; KVBUF = MISC + 4096
LINES = [L for L in range(28) if L % 7 in (1, 3, 5)] + [L for L in range(28) if L % 7 in (0, 2, 4, 6)] + list(range(28, 36))
LU = [16, 17, 18, 14, 15, 0, 1, 2, 3, 4, 5, 6, 7, 8, 9, 10, 11, 12, 13,
      16, 17, 18, 14, 15, 0, 1, 2, 3, 4, 5, 6, 7, 8, 9, 10, 11]
OW = 4 * U
REDS, REDY = [4 * U, 15 * U], [0, 12 * U]
LOG = 32
RANGES = {'PHI': (MISC, MISC + 2048), 'STAT': (STAT, STAT + 4096), 'KVBUF': (KVBUF, KVBUF + 4096), 'TRV': (TRV, TRV + U), 'TRK': (TRK, TRK + 2 * U),
          'CS1': (CSB, CSB + 2048), 'CS2': (CSB, CSB + 2048), 'CS3': (CSB, CSB + 2048)}
for h_ in range(2):
    RANGES[f'REDS{h_}'] = (REDS[h_], REDS[h_] + 3 * U); RANGES[f'REDY{h_}'] = (REDY[h_], REDY[h_] + 3 * U)
for c in range(7):
    RANGES[f'X{c}'] = (XU(c), XU(c) + 2 * U); RANGES[f'C{c}'] = (CU[c], CU[c] + U)
    RANGES[f'D{c}'] = (DU[c], DU[c] + 2 * U); RANGES[f'A{c}'] = (AU[c], AU[c] + 2 * U)
for n in range(36): RANGES[f'L{n}'] = (LU[n] * U, LU[n] * U + U)

MF32 = 'v_mfma_f32_32x32x16_bf16'
MF16 = 'v_mfma_f32_16x16x32_bf16'

class P(list):
    def e(self, t, tok=None, obj=None): self.append(I(t, tok, obj)); return self

STAMPS = {}
def stamp(p, name, rt=False):
    if not DEBUG: return
    if opt('prew', 0) and name.startswith(('bP', 'b3', 'bX', 'pre')): return
    if opt('light', 0) and name not in ('karg', 'bX0', 'bX7', 'end1', 'b2_0', 'b3_0', 'b2_6', 'endA', 'bPopen', 'bP2', 'bP4', 'bP5', 'endP', 'end', 'rt_end'): return
    k = STAMPS.setdefault(name, len(STAMPS)); assert k < 64
    p.append(Group([I(f'{"s_memrealtime" if rt else "s_memtime"} s[84:85]'), I('s_waitcnt lgkmcnt(0)'), I(f'v_writelane_b32 v0, s84, {k}')]))
def dump(p):
    if not DEBUG: return
    stamp(p, 'rt_end', True)
    p.e(f's_lshl_b32 s84, s2, 3'); p.e(f's_add_u32 s84, s84, s{sW}'); p.e('s_lshl_b32 s84, s84, 8'); p.e(f's_add_u32 s84, s84, {DBGOFF}')
    p.e(f'v_lshlrev_b32 v31, 2, v{vLANE}')
    p.e(f'buffer_store_dword v0, v31, {srd(SWS)}, s84 offen')
    if opt('dbgwg', -1) >= 0:
        p.e(f's_lshl_b32 s84, s2, 3'); p.e(f's_add_u32 s84, s84, s{sW}')
        p.e(f's_cmp_lg_u32 s84, {opt("dbgwg", 0) * 8}')
        p.e(f's_cbranch_scc1 L_nodbg{len(slow_paths)}')
        p.e('s_load_dwordx2 s[90:91], s[0:1], 72'); p.e('v_readlane_b32 s86, v0, 0'); p.e('v_readlane_b32 s87, v0, 1'); p.e('s_waitcnt lgkmcnt(0)')
        p.e('v_subrev_u32 v30, s86, v0'); p.e('v_subrev_u32 v29, s87, v0')
        p.e(f'v_cmp_eq_u32 vcc, {STAMPS["rt_end"]}, v{vLANE}'); p.e('v_cndmask_b32 v30, v30, v29, vcc')
        p.e('global_store_dword v31, v30, s[90:91]')
        p.e(f'L_nodbg{len(slow_paths)}:')

def dma(p, s, voff, pre, m0base, m0const, tok):
    p.append(Group([I(f's_add_u32 m0, s{m0base}, {m0const}')] + [I(t) for t in pre] +
                   [I(f'buffer_load_dwordx4 v{voff}, {srd(s)}, s{sT0} offen lds', tok, tok)]))
def cidx(pos): return f's_bfe_u32 s{sT0}, s{sCH}, {hx((4 << 16) | (4 * pos))}'
def dma_X(p, c):
    dma(p, SX, vOX, [cidx(c), f's_lshl_b32 s{sT0}, s{sT0}, 7'], sW1K, XU(c), f'X{c}')
    dma(p, SX, vOX, [f's_add_u32 s{sT0}, s{sT0}, {64 * 896}'], sW1K, XU(c) + U, f'X{c}')
def dma_C(p, half, c):
    dma(p, SQKV, vOQ, [cidx(c), f's_mul_i32 s{sT0}, s{sT0}, {64 * 2688}', f's_add_u32 s{sT0}, s{sT0}, {896 * (1 + half)}'], sW1K, CU[c], f'C{c}')
def dma_D(p, half, c, solo=False):
    k26 = [cidx(c), f's_mul_i32 s{sT0}, s{sT0}, {64 * 2688}']; k35 = [cidx(c), f's_mul_i32 s{sT0}, s{sT0}, {64 * 3584}']
    if solo:
        if half == 0: return
        dma(p, SQKV, vOQ, k26, sT1K, DU[c], f'D{c}')
        dma(p, SG, vOR3, k35, sT1K, DU[c] + 4096, f'D{c}')
    if half == 0:
        dma(p, SQKV, vOQ, k26, sT1K, DU[c], f'D{c}')
        dma(p, SREM, vOR[0], k35, sREML, DU[c] + 4096, f'D{c}')
    else:
        dma(p, SREM, vOR[0], [] if solo else k35, sREML, DU[c] + 4096, f'D{c}')
        dma(p, SREM, vOR[1], [], sREML, DU[c] + 5120, f'D{c}')
def dma_A(p, pos, half, solo=None):
    k35 = [cidx(pos), f's_mul_i32 s{sT0}, s{sT0}, {64 * 3584}']; up = [f's_add_u32 s{sT0}, s{sT0}, {32 * 3584}']
    if solo is not None and half != solo: return
    for hh in ((0, 1) if solo is not None else (half,)):
        pre = (k35 if hh == 0 or solo is None else []) + (up if hh else [])
        dma(p, SG, vOA[0], pre, sT1K, AU[pos] + 4096 * hh, f'A{pos}')
        dma(p, SU, vOA[1], [], sT1K, AU[pos] + U + 4096 * hh, f'A{pos}')
def dma_L(p, n, half, solo=None):
    L = LINES[n]
    s, row = (SWD, L * 64) if L < 28 else (SWO, (L - 28) * 56)
    if solo is not None and half != solo: return
    for hh in ((0, 1) if solo is not None else (half,)):
        dma(p, s, vOW2, [f's_mov_b32 s{sT0}, {(row + 32 * hh) * 896}'], sT1K, LU[n] * U + 4096 * hh, f'L{n}')
def spread(slots, atoms, start, end):
    n = len(atoms)
    for k, x in enumerate(atoms): slots[start + (k * (end - start)) // n].append(x)
def mix(code, atoms, lead=0.0, tail=1.0):
    total = sum(x.cost for x in code); out = P(); acc = 0; k = 0; n = len(atoms)
    for x in code:
        while k < n and acc >= total * (lead + (tail - lead) * k / n): out.append(atoms[k]); k += 1
        out.append(x); acc += x.cost
    out.extend(atoms[k:])
    return out

slow_paths = []
def flag_load(p, vflag, vaddr, soff):
    p.e(f'buffer_load_dwordx2 {vr(vflag, 2)}, v{vaddr}, {srd(SWS)}, {soff} offen sc1')
def poll(p, uid, vflag, vaddr, soff):
    p.e(f'v_cmp_ne_u64 vcc, s[{sTAG}:{sTAG+1}], {vr(vflag, 2)}')
    p.e(f's_cbranch_vccnz L_slow_{uid}')
    p.e(f'L_res_{uid}:')
    q = P(); q.append(Reset())
    q.e(f'L_slow_{uid}:')
    q.e(f's_mov_b32 s{sSPIN}, 0x40000')
    q.e(f'L_spin_{uid}:')
    flag_load(q, vflag, vaddr, soff)
    q.e('s_waitcnt vmcnt(0)')
    q.e(f'v_cmp_ne_u64 vcc, s[{sTAG}:{sTAG+1}], {vr(vflag, 2)}')
    q.e(f's_cbranch_vccz L_res_{uid}')
    q.e(f's_sleep {opt("sleep", 2)}')
    q.e(f's_sub_u32 s{sSPIN}, s{sSPIN}, 1')
    q.e(f's_cmp_lg_u32 s{sSPIN}, 0')
    q.e(f's_cbranch_scc1 L_spin_{uid}')
    q.e(f's_branch L_res_{uid}')
    slow_paths.append(q)
def set_flag(p, soff, vt, off=0):
    p.append(Group([I(f'v_mov_b32 v{vt}, s{sTAG}'), I(f'v_mov_b32 v{vt+1}, s{sTAG+1}'),
        I(f's_mov_b64 exec, 1'),
        I(f'buffer_store_dwordx2 {vr(vt, 2)}, off, {srd(SWS)}, {soff} offset:{off} sc1'),
        I(f's_mov_b64 exec, -1')]))
def srd_consts(p, b, n):
    p.e(f's_mov_b32 s{b+2}, {n}'); p.e(f's_mov_b32 s{b+3}, 0x20000')

def prologue():
    p = P()
    p.e('s_cmp_ge_u32 s2, 256')
    p.e('s_cbranch_scc1 L_end')
    if DEBUG: p.e('s_memtime s[86:87]'); p.e('s_memrealtime s[88:89]')
    p.e(f's_load_dwordx4 s[{SX}:{SX+3}], s[0:1], 0')
    p.e(f's_getpc_b64 s[{sPC}:{sPC+1}]')
    p.e('L_pcbase:')
    p.e(f's_lshr_b32 s{sI}, s2, 3')
    p.e(f'v_lshrrev_b32 v48, 6, v0')
    p.e(f'v_and_b32 v49, 1, v0')
    p.e(f'v_lshl_or_b32 v49, v48, 1, v49')
    p.e(f's_lshl_b32 s{sT0}, s{sI}, 4')
    p.e(f'v_add_u32 v49, s{sT0}, v49')
    p.e(f'v_lshlrev_b32 v49, 7, v49')
    p.e(f'v_min_u32 v49, (L_codeend - L_pcbase - 4), v49')
    if opt('cpf', 1): p.e(f'global_load_dword v56, v49, s[{sPC}:{sPC+1}]')
    p.e(f'v_readfirstlane_b32 s{sW}, v48')
    p.e(f's_and_b32 s{sXI}, s2, 7')
    p.e(f'v_and_b32 v{vLANE}, 63, v0')
    p.e(f's_and_b32 s{sT0}, s{sXI}, 1')
    p.e(f's_lshl_b32 s{sT0}, s{sT0}, 3')
    p.e(f's_and_b32 s{sT1}, s{sI}, 7')
    p.e(f's_add_u32 s{sRB}, s{sT0}, s{sT1}')
    p.e(f's_lshr_b32 s{sT2}, s{sI}, 3')
    p.e(f's_lshr_b32 s{sT0}, s{sXI}, 1')
    p.e(f's_lshl_b32 s{sT0}, s{sT0}, 2')
    p.e(f's_add_u32 s{sH}, s{sT0}, s{sT2}')
    p.e(f'v_lshrrev_b32 v50, 3, v{vLANE}')
    p.e(f's_lshl_b32 s{sT2}, s{sT2}, 1')
    p.e(f's_add_u32 s{sT1}, s{sT1}, s{sT2}')
    p.e(f'v_lshrrev_b32 v51, 4, v{vLANE}')
    p.e(f's_sub_u32 s{sT2}, s{sT1}, 7')
    p.e(f's_cmp_ge_u32 s{sT1}, 7')
    p.e(f's_cselect_b32 s{sT1}, s{sT2}, s{sT1}')
    p.e(f'v_and_b32 v52, 7, v{vLANE}')
    p.e(f's_lshl_b32 s{sT1}, s{sT1}, 2')
    p.e(f's_mov_b32 s{sT2}, 0x06543210')
    p.e(f's_mov_b32 s{sT3}, 0x00654321')
    p.e(f's_lshr_b64 s[{sT2}:{sT3}], s[{sT2}:{sT3}], s{sT1}')
    p.e(f's_mov_b32 s{sCH}, s{sT2}')
    p.e(f's_lshl_b32 s{sW1K}, s{sW}, 10')
    p.e(f's_lshl_b32 s{sT0}, s{sRB}, 7')
    p.e(f's_lshl_b32 s{sT1}, s{sW}, 3')
    p.e(f's_add_u32 s{sT0}, s{sT0}, s{sT1}')
    p.e(f'v_add_u32 v{vOX}, s{sT0}, v50')
    p.e(f'v_mul_u32_u24 v{vOX}, 896, v{vOX}')
    p.e(f's_and_b32 s{sT1}, s{sW}, 1')
    p.e(f's_lshl_b32 s{sT1}, s{sT1}, 2')
    p.e(f'v_xor_b32 v51, s{sT1}, v51')
    p.e(f'v_xor_b32 v51, v51, v52')
    p.e(f'v_lshl_add_u32 v{vOX}, v51, 4, v{vOX}')
    srd_consts(p, SQKV, 448 * 2688)
    p.e('s_waitcnt lgkmcnt(0)')
    p.e(f's_mov_b32 s{SQKV}, s{SX+2}'); p.e(f's_mov_b32 s{SQKV+1}, s{SX+3}')
    srd_consts(p, SX, 1835008)
    if DEBUG:
        STAMPS['start'] = 0; STAMPS['rt_start'] = 1
        p.e('v_writelane_b32 v0, s86, 0'); p.e('v_writelane_b32 v0, s88, 1')
    stamp(p, 'karg')
    dma_X(p, 0)
    for b, off in ((SG, 40), (SU, 48), (SPHI, 16), (SWO, 24), (SWD, 56), (SOUT, 64), (SWS, 80)):
        p.e(f's_load_dwordx2 s[{b}:{b+1}], s[0:1], {off}')
    p.e(f's_and_b32 s{sTT}, s{sW}, 3')
    p.e(f's_cmp_ge_u32 s{sW}, 4')
    p.e('s_cbranch_scc1 L_half1')
    return p

def setup(half):
    e = P(); f = e; g = e
    f.e(f's_lshl_b32 s{sT1}, s{sTT}, 4')
    f.e(f'v_lshrrev_b32 v53, 2, v{vLANE}')
    f.e(f'v_add_u32 v53, s{sT1}, v53')
    f.e(f'v_mul_u32_u24 v{vOQ}, 2688, v53')
    f.e(f'v_and_b32 v53, 3, v{vLANE}')
    f.e(f'v_lshlrev_b32 v53, 4, v53')
    f.e(f'v_min_u32 v53, 40, v53')
    f.e(f's_mul_i32 s{sT1}, s{sH}, 56')
    f.e(f'v_add3_u32 v{vOQ}, v{vOQ}, v53, s{sT1}')
    f.e(f'v_and_b32 v53, 31, v{vLANE}')
    f.e(f'v_lshrrev_b32 v54, 5, v{vLANE}')
    f.e(f'v_bfe_u32 v49, v{vLANE}, 1, 3')
    f.e(f'v_xor_b32 v49, v49, v54')
    f.e(f'v_lshlrev_b32 v53, 7, v53')
    f.e(f's_lshl_b32 s{sT1}, s{sTT}, 12')
    f.e(f'v_add_u32 v53, s{sT1}, v53')
    f.e(f's_mov_b32 s{sONE2}, 0x3f803f80')
    for ks in range(4):
        f.e(f'v_xor_b32 v{24 + ks}, {2 * ks}, v49')
        f.e(f'v_lshl_add_u32 v{24 + ks}, v{24 + ks}, 4, v53')
    g.e(f'v_bfe_u32 v39, v{vLANE}, 4, 1')
    g.e(f'v_bfe_u32 v36, v{vLANE}, 2, 2')
    g.e(f'v_lshrrev_b32 v37, 5, v{vLANE}')
    g.e(f'v_and_b32 v38, 3, v{vLANE}')
    g.e(f'v_lshl_add_u32 v37, v37, 3, v36')
    g.e(f'v_lshlrev_b32 v{vTQ}, 6, v37')
    g.e(f'v_lshl_add_u32 v{vTQ}, v39, 5, v{vTQ}')
    g.e(f'v_lshl_add_u32 v{vTQ}, v38, 3, v{vTQ}')
    g.e(f'v_add_u32 v{vTQ}, {CU[0] + half * 4096}, v{vTQ}')
    g.e(f's_lshl_b32 s{sT1}, s{sTT}, 10')
    g.e(f'v_add_u32 v{vDU[0]}, s{sT1}, v{vTQ}')
    g.e(f'v_lshrrev_b32 v35, 2, v{vLANE}')
    g.e(f'v_xor_b32 v35, v35, v39')
    g.e(f'v_and_b32 v35, 1, v35')
    g.e(f'v_cmp_eq_u32 vcc, 0, v35')
    g.e(f'v_mov_b32 v35, s{sONE2}')
    g.e(f's_nop 0')
    g.e(f'v_cndmask_b32 v{ASEL}, 0, v35, vcc')
    for k in range(1, 4): g.e(f'v_mov_b32 v{ASEL + k}, v{ASEL}')
    f = P()
    for b, n in ((SG, 448 * 3584), (SU, 448 * 3584), (SPHI, 16 * 1568), (SWO, 448 * 896), (SWD, 1792 * 896), (SOUT, 1835008), (SWS, WS_SIZE)):
        srd_consts(f, b, n)
    f.e(f's_lshl_b32 s{sT1K}, s{sTT}, 10')
    f.e('s_waitcnt lgkmcnt(0)')
    if opt('wsoff', 0): f.append(Group([I(f's_add_u32 s{SWS}, s{SWS}, {opt("wsoff", 0) << 20}'), I(f's_addc_u32 s{SWS+1}, s{SWS+1}, 0')]))
    sl = [0, 1, 3, 2, 4, 5, 7, 6, 9, 8, 10, 11, 13, 12, 14, 15]
    lo = sum(sl[k] << (4 * k) for k in range(8)); hi = sum(sl[8 + k] << (4 * k) for k in range(8))
    f.e(f's_mov_b32 s{sT2}, {hx(lo)}')
    f.e(f's_mov_b32 s{sT3}, {hx(hi)}')
    f.e(f's_lshl_b32 s{sT1}, s{sH}, 2')
    f.e(f's_lshr_b64 s[{sT2}:{sT3}], s[{sT2}:{sT3}], s{sT1}')
    f.e(f's_and_b32 s{sJ}, s{sT2}, 15')
    f.e(f's_and_b32 s{sJM}, s{sJ}, 3')
    if half == 0:
        f.e(f's_mov_b32 s{SREM}, s{SG}'); f.e(f's_mov_b32 s{SREM+1}, s{SG+1}')
        f.e(f's_lshl_b32 s{sREML}, s{sTT}, 10')
        f.e(f's_lshl_b32 s{sT2}, s{sTT}, 6')
        f.e(f's_mov_b32 s{sT1}, 0')
    else:
        f.append(Group([I(f's_cmp_eq_u32 s{sTT}, 0'), I(f's_cselect_b32 s{SREM}, s{SG}, s{SU}'), I(f's_cselect_b32 s{SREM+1}, s{SG+1}, s{SU+1}'),
                        I(f's_cselect_b32 s{sT1}, 0, 4'), I(f's_cselect_b32 s{sT2}, 3, s{sTT}')]))
        f.e(f's_lshl_b32 s{sREML}, s{sTT}, 11')
        f.e(f's_add_u32 s{sREML}, s{sREML}, 4096')
        f.e(f's_lshl_b32 s{sT2}, s{sT2}, 7')
        f.e(f's_sub_u32 s{sT2}, s{sT2}, 128')
    srd_consts(f, SREM, 448 * 3584)
    f.e(f's_mul_i32 s{sT3}, s{sJ}, 224')
    for n in range(1 + 2 * half):
        if n == 1: f.e(f's_add_u32 s{sT2}, s{sT2}, 64')
        if n == 2: f.e(f's_lshl_b32 s{sT2}, s{sTT}, 6'); f.e(f's_mov_b32 s{sT1}, 0')
        f.e(f'v_add_u32 v53, s{sT2}, v{vLANE}')
        f.e(f'v_mul_u32_u24 v54, 683, v53')
        f.e(f'v_lshrrev_b32 v54, 12, v54')
        f.e(f'v_mul_u32_u24 v55, 6, v54')
        f.e(f'v_sub_u32 v55, v53, v55')
        f.e(f'v_xor_b32 v54, s{sT1}, v54')
        f.e(f'v_mul_u32_u24 v{(vOR + [vOR3])[n]}, 3584, v54')
        f.e(f'v_lshrrev_b32 v54, 1, v55')
        f.e(f'v_add_u32 v53, 4, v54')
        f.e(f'v_cmp_gt_u32 vcc, s{sJM}, v54')
        f.e(f'v_and_b32 v55, 1, v55')
        f.e(f'v_cndmask_b32 v54, v53, v54, vcc')
        f.e(f'v_lshl_or_b32 v54, v54, 1, v55')
        f.e(f'v_lshlrev_b32 v54, 4, v54')
        f.e(f'v_add3_u32 v{(vOR + [vOR3])[n]}, v{(vOR + [vOR3])[n]}, v54, s{sT3}')
    g = f
    g.e(f's_lshl_b32 s{sT1}, s{sTT}, 3')
    g.e(f'v_add_u32 v53, s{sT1}, v50')
    g.e(f'v_bfe_u32 v51, v{vLANE}, 4, 1')
    g.e(f'v_lshlrev_b32 v49, 1, v51')
    g.e(f'v_xor_b32 v49, v49, v52')
    g.e(f's_lshl_b32 s{sT2}, s{sJM}, 5')
    g.e(f's_add_u32 s{sT2}, s{sT2}, s{sT3}')
    g.e(f'v_mul_u32_u24 v{vOW2}, 3584, v53')
    g.e(f'v_add_u32 v{vOW2}, s{sT2}, v{vOW2}')
    g.e(f'v_lshl_add_u32 v{vOA[0]}, v49, 4, v{vOW2}')
    g.e(f'v_xor_b32 v49, 4, v49')
    g.e(f'v_lshl_add_u32 v{vOA[1]}, v49, 4, v{vOW2}')
    g.e(f's_mul_i32 s{sT2}, s{sI}, 37')
    g.e(f's_lshr_b32 s{sT2}, s{sT2}, 8')
    g.e(f's_mul_i32 s{sT3}, s{sT2}, 7')
    g.e(f's_sub_u32 s{sNG}, s{sI}, s{sT3}')
    g.e(f's_lshl_b32 s{sT3}, s{sXI}, 2')
    g.e(f's_add_u32 s{sT2}, s{sT2}, s{sT3}')
    g.e(f's_lshl_b32 s{sT2}, s{sT2}, 1')
    g.e(f's_add_u32 s{sT2K}, s{sT2}, {half}')
    g.e(f's_and_b32 s{sT2K}, s{sT2K}, {1 if opt("fakeH", 0) else 63}')
    if opt('fakeW', 0): g.e(f's_mov_b32 s{sNG}, 0')
    g.e(f'v_lshlrev_b32 v49, 2, v51')
    g.e(f'v_xor_b32 v49, v49, v52')
    g.e(f'v_mul_u32_u24 v53, 896, v53')
    g.e(f's_lshl_b32 s{sT2}, s{sNG}, 7')
    g.e(f'v_add_u32 v53, s{sT2}, v53')
    g.e(f'v_lshl_add_u32 v{vOW2}, v49, 4, v53')
    g.e(f'v_lshlrev_b32 v{vL16}, 4, v{vLANE}')
    g.e(f'v_cmp_lt_u32 vcc, 31, v{vLANE}')
    g.e(f'v_mov_b32 v{BM + 2}, 0')
    g.e(f'v_mov_b32 v{BM + 3}, 0')
    g.e(f'v_cndmask_b32 v{vGM}, 0, 1.0, vcc')
    g.e(f's_mov_b32 s{sC}, {hx(f2u(LOG2E))}')
    g.e(f's_mov_b32 s{sSEL0}, 0x00003f80')
    g.e(f's_mov_b32 s{sSEL1}, 0x3f800000')
    g.e(f's_lshl_b32 s{sT}, s{sRB}, 2')
    g.e(f's_add_u32 s{sT}, s{sT}, s{sTT}')
    g.e(f's_mul_i32 s{sHST}, s{sT}, {TBLK}')
    g.e(f's_add_u32 s{sHST}, s{sHST}, {HB}')
    g.e(f's_lshl_b32 s{sFLP}, s{sT}, 10')
    g.e(f's_lshl_b32 s{sT2}, s{sJ}, 3')
    g.e(f's_add_u32 s{sFLP}, s{sFLP}, s{sT2}')
    g.e(f's_add_u32 s{sFLP}, s{sFLP}, {HFL}')
    g.e(f's_mul_i32 s{sHLD}, s{sT2K}, {TBLK}')
    g.e(f's_lshl_b32 s{sT2}, s{sTT}, 10')
    g.e(f's_add_u32 s{sHLD}, s{sHLD}, s{sT2}')
    g.e(f's_add_u32 s{sHLD}, s{sHLD}, {HB}')
    g.e(f's_lshl_b32 s{sFLD}, s{sT2K}, 10')
    g.e(f's_add_u32 s{sFLD}, s{sFLD}, {HFL}')
    g.e(f's_lshr_b32 s{sFLA}, s{sTT}, 1')
    g.e(f's_add_u32 s{sFLA}, s{sFLA}, 2')
    g.e(f's_lshl_b32 s{sFLA}, s{sFLA}, 7')
    g.e(f's_add_u32 s{sFLA}, s{sFLA}, s{sFLD}')
    g.e(f's_lshl_b32 s{sKVFL}, s{sH}, 2')
    g.e(f's_add_u32 s{sKVFL}, s{sKVFL}, s{sTT}')
    g.e(f's_lshl_b32 s{sKVFL}, s{sKVFL}, 7')
    g.e(f's_add_u32 s{sKVFL}, s{sKVFL}, {KVFL}')
    g.e(f's_mov_b32 s{sT2}, {DU[0] + 4096}')
    for rd in range(2):
        g.e(f'v_xor_b32 v49, {rd}, v39')
        g.e(f'v_lshl_add_u32 v49, v49, 2, v37')
        g.e(f'v_mul_u32_u24 v49, 96, v49')
        g.e(f'v_mul_u32_u24 v{vTR[rd]}, 6144, v39')
        g.e(f'v_lshl_add_u32 v49, v38, 3, v49')
        g.e(f'v_add3_u32 v{vTR[rd]}, v{vTR[rd]}, v49, s{sT2}')
    g.e(f'v_lshrrev_b32 v49, 1, v36')
    g.e(f'v_lshl_or_b32 v49, v39, 1, v49')
    g.e(f'v_lshlrev_b32 v37, 7, v37')
    g.e(f'v_lshl_add_u32 v37, v39, 13, v37')
    g.e(f'v_lshl_add_u32 v37, v38, 3, v37')
    for t in range(2):
        g.e(f'v_xor_b32 v{vTA[t]}, {2 * half + t}, v49')
        g.e(f'v_lshl_add_u32 v{vTA[t]}, v{vTA[t]}, 5, v37')
    g.e(f's_mul_i32 s{sT1}, s{sTT}, 1536')
    g.e(f'v_add_u32 v{vDU[1]}, s{sT1}, v{vTR[0]}')
    g.e(f'v_add_u32 v{vDU[2]}, s{sT1}, v{vTR[1]}')
    return e, f

def touch(half, sT, vt):
    g = P()
    g.e(f's_lshl_b32 s{sT}, s2, 2')
    g.e(f's_add_u32 s{sT}, s{sT}, s{sTT}')
    for k, (s, nl) in enumerate(((SG, 13), (SU, 13), (SWD, 13), (SWO, 4))):
        g.e(f'v_min_u32 v{vt}, {nl - 1}, v{vLANE}')
        g.e(f'v_lshlrev_b32 v{vt}, 7, v{vt}')
        g.e(f's_mul_i32 s{sT0}, s{sT}, {nl * 128}')
        g.e(f'buffer_load_dword v{vt - 1}, v{vt}, {srd(s)}, s{sT0} offen'); g[-1].defs = []
    return g

def late_loads(half):
    g = P()
    g.e(f'buffer_load_dwordx2 v[44:45], off, {srd(SWS)}, 0 sc1', 'EP')
    if opt('tlb', 1):
        g.e(f's_add_u32 s{sT3}, s{sHST if half == 0 else sHLD}, {144 * 1024}')
        g.e(f'buffer_load_dword v42, off, {srd(SWS)}, s{sT3}'); g[-1].defs = []
        g.e(f's_mul_i32 s{sT3}, s{sT2K}, {32 * 896}')
        g.e(f'buffer_load_dword v42, off, {srd(SOUT)}, s{sT3}')
    return g

D1 = 56
def pass1(p, half):
    own = [2 * half, 2 * half + 1]
    NU = opt('nu', 3)
    st, rest = setup(half)
    kq = next(k for k, x in enumerate(st) if isinstance(x, Ins) and x.text.startswith(f'v_add3_u32 v{vOQ},')) + 1
    p.extend(st[:kq])
    at = P(); dma_C(at, half, 0)
    seq = [(k, c) for c in range(NU, 7) for k in 'XC'] if NU <= 5 else [('X', c) for c in range(NU, 7)] + [('C', 5), ('C', 6)]
    for c in range(1, NU):
        dma_X(at, c)
        if c < 5: dma_C(at, half, c)
    p.extend(mix(P(st[kq:]), at, 0.0, 0.9))
    parts = [[] for _ in range(7)]
    if opt('restup', 1): p.extend(rest)
    else: interleave(parts, rest, 0, min(4, opt('d0at', 2)) if NU > 3 else 4)
    if opt('tlb0', 0):
        for s_ in ((SG, SWD, SPHI) if half == 0 else (SU, SWO, SOUT)):
            p.e(f'buffer_load_dword v43, off, {srd(s_)}, 0'); p[-1].defs = []
        if half == 0:
            p.e(f'v_min_u32 v46, 5, v{vLANE}'); p.e(f'v_mul_u32_u24 v46, {13 * 148}, v46'); p.e(f'v_min_u32 v46, {63 * 148}, v46'); p.e(f'v_add_u32 v46, {(HB >> 10) + 144}, v46'); p.e('v_lshlrev_b32 v46, 10, v46')
            p.e(f'buffer_load_dword v43, v46, {srd(SWS)}, 0 offen'); p[-1].defs = []
        else:
            p.e(f's_mov_b32 s{sT1}, 0x1f0000'); p.e(f'buffer_load_dword v43, off, {srd(SWS)}, s{sT1}'); p[-1].defs = []
    if opt('tpos', 6) < 0 and half == 1: p.extend(touch(half, sT5, 34))
    p.e('v_mov_b32 v28, 0'); p.e('v_mov_b32 v29, 0')
    stamp(p, 'setup')
    reg = lambda c, ks: XF + 16 * c + 4 * ks
    AB = [80, 96]
    def rds(c):
        q = P()
        if c == 4:
            for a in range(4): q.e(f'v_add_u32 v{24 + a}, 0x10000, v{24 + a}')
        if c == 5: q.e(f'v_add_u32 v{vTQ}, {hx(CU[5] - CU[0])}, v{vTQ}')
        base = CU[0] if c < 5 else CU[5]
        for ks in range(4):
            q.e(f'ds_read_b128 {vr(reg(c, ks), 4)}, v{24 + ks} offset:{XU(c) & 0xffff}', None, f'X{c}')
            for r in range(2): q.e(f'ds_read_b64_tr_b16 {vr(AB[c & 1] + 4 * ks + 2 * r, 2)}, v{vTQ} offset:{CU[c] - base + ks * 1024 + r * 256}', None, f'C{c}')
        return q
    def drd(c):
        q = P()
        if c == 5: q.e(f'v_add_u32 v{vDU[0]}, {hx(CU[5] - CU[0])}, v{vDU[0]}')
        for r in range(2): q.e(f'ds_read_b64_tr_b16 {vr(CFR + 2 * r, 2)}, v{vDU[0]} offset:{CU[c] - (CU[0] if c < 5 else CU[5]) + r * 256}', None, f'C{c}')
        return q
    p.append(WaitVm(['X0', 'C0'])); p.e('s_barrier'); stamp(p, 'bX0')
    p.extend(rds(0)); p.extend(drd(0))
    nd = 0
    for c in range(7):
        p.append(WaitDs())
        p.append(WaitVm([f'X{c+1}', f'C{c+1}'] if c < 6 else 'D0')); p.e('s_barrier'); stamp(p, f'bX{c+1}')
        mm = [I(f'{MF32} {vr(ACC1, 16)}, {vr(AB[c & 1] + 4 * ks, 4)}, {vr(reg(c, ks), 4)}, {"0" if c == 0 and ks == 0 else vr(ACC1, 16)}') for ks in range(4)]
        sl = [[m] for m in mm]
        sl[0].append(I(f'{MF16} {vr(D1, 4)}, {vr(ASEL, 4)}, {vr(CFR, 4)}, {"0" if c == 0 else vr(D1, 4)}'))
        if c < 6: interleave(sl, rds(c + 1) + drd(c + 1), 0, 4)
        else: sl[3].append(Pseudo('mark'))
        code = P(x for s_ in sl for x in s_)
        for ks in own:
            for k in range(4):
                r = reg(c, ks) + k
                code.e(f'v_dot2c_f32_bf16 v28, s{sONE2}, v{r}'); code.e(f'v_dot2c_f32_bf16 v29, v{r}, v{r}')
        code.extend(parts[c])
        at = P()
        took = 0
        while seq and took < 2:
            k_, c_ = seq.pop(0); took += 1
            (dma_X(at, c_) if k_ == 'X' else dma_C(at, half, c_))
        if (not took or c == 5) and c >= max(nd + 1, opt('d0at', 2)) and nd < 4:
            dma_D(at, half, nd); nd += 1
        if True:
            if c == 5 and half == 0:
                at.append(Group([I(f's_and_b32 s{sT1}, s{sW1K}, 1024'), I(f's_add_u32 m0, s{sT1}, {MISC}'), I(f's_mul_i32 s{sT0}, s{sH}, 1568'),
                    I(f's_add_u32 s{sT0}, s{sT0}, s{sT1}'), I(f'buffer_load_dwordx4 v{vL16}, {srd(SPHI)}, s{sT0} offen lds', 'PHI', 'PHI')]))
            if c == opt('tpos', 6) and half == 1: at.append(Group(touch(half, sT5, 34)))
        if c == 4: at.append(Group(late_loads(half)))
        p.extend(mix(code, at, 0.05, 0.95))
    return nd

def stats_code(half):
    q = P()
    q.e('v_add_f32 v28, v28, v30'); q.e('v_add_f32 v29, v29, v31')
    q.e('v_permlane32_swap_b32 v28, v29')
    q.e('v_add_f32 v28, v28, v29')
    q.e(f'v_mul_f32 v28, {hx(f2u(1 / 448))}, v28')
    q.e('v_mov_b32 v29, v28')
    q.e('v_permlane32_swap_b32 v28, v29')
    q.e('v_fma_f32 v29, -v28, v28, v29')
    q.e('v_max_f32 v29, 0, v29')
    q.e('v_sub_f32 v28, 0, v28')
    q.e('v_cvt_pk_bf16_f32 v30, v28, v29')
    q.e('v_and_b32 v29, 0xffff0000, v30')
    q.e(f'v_add_f32 v29, {hx(f2u(1e-5))}, v29')
    q.e('v_and_b32 v30, 0xffff, v30')
    q.e('v_cvt_pk_bf16_f32 v29, v29, v29')
    q.e(f'v_cmp_gt_u32 vcc, 32, v{vLANE}')
    q.e('v_and_b32 v29, 0xffff0000, v29')
    q.e('v_sqrt_f32 v29, v29')
    q.e(f'v_cndmask_b32 v{BM + 1}, 0, v30, vcc')
    q.e('v_cvt_pk_bf16_f32 v29, v29, v29')
    q.e(f'v_lshl_or_b32 v{BM}, v{BM + 1}, 16, v{BM + 1}')
    q.e('v_and_b32 v29, 0xffff0000, v29')
    q.e('v_rcp_f32 v28, v29')
    q.e(f'v_mul_f32 v{vIR2}, v29, v29')
    if half == 0: q.e(f'v_mul_f32 v{vCR}, {hx(f2u(LOG2E))}, v28')
    else: q.e(f'v_mov_b32 v{vCR}, v29')
    K1 = -2 * math.sqrt(2 / math.pi) * LOG2E
    q.e(f'v_mul_f32 v{vK1}, {hx(f2u(K1))}, v28')
    q.e(f'v_mul_f32 v30, v28, v28')
    q.e(f'v_mul_f32 v{vK2}, {hx(f2u(0.044715))}, v{vK1}')
    q.e(f'v_mul_f32 v{vK2}, v{vK2}, v30')
    return q

def gelu_tile(acc, tmp, soff_code, tok, pk=False):
    q = P()
    if pk:
        T = lambda k: vr(tmp + 2 * k, 2); G = lambda k: vr(acc + 2 * k, 2); Uu = lambda k: vr(acc + 8 + 2 * k, 2)
        KK = vr(vK1, 2)
        for k in range(4): q.e(f'v_pk_mul_f32 {T(k)}, {G(k)}, {G(k)}')
        for k in range(4): q.e(f'v_pk_fma_f32 {T(k)}, {T(k)}, {KK}, {KK} op_sel:[0,1,0] op_sel_hi:[1,1,0]')
        for k in range(4): q.e(f'v_pk_mul_f32 {T(k)}, {T(k)}, {G(k)}')
        for k in range(8): q.e(f'v_exp_f32 v{tmp + k}, v{tmp + k}')
        for k in range(4): q.e(f'v_pk_mul_f32 {Uu(k)}, {G(k)}, {Uu(k)}')
        for k in range(4): q.e(f'v_pk_fma_f32 {T(k)}, {T(k)}, {vr(vIR2, 2)}, {vr(vIR2, 2)} op_sel_hi:[1,0,0]')
        for k in range(8): q.e(f'v_rcp_f32 v{tmp + k}, v{tmp + k}')
        for k in range(4): q.e(f'v_pk_mul_f32 {Uu(k)}, {Uu(k)}, {T(k)}')
    else:
        for h4 in range(0, 8, 4):
            t = [tmp + k for k in range(4)]; g = [acc + h4 + k for k in range(4)]; u = [acc + 8 + h4 + k for k in range(4)]
            for k in range(4): q.e(f'v_mul_f32 v{t[k]}, v{g[k]}, v{g[k]}')
            for k in range(4): q.e(f'v_fma_f32 v{t[k]}, v{t[k]}, v{vK2}, v{vK1}')
            for k in range(4): q.e(f'v_mul_f32 v{t[k]}, v{t[k]}, v{g[k]}')
            for k in range(4): q.e(f'v_exp_f32 v{t[k]}, v{t[k]}')
            for k in range(4): q.e(f'v_mul_f32 v{u[k]}, v{g[k]}, v{u[k]}')
            for k in range(4): q.e(f'v_fma_f32 v{t[k]}, v{t[k]}, v{vIR2}, v{vIR2}')
            for k in range(4): q.e(f'v_rcp_f32 v{t[k]}, v{t[k]}')
            for k in range(4): q.e(f'v_mul_f32 v{u[k]}, v{u[k]}, v{t[k]}')
    for k in range(4): q.e(f'v_cvt_pk_bf16_f32 v{acc + k}, v{acc + 8 + 2 * k}, v{acc + 9 + 2 * k}')
    q.append(Group(list(soff_code) + [I(f'buffer_store_dwordx4 {vr(acc, 4)}, v{vL16}, {srd(SWS)}, s{sT1} offen sc1', tok)]))
    return q

def softmax_pm(Pa, E, s0, scale_r=False, pk=False):
    q = P(); a, b, c, d = s0, s0 + 1, s0 + 2, s0 + 3
    q.e(f'v_max3_f32 v{a}, v{Pa}, v{Pa+1}, v{Pa+2}')
    q.e(f'v_max3_f32 v{b}, -v{Pa}, -v{Pa+1}, -v{Pa+2}')
    q.e(f'v_max3_f32 v{c}, v{Pa+3}, v{Pa+4}, v{Pa+5}')
    q.e(f'v_max3_f32 v{d}, -v{Pa+3}, -v{Pa+4}, -v{Pa+5}')
    for k in range(6, 16, 4):
        q.e(f'v_max3_f32 v{a}, v{a}, v{Pa+k}, v{Pa+k+1}')
        q.e(f'v_max3_f32 v{b}, v{b}, -v{Pa+k}, -v{Pa+k+1}')
        if k + 3 < 16:
            q.e(f'v_max3_f32 v{c}, v{c}, v{Pa+k+2}, v{Pa+k+3}')
            q.e(f'v_max3_f32 v{d}, v{d}, -v{Pa+k+2}, -v{Pa+k+3}')
    q.e(f'v_max_f32 v{a}, v{a}, v{c}')
    q.e(f'v_max_f32 v{b}, v{b}, v{d}')
    q.e(f'v_permlane32_swap_b32 v{a}, v{b}')
    q.e(f'v_max_f32 v{a}, v{a}, v{b}')
    q.e(f'v_mul_f32_e64 v{a}, -v{vCR}, v{a}')
    q.e(f'v_mov_b32 v{b}, v{a}')
    q.e(f'v_permlane32_swap_b32 v{a}, v{b}')
    AB = vr(a, 2); CD = vr(c, 2); CR = vr(vCR - 1, 2)
    if pk:
        for k in range(0, 16, 2):
            q.e(f'v_pk_fma_f32 {vr(E+k,2)}, {vr(Pa+k,2)}, {CR}, {AB} op_sel:[0,1,0] op_sel_hi:[1,1,0]')
            q.e(f'v_pk_fma_f32 {vr(Pa+k,2)}, {vr(Pa+k,2)}, {CR}, {AB} op_sel:[0,1,1] op_sel_hi:[1,1,1] neg_lo:[1,0,0] neg_hi:[1,0,0]')
        for k in range(16):
            q.e(f'v_exp_f32 v{E+k}, v{E+k}'); q.e(f'v_exp_f32 v{Pa+k}, v{Pa+k}')
        e2, f2, g2, h2 = vr(s0, 2), vr(s0 + 2, 2), vr(s0 + 4, 2), vr(s0 + 6, 2)
        q.e(f'v_pk_add_f32 {e2}, {vr(E,2)}, {vr(E+2,2)}'); q.e(f'v_pk_add_f32 {f2}, {vr(Pa,2)}, {vr(Pa+2,2)}')
        q.e(f'v_pk_add_f32 {g2}, {vr(E+12,2)}, {vr(E+14,2)}'); q.e(f'v_pk_add_f32 {h2}, {vr(Pa+12,2)}, {vr(Pa+14,2)}')
        for k in range(4, 12, 2):
            q.e(f'v_pk_add_f32 {e2}, {e2}, {vr(E+k,2)}'); q.e(f'v_pk_add_f32 {f2}, {f2}, {vr(Pa+k,2)}')
        GM = vr(vGM - 1, 2)
        q.e(f'v_pk_fma_f32 {e2}, {g2}, {GM}, {e2} op_sel:[0,1,0]'); q.e(f'v_pk_fma_f32 {f2}, {h2}, {GM}, {f2} op_sel:[0,1,0]')
        q.e(f'v_add_f32 v{a}, v{s0}, v{s0+1}'); q.e(f'v_add_f32 v{b}, v{s0+2}, v{s0+3}')
    else:
        for k in range(16):
            q.e(f'v_fma_f32 v{E+k}, v{Pa+k}, v{vCR}, v{a}')
            q.e(f'v_fma_f32 v{Pa+k}, -v{Pa+k}, v{vCR}, v{b}')
            if k:
                q.e(f'v_exp_f32 v{E+k-1}, v{E+k-1}'); q.e(f'v_exp_f32 v{Pa+k-1}, v{Pa+k-1}')
        q.e(f'v_exp_f32 v{E+15}, v{E+15}'); q.e(f'v_exp_f32 v{Pa+15}, v{Pa+15}')
        q.e(f'v_add_f32 v{a}, v{E}, v{E+1}'); q.e(f'v_add_f32 v{b}, v{Pa}, v{Pa+1}')
        q.e(f'v_add_f32 v{c}, v{E+12}, v{E+13}'); q.e(f'v_add_f32 v{d}, v{Pa+12}, v{Pa+13}')
        for k in range(2, 12):
            q.e(f'v_add_f32 v{a}, v{a}, v{E+k}'); q.e(f'v_add_f32 v{b}, v{b}, v{Pa+k}')
            if k in (2, 3):
                q.e(f'v_add_f32 v{c}, v{c}, v{E+12+k}'); q.e(f'v_add_f32 v{d}, v{d}, v{Pa+12+k}')
        q.e(f'v_fmac_f32 v{a}, v{c}, v{vGM}'); q.e(f'v_fmac_f32 v{b}, v{d}, v{vGM}')
    q.e(f'v_permlane32_swap_b32 v{a}, v{b}')
    q.e(f'v_add_f32 v{a}, v{a}, v{b}')
    if scale_r: q.e(f'v_mul_f32 v{a}, {hx(f2u(LOG2E))}, v{a}')
    q.e(f'v_rcp_f32 v{a}, v{a}')
    if scale_r: q.e(f'v_mul_f32 v{a}, v{a}, v{vCR}')
    q.e(f'v_mov_b32 v{b}, v{a}')
    q.e(f'v_permlane32_swap_b32 v{a}, v{b}')
    q.e(f'v_mul_f32 v{c}, v{a}, v{vGM}'); q.e(f'v_mul_f32 v{d}, v{b}, v{vGM}')
    for k in range(0, 16, 2):
        ra, rb = (a, b) if k < 12 else (c, d)
        if pk:
            S = AB if k < 12 else CD
            q.e(f'v_pk_mul_f32 {vr(E+k,2)}, {vr(E+k,2)}, {S} op_sel_hi:[1,0]')
            q.e(f'v_pk_mul_f32 {vr(Pa+k,2)}, {vr(Pa+k,2)}, {S} op_sel:[0,1] op_sel_hi:[1,1]')
        else:
            q.e(f'v_mul_f32 v{E+k}, v{E+k}, v{ra}'); q.e(f'v_mul_f32 v{E+k+1}, v{E+k+1}, v{ra}')
            q.e(f'v_mul_f32 v{Pa+k}, v{Pa+k}, v{rb}'); q.e(f'v_mul_f32 v{Pa+k+1}, v{Pa+k+1}, v{rb}')
        q.e(f'v_cvt_pk_bf16_f32 v{E + k // 2}, v{E+k}, v{E+k+1}')
        q.e(f'v_cvt_pk_bf16_f32 v{Pa + k // 2}, v{Pa+k}, v{Pa+k+1}')
    return q

vFL16, vFL32 = 23, 22

def hsoff(texts):
    return [I(t) for t in texts] + [I(f's_lshl_b32 s{sT1}, s{sT1}, 10'), I(f's_add_u32 s{sT1}, s{sT1}, s{sHST}')]
def rem_soff(r):
    return hsoff([f's_cmp_gt_u32 s{sJM}, {r}', f's_cselect_b32 s{sT1}, {r}, {r + 4}', f's_mul_i32 s{sT2}, s{sJ}, 7', f's_add_u32 s{sT1}, s{sT1}, s{sT2}'])

def wphi(q, W):
    q.e(f'ds_read_b64_tr_b16 {vr(W, 2)}, v31', None, 'PHI')
    q.e(f'ds_read_b64_tr_b16 {vr(W + 2, 2)}, v31 offset:{8 * 56}', None, 'PHI')
    q.e(f'ds_read_b64_tr_b16 {vr(W + 4, 2)}, v31 offset:{16 * 56}', None, 'PHI')
    q.e(f'ds_read_b64_tr_b16 {vr(W + 6, 2)}, v30 offset:{24 * 56}', None, 'PHI')
def wmask(q, W):
    q.append(Group([I(f'v_cmp_lt_u32 vcc, 31, v{vLANE}'), I(f'v_cndmask_b32 v{W + 6}, 0, v{W + 6}, vcc'), I(f'v_cndmask_b32 v{W + 7}, 0, v{W + 7}, vcc')]))
GDST = [64 + 4 * e for e in range(12)] + [36 + 4 * e for e in range(3)] + [XF + 96]
def gl(e): return Group([I(f'buffer_load_dwordx4 {vr(GDST[e], 4)}, v{vL16}, {srd(SWS)}, s{sT4} offen sc1'), I(f's_add_u32 s{sT4}, s{sT4}, 4096')])

def phase1_main(p, half, nd):
    mf = []
    n2 = 0
    for s in range(7):
        for ks in range(4):
            for t in range(2):
                pre = []
                isq = half == 0 and t == 0
                if ks == 0:
                    if isq: pre.append(I(f'v_add_u32 v{vTQ}, {hx(DU[s] - (DU[s-1] if s else CU[5]))}, v{vTQ}'))
                    elif s == 4 and (half == 0 or t == 0):
                        for a in vTR: pre.append(I(f'v_add_u32 v{a}, {hx(DU[4] - DU[0])}, v{a}'))
                if isq: rd = [(vTQ, ks * 1024 + r * 256, f'D{s}') for r in range(2)]
                else: rd = [(vTR[r], DU[s] - DU[s & 4] + ks * 1536 + (0 if half == 0 else 1 + t) * 32, f'D{s}') for r in range(2)]
                mf.append(dict(acc=ACC2 + 16 * t, xf=4 * s + ks, rd=rd, pre=pre, first=s == 0 and ks == 0))
    n3 = len(mf)
    for s in range(7):
        for ks in range(4):
            for t in range(2):
                pre = [I(f'v_add_u32 v{vTA[t]}, {hx(AU[4])}, v{vTA[t]}')] if ks == 0 and s == 4 else []
                mf.append(dict(acc=ACC3 + 16 * t, xf=4 * s + ks, rd=[(vTA[t], AU[s] - AU[s & 4] + ks * 2048 + r * 512, f'A{s}') for r in range(2)], pre=pre, first=s == 0 and ks == 0))
    NB = len(AFR); D = NB - 1
    def reads(n):
        q = list(mf[n]['pre']); b = AFR[n % NB]
        for r, (a, off, obj) in enumerate(mf[n]['rd']):
            assert 0 <= off < 65536
            q.append(I(f'ds_read_b64_tr_b16 {vr(b + 2 * r, 2)}, v{a} offset:{off}', None, obj))
        return q
    km = next(k for k, x in enumerate(p) if isinstance(x, Pseudo) and x.kind == 'mark')
    p[km:km + 1] = [x for n in range(D) for x in reads(n)]
    slots = []
    for n, m in enumerate(mf):
        acc = m['acc']
        sl = [I(f'{MF32} {vr(acc, 16)}, {vr(AFR[n % NB], 4)}, {vr(XF + 4 * m["xf"], 4)}, {"0" if m["first"] else vr(acc, 16)}')]
        if n + D < len(mf): sl += reads(n + D)
        slots.append(sl)
    def bar(n, tokwait, after, end, dswait=None, name=None):
        q = P()
        if dswait: q.append(WaitDs(dswait))
        if opt('prew', 0) and name.startswith('b2'): stamp(q, 'w' + name)
        if tokwait: q.append(WaitVm(tokwait))
        if opt('prew', 0) and name.startswith('b2'): stamp(q, 'v' + name)
        q.e('s_barrier'); stamp(q, name or f'b{n}')
        if dswait: slots[n].extend(q)
        else: slots[n][1:1] = q
        if after: spread(slots, after, n + 1 + (half if end - n > 3 else 0), end)
    BO = 8 - D - 1
    b2 = lambda s: n2 + 8 * s + BO
    b3 = lambda s: n3 + 8 * s + BO
    def duty(slot, rd, d16, first, pre=()):
        slots[slot].extend(list(pre) + [I(f'ds_read_b64_tr_b16 {vr(CFR + 2 * r, 2)}, v{a} offset:{off}', None, obj) for r, (a, off, obj) in enumerate(rd)])
        slots[slot + 2].insert(1, I(f'{MF16} {vr(d16, 4)}, {vr(ASEL, 4)}, {vr(CFR, 4)}, {"0" if first else vr(d16, 4)}'))
    vCS = 254
    def cs_write(slot, d16s, obj):
        for t, d in enumerate(d16s): slots[slot].append(I(f'ds_write_b32 v{vCS}, v{d} offset:{t * 512}', 'cs', obj))
    def cs_fix(slot, accs, obj):
        for t, acc in enumerate(accs):
            slots[slot + 3 * t].append(I(f'ds_read_b128 {vr(CFR, 4)}, v{vCS + 1} offset:{t * 512}', None, obj))
            q = P()
            q.e(f'v_add_f32 v{CFR}, v{CFR}, v{CFR + 1}'); q.e(f'v_add_f32 v{CFR + 2}, v{CFR + 2}, v{CFR + 3}')
            q.e(f'v_add_f32 v{CFR}, v{CFR}, v{CFR + 2}')
            q.e(f'v_and_b32 v{CFR + 1}, 0xffff0000, v{CFR}')
            q.e(f'v_sub_f32 v{CFR + 1}, v{CFR}, v{CFR + 1}')
            q.e(f'v_and_b32 v{CFR + 2}, 0xffff0000, v{CFR + 1}')
            q.e(f'v_perm_b32 v{ACS}, v{CFR + 1}, v{CFR}, s{sPERM}')
            q.e(f'v_sub_f32 v{CFR + 2}, v{CFR + 1}, v{CFR + 2}')
            q.e(f'v_lshrrev_b32 v{ACS + 1}, 16, v{CFR + 2}')
            slots[slot + 3 * t + 2].extend(q)
            slots[slot + 3 * t + 3].insert(1, I(f'{MF32} {vr(acc, 16)}, {vr(ACS, 4)}, {vr(BM, 4)}, {vr(acc, 16)}'))
    q = P()
    q.e(f'v_lshrrev_b32 v30, 1, v{vL16}')
    q.e(f's_lshr_b32 s{sT1}, s{sW1K}, 1')
    q.e(f's_add_u32 s{sT1}, s{sT1}, {STAT}')
    q.e(f'v_add_u32 v30, s{sT1}, v30')
    q.e(f's_mov_b32 s{sPERM}, 0x07060302')
    q.e(f'v_and_b32 v{vCS + 1}, 31, v{vLANE}')
    q.e(f'v_lshlrev_b32 v{vCS + 1}, 4, v{vCS + 1}')
    q.e(f'v_add_u32 v{vCS + 1}, {CSB + half * 1024}, v{vCS + 1}')
    q.e(f's_lshl_b32 s{sT1}, s{sTT}, 2'); q.e(f'v_add_u32 v{vCS}, s{sT1}, v{vCS + 1}')
    q.e(f'ds_write_b64 v30, v[28:29]', 'cs', 'STAT')
    q.e(f'ds_write_b32 v{vCS}, v{D1}', 'cs', 'CS1')
    q.e(f'v_xor_b32 v30, 2048, v30')
    stamp(p, 'end1')
    slots[0].append(Group(q))
    slots[b2(0) + 1].append(I(f'ds_read_b64 v[30:31], v30', None, 'STAT'))
    interleave(slots, stats_code(half), b2(0) + 3, b2(0) + 7)
    cs_fix(b2(0) + 5, [ACC1], 'CS1')
    E2 = b2(0) + 11
    D2 = [56, 60]; D3 = [8, 12]
    def dslots(n0, s):
        if n0 == n2 and s < 4: return [(1, 3), (12, 14), (16, 18), (21, 23)][s]
        return (n0 + 4, n0 + 6) if s == 0 else ((n0 + BO + 4, n0 + BO + 6) if s == 1 else (n0 + 8 * (s - 1) + BO + 1, n0 + 8 * (s - 1) + BO + 3))
    for s in range(7):
        for t in range(2):
            isq = half == 0 and t == 0
            pre = []
            if isq: pre = [I(f'v_add_u32 v{vDU[0]}, {hx(DU[s] - (DU[s-1] if s else CU[5]))}, v{vDU[0]}')]
            elif s == 4 and (half == 0 or t == 0): pre = [I(f'v_add_u32 v{a}, {hx(DU[4] - DU[0])}, v{a}') for a in vDU[1:]]
            if isq: rd = [(vDU[0], r * 256, f'D{s}') for r in range(2)]
            else: rd = [(vDU[1 + r], DU[s] - DU[s & 4] + (0 if half == 0 else 1 + t) * 32, f'D{s}') for r in range(2)]
            duty(dslots(n2, s)[t], rd, D2[t], s == 0, pre)
            pre = []
            if s == 0: pre = [I(f's_lshl_b32 s{sT3}, s{sTT}, 11'), I(f'v_add_u32 v{vDA[t]}, s{sT3}, v{vTA[t]}')]
            if s == 4: pre = [I(f'v_add_u32 v{vDA[t]}, {hx(AU[4])}, v{vDA[t]}')]
            duty(dslots(n3, s)[t], [(vDA[t], AU[s] - AU[s & 4] + r * 512, f'A{s}') for r in range(2)], D3[t], s == 0, pre)
    cs_write(b2(6) - 1, D2, 'CS2'); cs_fix(b2(6) + 1, [ACC2, ACC2 + 16], 'CS2')
    cs_write(b3(6) - 1, D3, 'CS3')
    E3 = n3 + 7
    q = P()
    q.e(f'v_readfirstlane_b32 s{sTAG}, v44'); q.e(f'v_readfirstlane_b32 s{sTAG+1}, v45')
    q.e(f's_add_u32 s{sTAG}, s{sTAG}, 0x9e3779b9'); q.e(f's_add_u32 s{sTAG+1}, s{sTAG+1}, 0x7f4a7c15')
    q.e('v_mov_b32 v42, 0')
    slots[0].extend(q)
    KB = opt('kb', 4)
    K = V = ACC1
    if half == 0:
        f = P()
        f.e(f'v_bfe_u32 v24, v{vLANE}, 2, 2')
        f.e(f'v_lshrrev_b32 v25, 5, v{vLANE}')
        f.e(f'v_bfe_u32 v26, v{vLANE}, 4, 1')
        f.e(f'v_and_b32 v27, 3, v{vLANE}')
        f.e(f'v_lshl_or_b32 v26, v26, 2, v27')
        f.e(f'v_subrev_u32 v27, 1, v26')
        f.e(f'v_mul_u32_u24 v44, 56, v24')
        f.append(Group([I(f'v_cmp_lt_u32 vcc, 5, v26'), I(f'v_cndmask_b32 v26, v26, v27, vcc')]))
        f.e(f'v_lshl_add_u32 v44, v26, 3, v44')
        f.e(f'v_add_u32 v44, {MISC}, v44')
        f.e(f'v_mul_u32_u24 v45, 224, v25')
        f.e(f'v_add_u32 v45, v44, v45')
        f.e(f'v_and_b32 v24, 31, v{vLANE}')
        f.append(Group([I(f's_lshl_b32 s{sT2}, s{sTT}, 5'), I(f'v_add_u32 v24, s{sT2}, v24')]))
        f.e(f'v_and_b32 v26, 9, v{vLANE}')
        f.e(f'v_bfe_u32 v27, v{vLANE}, 1, 1')
        f.e(f'v_lshl_or_b32 v26, v27, 2, v26')
        f.e(f'v_bfe_u32 v27, v{vLANE}, 2, 1')
        f.e(f'v_lshl_or_b32 v26, v27, 1, v26')
        f.e(f'v_xor_b32 v46, v26, v25')
        f.e(f'v_lshlrev_b32 v47, 7, v24')
        f.e(f'v_add_u32 v47, {TRK}, v47')
        interleave(slots, f, 1, b2(0) + 3)
        W = 48
        f = P()
        for k in range(4): f.e(f'v_mov_b32 v{(30, 31, 28, 29)[k]}, v{44 + k}')
        wphi(f, W); slots[b2(0) + 7].extend(f)
        f = P(); wmask(f, W)
        for k in range(8): f.e(f'v_cvt_pk_bf16_f32 v{K + k}, v{K + 2 * k}, v{K + 2 * k + 1}')
        f.e(f'{MF32} {vr(LOG, 16)}, {vr(W, 4)}, {vr(K, 4)}, 0')
        f.e(f'{MF32} {vr(LOG, 16)}, {vr(W + 4, 4)}, {vr(K + 4, 4)}, {vr(LOG, 16)}')
        f.append(Gap(2))
        f.extend(softmax_pm(LOG, K, 24, True))
        for ft, src in ((0, K), (1, LOG)):
            for i in range(4):
                f.e(f'v_xor_b32 v23, {8 * ft + 2 * i}, v28')
                f.e(f'v_lshl_add_u32 v23, v23, 3, v29')
                f.e(f'ds_write_b64 v23, {vr(src + 2 * i, 2)}', 'tr', 'TRK')
        interleave(slots, f, E2, b2(KB) + 1)
        interleave(slots, gelu_tile(ACC2 + 16, 24, rem_soff(0), 'HR'), E3, n3 + opt('g0end', 18))
        W = 100; Q = ACC2
        f = P(); wphi(f, W)
        for k in range(8): f.e(f'v_cvt_pk_bf16_f32 v{Q + k}, v{Q + 2 * k}, v{Q + 2 * k + 1}')
        wmask(f, W)
        f.e(f'{MF32} {vr(K, 16)}, {vr(W, 4)}, {vr(Q, 4)}, 0')
        f.e(f'{MF32} {vr(K, 16)}, {vr(W + 4, 4)}, {vr(Q + 4, 4)}, {vr(K, 16)}')
        f.append(Gap(2))
        f.extend(softmax_pm(K, Q, 24))
        interleave(slots, f, n3 + opt('g0end', 18), len(slots) - 4)
        q = P(); q.append(WaitVm('HR')); set_flag(q, f's{sFLP}', 28, 0)
        slots[n3 + opt('rf0', 30)].extend(q)
    else:
        f = P()
        f.e(f'v_bfe_u32 v24, v{vLANE}, 2, 2')
        f.e(f'v_lshrrev_b32 v25, 4, v{vLANE}')
        f.e(f'v_lshl_add_u32 v24, v25, 3, v24')
        f.e(f'v_and_b32 v25, 3, v{vLANE}')
        f.e(f'v_and_b32 v26, 9, v24')
        f.e(f'v_bfe_u32 v27, v24, 1, 1')
        f.e(f'v_lshl_or_b32 v26, v27, 2, v26')
        f.append(Group([I(f's_lshl_b32 s{sT2}, s{sTT}, 2'), I(f'v_or_b32 v27, s{sT2}, v25')]))
        f.e(f'v_xor_b32 v26, v26, v27')
        f.e(f'v_lshlrev_b32 v27, 7, v24')
        f.e(f'v_add_u32 v27, {TRK}, v27')
        f.e(f'v_lshl_add_u32 v28, v26, 3, v27')
        f.e(f'v_bfe_u32 v26, v24, 1, 3')
        f.e(f'v_xor_b32 v26, v26, v25')
        f.e(f'v_lshlrev_b32 v27, 6, v24')
        f.e(f'v_add_u32 v27, {TRV}, v27')
        f.e(f'v_lshl_add_u32 v29, v26, 3, v27')
        f.e(f'v_bfe_u32 v24, v{vLANE}, 4, 1')
        f.e(f'v_and_b32 v25, 15, v{vLANE}')
        f.e(f'v_lshl_or_b32 v24, v24, 5, v25')
        f.e(f'v_lshrrev_b32 v25, 5, v{vLANE}')
        f.e(f'v_lshlrev_b32 v26, 3, v25')
        f.e(f'v_lshl_or_b32 v23, v24, 4, v26')
        f.e(f's_lshl_b32 s{sT4}, s{sH}, 4')
        f.e(f's_add_u32 s{sT4}, s{sT4}, s{sRB}')
        f.e(f's_lshl_b32 s{sT4}, s{sT4}, 2')
        f.e(f's_add_u32 s{sT4}, s{sT4}, s{sTT}')
        f.e(f's_lshl_b32 s{sT4}, s{sT4}, 10')
        f.e(f's_add_u32 s{sT4}, s{sT4}, {KVP}')
        f.e(f's_lshl_b32 s{sT5}, s{sRB}, 3')
        f.e(f's_add_u32 s{sT5}, s{sT5}, s{sKVFL}')
        f.e(f'v_and_b32 v24, 31, v{vLANE}')
        f.append(Group([I(f's_lshl_b32 s{sT2}, s{sTT}, 5'), I(f'v_add_u32 v24, s{sT2}, v24')]))
        f.e(f'v_bfe_u32 v26, v{vLANE}, 1, 3')
        f.e(f'v_xor_b32 v26, v26, v25')
        f.e(f'v_lshlrev_b32 v27, 6, v24')
        f.e(f'v_add_u32 v27, {TRV}, v27')
        f.append(Group([I(f'v_cmp_lt_u32 vcc, 31, v{vLANE}'), I(f'v_cndmask_b32 v{V + 12}, v{vCR}, v{V + 12}, vcc')]))
        for k in range(8): f.e(f'v_cvt_pk_bf16_f32 v{V + k}, v{V + 2 * k}, v{V + 2 * k + 1}')
        for i in range(4):
            f.e(f'v_xor_b32 v24, {2 * i}, v26')
            f.e(f'v_lshl_add_u32 v24, v24, 3, v27')
            f.e(f'ds_write_b64 v24, {vr(V + 2 * i, 2)}', 'tr', 'TRV')
        f.e(f'v_xor_b32 v72, 16, v28')
        f.e(f'v_xor_b32 v73, 32, v29'); f.e(f'v_xor_b32 v74, 16, v29'); f.e(f'v_xor_b32 v75, 48, v29')
        interleave(slots, f, b2(0) + 8, b2(KB))
        f = P()
        KA, KB0, KB1, KD = ACC3, ACC3 + 4, ACC3 + 8, ACC3 + 12
        for kk in range(4):
            f.e(f'ds_read_b64_tr_b16 {vr(KA, 2)}, v28 offset:{kk * 4096}', None, 'TRK')
            f.e(f'ds_read_b64_tr_b16 {vr(KA + 2, 2)}, v72 offset:{kk * 4096 + 512}', None, 'TRK')
            f.e(f'ds_read_b64_tr_b16 {vr(KB0, 2)}, v29 offset:{kk * 2048}', None, 'TRV')
            f.e(f'ds_read_b64_tr_b16 {vr(KB0 + 2, 2)}, v74 offset:{kk * 2048 + 256}', None, 'TRV')
            f.e(f'ds_read_b64_tr_b16 {vr(KB1, 2)}, v73 offset:{kk * 2048}', None, 'TRV')
            f.e(f'ds_read_b64_tr_b16 {vr(KB1 + 2, 2)}, v75 offset:{kk * 2048 + 256}', None, 'TRV')
            f.append(Gap(2))
            f.e(f'{MF16} {vr(KD, 4)}, {vr(KA, 4)}, {vr(KB0, 4)}, {"0" if kk == 0 else vr(KD, 4)}')
            f.e(f'{MF16} {vr(KD + 4, 4)}, {vr(KA, 4)}, {vr(KB1, 4)}, {"0" if kk == 0 else vr(KD + 4, 4)}')
        f.append(Gap(2))
        for k in range(4): f.e(f'v_cvt_pk_bf16_f32 v{24 + k}, v{KD + 2 * k}, v{KD + 2 * k + 1}')
        f.e(f'buffer_store_dwordx2 v[24:25], v23, {srd(SWS)}, s{sT4} offen sc1', 'KV')
        f.e(f'buffer_store_dwordx2 v[26:27], v23, {srd(SWS)}, s{sT4} offen offset:256 sc1', 'KV')
        interleave(slots, f, b2(KB) + 1, b2(KB) + 12)
        q = P(); q.append(WaitVm('KV')); set_flag(q, f's{sT5}', 28); stamp(q, 'KVflag')
        slots[b2(KB) + 12 + opt('kvf', 8)].extend(q)
        GE = n3 + opt('g1end', 28); KP = n3 + opt('kp', 42)
        interleave(slots, gelu_tile(ACC2, 24, rem_soff(1), 'HR') + gelu_tile(ACC2 + 16, 24, rem_soff(2), 'HR'), E3, GE)
        f = P()
        f.e(f'v_and_b32 v{vFL16}, 15, v{vLANE}'); f.e(f'v_lshlrev_b32 v{vFL16}, 3, v{vFL16}')
        f.e(f's_lshl_b32 s{sT4}, s{sH}, 16'); f.e(f's_lshl_b32 s{sT2}, s{sTT}, 10')
        f.e(f's_add_u32 s{sT4}, s{sT4}, s{sT2}'); f.e(f's_add_u32 s{sT4}, s{sT4}, {KVP}')
        flag_load(f, 28, vFL16, f's{sKVFL}')
        slots[KP - 6].append(Group(f))
        q = P(); stamp(q, 'prekv'); poll(q, 'kv', 28, vFL16, f's{sKVFL}'); stamp(q, 'kvpoll')
        slots[KP].extend(q)
        q = P(); q.append(WaitVm('HR')); set_flag(q, f's{sFLP}', 24, 128)
        slots[GE + opt('rf1', 8)].extend(q)
        spread(slots, [gl(e) for e in range(12)], KP, len(slots))
    sched2 = [[f'D{k}' for k in range(nd, 4)], ['D4'], ['D5', 'A0'], ['D6', 'A1'], ['A2', 'A3'], ['A4'], ['A5']]
    for s in range(7):
        q = P()
        SO = opt('solo2', 1)
        for x in sched2[s]: (dma_D(q, half, int(x[1]), SO) if x[0] == 'D' else dma_A(q, int(x[1]), half, (1 if s <= KB else 0) if SO else None))
        if s == KB + 2:
            for n in range(3): dma_L(q, n, half, 0)
        bar(b2(s), ([f'D{s+1}', 'PHI'] if s == 0 else f'D{s+1}') if s < 6 else 'A0', q, b2(s + 1), dswait='tr' if s == KB else ('cs' if s in (0, 6) else None), name=f'b2_{s}')
    for s in range(7):
        q = P()
        if s == 0: dma_A(q, 6, half, 0)
        if s == KB + 2 - 7:
            for n in range(3): dma_L(q, n, half, 0)
        for n in (3 + 2 * s, 4 + 2 * s): dma_L(q, n, half, 0)
        bar(b3(s), f'A{s+1}' if s < 6 else None, q, min(b3(s + 1), len(slots)), dswait='cs' if s == 6 else None, name=f'b3_{s}')
    q = P()
    if half == 0: q.e(f'v_and_b32 v{vFL16}, 15, v{vLANE}'); q.e(f'v_lshlrev_b32 v{vFL16}, 3, v{vFL16}')
    q.e(f'v_and_b32 v{vFL32}, 31, v{vLANE}'); q.e(f'v_lshlrev_b32 v{vFL32}, 3, v{vFL32}')
    flag_load(q, 26, vFL32, f's{sFLD}')
    slots[len(slots) - 4].extend(q)
    for k in range(5): slots.append([I('s_nop 0')])
    cs_fix(b3(6) + 1, [ACC3, ACC3 + 16], 'CS3')
    for sl in slots: p.extend(x for x in sl if not (isinstance(x, Ins) and x.text == 's_nop 0' and sl.index(x) == 0))

NBR = 24
BR = [XF + 4 * k for k in range(NBR)]
SS = XF + 100
XR = XF + 108
def bload(k):
    return Group([I(f's_add_u32 s{sT1}, s{sHLD}, {LINES[k] * 4096}'),
                  I(f'buffer_load_dwordx4 {vr(BR[k % NBR], 4)}, v{vL16}, {srd(SWS)}, s{sT1} offen sc1')])

def att_late(half):
    K, Q = ACC1, ACC2
    f = P(); o = P(); o2 = P()
    if half == 0:
        KVF, NUM, PHQ, OP = [72, 76, 88, 92], 48, [80, 84, 64, 68], 72
        o.e(f'v_add_u32 v40, {KVBUF}, v{vL16}')
        for s in range(4): o.e(f'ds_read_b128 {vr(KVF[s], 4)}, v40 offset:{s * 1024}', None, 'KVBUF')
        o.append(Gap(2))
        for s in range(4): o.e(f'{MF32} {vr(NUM, 16)}, {vr(KVF[s], 4)}, {vr(PHQ[s], 4)}, {"0" if s == 0 else vr(NUM, 16)}')
        o2.e(f'v_add_f32 v40, {hx(f2u(1e-6))}, v{NUM + 12}')
        o2.e(f'v_rcp_f32 v40, v40')
        o2.e(f'v_mov_b32 v41, v40')
        o2.e(f'v_permlane32_swap_b32 v40, v41')
        o2.e(f'v_mul_f32 v41, v40, v{vGM}')
        for k in range(16): o2.e(f'v_mul_f32 v{NUM + k}, v{NUM + k}, v{40 if k < 12 else 41}')
        for k in range(8): o2.e(f'v_cvt_pk_bf16_f32 v{OP + k}, v{NUM + 2 * k}, v{NUM + 2 * k + 1}')
        o2.append(Group(hsoff([f's_lshl_b32 s{sT1}, s{sH}, 1', f's_add_u32 s{sT1}, s{sT1}, 112']) +
            [I(f'buffer_store_dwordx4 {vr(OP, 4)}, v{vL16}, {srd(SWS)}, s{sT1} offen sc1', 'O'),
             I(f'buffer_store_dwordx4 {vr(OP + 4, 4)}, v{vL16}, {srd(SWS)}, s{sT1} offen offset:1024 sc1', 'O')]))
    else:
        for k in range(8): f.e(f'v_mov_b32 v{SS + k}, 0')
        for e0 in range(0, 16, 4):
            blk = []
            for e in range(e0, e0 + 4):
                for k in range(4):
                    blk.append(I(f'v_dot2c_f32_bf16 v{SS + 2 * k}, s{sSEL0}, v{GDST[e] + k}'))
                    blk.append(I(f'v_dot2c_f32_bf16 v{SS + 2 * k + 1}, s{sSEL1}, v{GDST[e] + k}'))
            f.append(Group(blk))
        for k in range(4): f.e(f'v_cvt_pk_bf16_f32 v{SS + k}, v{SS + 2 * k}, v{SS + 2 * k + 1}')
        f.append(Group([I(f's_lshl_b32 s{sT2}, s{sTT}, 10'), I(f's_add_u32 s{sT2}, s{sT2}, {KVBUF}'), I(f'v_add_u32 v{SS + 4}, s{sT2}, v{vL16}')]))
        f.e(f'ds_write_b128 v{SS + 4}, {vr(SS, 4)}', 'kvb', 'KVBUF')
    return f, o, o2, 0

NBAR_KV = 0
def phase1_tail(p, half):
    stamp(p, 'endA')
    if opt('tprio', 1) == 2 - half: p.e('s_setprio 1')
    for t in range(2):
        so = hsoff([f's_mul_i32 s{sT1}, s{sJ}, 7', f's_add_u32 s{sT1}, s{sT1}, s{sJM}', f's_add_u32 s{sT1}, s{sT1}, {2 * half + t}'])
        code = gelu_tile(ACC3 + 16 * t, 112, so, 'HA', pk=True)
        if half == 1 and t == 1: code = mix(code, [gl(e) for e in range(12, 16)], 0.0, 0.6)
        p.extend(code)
    stamp(p, 'gelu')
    poll(p, f'R{half}', 26, vFL32, f's{sFLD}')
    stamp(p, 'Rpoll')
    NR1 = 0
    p.e(f's_cmp_ge_u32 s{sI}, 28')
    p.e(f's_cbranch_scc1 L_exit{half}')
    q = P(); q.append(Reset()); q.e(f'L_exit{half}:')
    q.e('s_waitcnt vmcnt(0) lgkmcnt(0)'); q.e('s_nop 7'); set_flag(q, f's{sFLP}', 24, 256 + 128 * half)
    f, o, o2, _ = att_late(half)
    q.extend(f); q.append(WaitDs()); q.e('s_barrier'); q.extend(o); q.extend(o2)
    if half == 0: q.e('s_waitcnt vmcnt(0)'); set_flag(q, f's{sFLP}', 24, 512)
    q.e('s_endpgm')
    slow_paths.append(q)
    return NR1

def phase2(p, half, NR1):
    AY, AS = 96, ACC3
    AR = [240, 244, 248, 252]
    vW = [[8, 9, 10], [11, 12, 13]]
    vO = [[14, 15], [16, 17]]
    vOUT = 18
    code = P()
    code.e(f'v_bfe_u32 v24, v{vLANE}, 2, 2')
    code.e(f'v_bfe_u32 v26, v{vLANE}, 4, 1')
    code.e(f'v_and_b32 v27, 2, v24')
    code.e(f'v_xor_b32 v26, v26, v27')
    code.e(f'v_and_b32 v27, 3, v{vLANE}')
    code.e(f'v_lshlrev_b32 v27, 3, v27')
    code.e(f'v_lshl_add_u32 v27, v24, 7, v27')
    code.e(f'v_lshl_add_u32 v27, v26, 5, v27')
    code.e(f'v_lshrrev_b32 v25, 5, v{vLANE}')
    code.e(f'v_lshl_add_u32 v26, v25, 9, v27')
    code.e(f's_lshl_b32 s{sT2}, s{sTT}, 11')
    code.e(f'v_add_u32 v{vW[0][0]}, s{sT2}, v26')
    code.e(f'v_xor_b32 v{vW[1][0]}, 64, v{vW[0][0]}')
    for nt in range(2):
        code.e(f'v_add_u32 v{vW[nt][1]}, 0x10000, v{vW[nt][0]}')
        code.e(f'v_add_u32 v{vW[nt][2]}, 0x20000, v{vW[nt][0]}')
    f, o, o2, _ = att_late(half)
    NR1 = opt('nr1', 8)
    p.extend(mix(P(code + f), [bload(k) for k in range(NR1)]))
    p.append(WaitDs())
    ks = []
    for n in range(36):
        u = LU[n]; isO = n >= 28
        if not isO: rd = [[(vW[nt][u // 8], (u % 8) * U + r * 1024) for r in range(2)] for nt in range(2)]
        else: rd = [[(vO[nt][r], u * U - OW) for r in range(2)] for nt in range(2)]
        ks.append(dict(acc=AS if isO else AY, first=n in (0, 28), rd=rd))
    NB = len(AR); D = NB - 1; BO = 8 - D - 1
    mf = [(k, nt) for k in range(36) for nt in range(2)]
    def reads(n):
        k, nt = mf[n]; b = AR[n % NB]
        return [I(f'ds_read_b64_tr_b16 {vr(b + 2 * r, 2)}, v{a} offset:{off}', None, f'L{k}') for r, (a, off) in enumerate(ks[k]['rd'][nt])]
    if opt('tprio', 1) == 2 - half: p.e('s_setprio 0')
    open_pos = len(p)
    p.append(WaitVm(['L0', 'L1', 'L2', 'L3'])); p.e('s_barrier')
    stamp(p, 'bPopen')
    for n in range(D): p.extend(reads(n))
    slots = []
    for n, (k, nt) in enumerate(mf):
        acc = ks[k]['acc'] + 16 * nt
        sl = [I(f'{MF32} {vr(acc, 16)}, {vr(AR[n % NB], 4)}, {vr(BR[k % NBR], 4)}, {"0" if ks[k]["first"] else vr(acc, 16)}')]
        if n + D < len(mf): sl += reads(n + D)
        slots.append(sl)
    bP = lambda s: 8 * s + BO
    q = P(); q.extend(bload(k) for k in range(NR1, 12)); dma_L(q, 17, half); dma_L(q, 18, half)
    spread(slots, q, 0, 6)
    q = P()
    q.e(f's_lshr_b32 s{sT2}, s{sTT}, 1')
    q.e(f's_mul_i32 s{sT2}, s{sT2}, {28 * 128}')
    q.e(f's_and_b32 s{sT3}, s{sTT}, 1')
    q.append(Group([I(f's_cmp_eq_u32 s{sT3}, 0'), I(f's_cselect_b64 vcc, -1, 0'), I(f'v_cndmask_b32 v27, v27, v26, vcc')]))
    q.e(f's_lshl_b32 s{sT3}, s{sT3}, 11')
    q.e(f's_add_u32 s{sT2}, s{sT2}, s{sT3}')
    q.e(f's_add_u32 s{sT2}, s{sT2}, {OW}')
    q.e(f'v_add_u32 v{vO[0][0]}, s{sT2}, v26')
    q.e(f's_add_u32 s{sT2}, s{sT2}, 1024')
    q.e(f'v_add_u32 v{vO[0][1]}, s{sT2}, v27')
    for r in range(2): q.e(f'v_xor_b32 v{vO[1][r]}, 64, v{vO[0][r]}')
    q.e(f'v_and_b32 v24, 31, v{vLANE}')
    q.e(f's_lshl_b32 s{sT2}, s{sT2K}, 5')
    q.e(f'v_add_u32 v24, s{sT2}, v24')
    q.e(f'v_mul_u32_u24 v24, 896, v24')
    q.e(f'v_lshl_add_u32 v24, v25, 4, v24')
    q.e(f's_lshl_b32 s{sT2}, s{sNG}, 7')
    q.e(f's_lshl_b32 s{sT3}, s{sTT}, 5')
    q.e(f's_add_u32 s{sT2}, s{sT2}, s{sT3}')
    q.e(f'v_add_u32 v{vOUT}, s{sT2}, v24')
    q.e(f's_add_u32 s{sT5}, s{sFLD}, 512')
    slots[0].append(Group(q))
    KVB = 'x'; BS = 0
    AFP = opt(f'afp{half}', (4, -1)[half]); OPOS = opt('opos', 44); A1 = opt('a1', 22)
    qa = P(); qa.append(WaitVm('HA')); set_flag(qa, f's{sFLP}', 28, 256 + 128 * half); stamp(qa, 'Aflag')
    if AFP >= 0: slots[AFP].extend(qa)
    else: p[open_pos:open_pos] = qa
    if o: interleave(slots, o, 1, 4); interleave(slots, o2, 6, 10)
    if half == 0:
        q = P(); q.append(WaitVm('O')); set_flag(q, f's{sFLP}', 24, 512); stamp(q, 'Oflag'); slots[10 + opt('ofl', 8)].extend(q)
    q = P(); flag_load(q, 28, vFL16, f's{sFLA}'); slots[A1 - opt('alead', 4)].extend(q)
    q = P(); stamp(q, 'preApoll'); poll(q, f'A{half}', 28, vFL16, f's{sFLA}'); stamp(q, 'Apoll'); slots[A1].extend(q)
    NA0 = opt('na0', 6)
    slots[A1].extend(bload(k) for k in range(12, 12 + NA0))
    spread(slots, [bload(k) for k in range(12 + NA0, 28)], A1 + 1, opt('aend', 40))
    q = P(); flag_load(q, 26, vFL16, f's{sT5}'); slots[OPOS - 4].extend(q)
    q = P(); stamp(q, 'preOpoll'); poll(q, f'O{half}', 26, vFL16, f's{sT5}'); stamp(q, 'Opoll')
    slots[OPOS].extend(q)
    spread(slots, [bload(k) for k in range(28, 36)], OPOS, OPOS + opt('ospan', 6))
    q = P(); q.e(f'buffer_load_dwordx4 {vr(XR, 4)}, v{vOUT}, {srd(SX)}, 0 offen'); slots[54].extend(q)
    q = P()
    for n in range(19, 36): dma_L(q, n, half)
    for n in range(19, 36):
        if BS and 15 + 4 * BS <= n < 19 + 4 * BS: continue
        slots[bP((n - 15) // 4) + 1 + (n - 15) % 4 * 2].append(q[n - 19])
    def red_addr(q, base, dstw, dstr):
        q.append(Group([I(f's_mul_i32 s{sT2}, s{sTT}, 6144'), I(f's_add_u32 s{sT2}, s{sT2}, {base}'), I(f'v_add_u32 v{dstr}, s{sT2}, v{vL16}')]))
        q.e(f'v_add_u32 v{dstw}, {base}, v{vL16}')
    def red_write(q, acc, own, aw, uid, obj):
        for kq in range(4):
            if kq < 3:
                q.e(f's_cmp_lg_u32 s{sTT}, {kq}'); q.e(f's_cbranch_scc1 L_red{uid}_{kq + 1}')
            for part in range(4):
                if part == kq: continue
                slot = kq if kq < part else kq - 1
                for hh in range(2):
                    q.e(f'ds_write_b128 v{aw}, {vr(acc + 8 * part + 4 * hh, 4)} offset:{part * 6144 + slot * 2048 + hh * 1024}', 'red' if kq == 0 else 'NOTRACK', obj)
            for k in range(0, 8, 2): q.e(f'v_mov_b64 {vr(own + k, 2)}, {vr(acc + 8 * kq + k, 2)}')
            if kq < 3: q.e(f's_branch L_red{uid}_4'); q.e(f'L_red{uid}_{kq + 1}:')
        q.e(f'L_red{uid}_4:')
    YO, SO, YR, SR, G, XU_ = 64, 72, 184, 128, 80, 88
    q = P(); red_addr(q, REDY[half], 24, 25); red_write(q, AY, YO, 24, f'Y{half}', f'REDY{half}'); slots[bP(7) + 1].extend(q)
    for s in range(9):
        q = P()
        if s < 8: q.append(WaitVm([f'L{4 * (s + 1) + i}' for i in range(4)]))
        ds = 'kvb' if s == KVB else ('red' if s == 8 else None)
        if ds: q.append(WaitDs(ds))
        q.e('s_barrier'); stamp(q, f'bP{s}')
        pos = bP(s) if s < 8 else 66
        if ds: slots[pos].extend(q)
        else: slots[pos][1:1] = q
    q = P()
    for src in range(3):
        for hh in range(2): q.e(f'ds_read_b128 {vr(YR + 8 * src + 4 * hh, 4)}, v25 offset:{src * 2048 + hh * 1024}', None, f'REDY{half}')
    red_addr(q, REDS[half], 24, 26)
    q.e(f'v_permlane32_swap_b32 v{XR}, v{XR + 2}')
    q.e(f'v_permlane32_swap_b32 v{XR + 1}, v{XR + 3}')
    for k in range(4):
        q.e(f'v_lshlrev_b32 v{XU_ + 2 * k}, 16, v{XR + k}')
        q.e(f'v_and_b32 v{XU_ + 2 * k + 1}, 0xffff0000, v{XR + k}')
    for k in range(8): q.e(f'v_add_f32 v{YR + 8 + k}, v{YR + 8 + k}, v{YR + 16 + k}')
    for k in range(8): q.e(f'v_add_f32 v{YO + k}, v{YO + k}, v{YR + k}')
    interleave(slots, q, 67, 72)
    for sl in slots: p.extend(sl)
    stamp(p, 'endP')
    pr = lambda b, k: vr(b + 2 * k, 2)
    for k in range(4): p.e(f'v_pk_add_f32 {pr(YO, k)}, {pr(YO, k)}, {pr(YR + 8, k)}')
    for k in range(4): p.e(f'v_pk_mul_f32 {pr(G, k)}, {pr(YO, k)}, s[{sC}:{sC+1}] op_sel_hi:[1,0] neg_lo:[1,0] neg_hi:[1,0]')
    p.append(WaitDs())
    p.e('s_nop 3')
    red_write(p, AS, SO, 24, f'S{half}', f'REDS{half}')
    for k in range(8): p.e(f'v_exp_f32 v{G + k}, v{G + k}')
    for k in range(4): p.e(f'v_pk_add_f32 {pr(G, k)}, {pr(G, k)}, 1.0 op_sel_hi:[1,0]')
    for k in range(8): p.e(f'v_rcp_f32 v{G + k}, v{G + k}')
    for k in range(4): p.e(f'v_pk_mul_f32 {pr(G, k)}, {pr(G, k)}, {pr(YO, k)}')
    p.append(WaitDs())
    p.e('s_barrier')
    stamp(p, 'bS')
    for src in range(3):
        for hh in range(2): p.e(f'ds_read_b128 {vr(SR + 8 * src + 4 * hh, 4)}, v26 offset:{src * 2048 + hh * 1024}', None, f'REDS{half}')
    for k in range(4): p.e(f'v_pk_fma_f32 {pr(XU_, k)}, {pr(SO, k)}, {pr(G, k)}, {pr(XU_, k)}')
    for src in range(3):
        for k in range(4): p.e(f'v_pk_fma_f32 {pr(XU_, k)}, {pr(SR + 8 * src, k)}, {pr(G, k)}, {pr(XU_, k)}')
    for k in range(4): p.e(f'v_cvt_pk_bf16_f32 v{G + k}, v{XU_ + 2 * k}, v{XU_ + 2 * k + 1}')
    p.e(f'v_permlane32_swap_b32 v{G}, v{G + 2}')
    p.e(f'v_permlane32_swap_b32 v{G + 1}, v{G + 3}')
    p.e(f'buffer_store_dwordx4 {vr(G, 4)}, v{vOUT}, {srd(SOUT)}, 0 offen')
    stamp(p, 'end'); dump(p)
    if half == 0:
        p.e(f's_or_b32 s{sT1}, s2, s{sW}')
        p.e(f's_cmp_lg_u32 s{sT1}, 0')
        p.e(f's_cbranch_scc1 L_end')
        set_flag(p, '0', 24)
    p.e('s_endpgm')

def build():
    pro = prologue()
    outs = []; fulls = []
    for half in range(2):
        p = P()
        nd = pass1(p, half); phase1_main(p, half, nd); nr = phase1_tail(p, half); phase2(p, half, nr)
        mark = I(f'L_half{half}:')
        full = finalize(list(pro) + [mark] + list(p)); fulls.append(full)
        outs.append(full[full.index(mark):])
    if not (opt('nobar', 0) or opt('nodma', 0)): check_lds(fulls, RANGES)
    print('dead-def check', all([check_dead(f, (0,)) for f in fulls]))
    assert len({sum(x.op == 's_barrier' for x in f) for f in fulls}) == 1
    pro_f = finalize(list(pro))
    slow = []
    for q in slow_paths: slow += finalize(list(q))
    hdr = open('recurrent_scan__linear_kernel_hedgehog__geglu_ffn__prompt.s.ref').read().split('\n')
    top = [l for l in hdr if l.startswith(';') and '@launch' not in l and 'Override' not in l and 'grid=ceil' not in l]
    s = '\n'.join(top) + '\n; @launch grid=(256,1,1) block=(512,1,1) lds=163840\n'
    s += f'.amdgcn_target "amdgcn-amd-amdhsa--gfx950"\n.text\n.globl {NAME}\n.p2align 8\n.type {NAME},@function\n{NAME}:\n'
    s += text(pro_f) + text(outs[0]) + text(outs[1]) + text(slow)
    s += 'L_end:\n    s_endpgm\nL_codeend:\n'
    s += f'''.section .rodata,"a"
.p2align 6
.amdhsa_kernel {NAME}
  .amdhsa_next_free_vgpr 256
  .amdhsa_next_free_sgpr 96
  .amdhsa_accum_offset 256
  .amdhsa_group_segment_fixed_size 0
  .amdhsa_kernarg_size 88
  .amdhsa_user_sgpr_count 2
  .amdhsa_user_sgpr_kernarg_segment_ptr 1
  .amdhsa_system_sgpr_workgroup_id_x 1
.end_amdhsa_kernel
'''
    return s

if __name__ == '__main__':
    open(sys.argv[1], 'w').write(build())
    if DEBUG: json.dump(STAMPS, open('stamps.json', 'w'))
```

```python
import sys, struct, math, json
sys.path.insert(0, 'work')
from asmlib import *

NAME = 'recurrent_scan__linear_kernel_hedgehog__geglu_ffn__prompt_kernel'
def f2u(x): return struct.unpack('<I', struct.pack('<f', x))[0]
def hx(x): return '0x%08x' % (x & 0xffffffff)
LOG2E = 1.4426950408889634
ARGS = sys.argv[2:]
DEBUG = 'dbg' in ARGS
def opt(name, default):
    for a in ARGS:
        if a.startswith(name + '='): return int(a.split('=')[1])
    return default

EP, KVFL, HFL, KVP, HB = 0x0, 0x1000, 0x10000, 0x40000, 0x200000
FLT = 1024
TBLK = 148 * 1024
WS_SIZE = HB + 64 * TBLK
DBGOFF = 0xC00000
if DEBUG: WS_SIZE = 0xD00000
SX, SQKV, SG, SU, SWD, SWO, SWS, SOUT, SPHI, SREM = 8, 12, 16, 20, 24, 28, 32, 36, 40, 44
def srd(b): return f's[{b}:{b+3}]'
sW, sRB, sH, sJ, sJM, sCH, sW1K, sREML = 48, 49, 50, 51, 52, 53, 54, 55
sTAG = 56
sTT, sT, sXI, sI = 58, 59, 60, 61
sC = 62; sHST = 63
sT0, sT1, sT2, sT3, sT4, sT5 = 64, 65, 66, 67, 68, 69
sONE2, sSEL0, sSEL1 = 70, 71, 72
sHLD, sFLD, sNG, sT2K, sFLA, sFLP, sKVFL, sRDY = 73, 74, 75, 76, 77, 78, 82, 83
sSPIN = 79
sPERM = 83
sT1K = 90
vOR3 = 22
sPC = 80
vLANE, vL16, vGM, vIR2, vCR, vK1, vK2 = 1, 2, 3, 4, 5, 6, 7
vOQ = 8; vOR = [9, 10]; vTQ = 11; vTR = [12, 13]; vDU = [14, 15, 16]
vOA = [17, 18]; vOW2 = 19; vTA = [20, 21]; vDA = [16, 22]
vOX = 31
ACC3, ACC1, ACC2, XF = 32, 64, 80, 128
AFR = [112, 116, 120, 124]
ASEL, ACS, BM, CFR = 240, 244, 246, 250
def vr(b, n=1): return f'v{b}' if n == 1 else f'v[{b}:{b+n-1}]'

U = 8192
XU = lambda p: 2 * p * U
CU = [14 * U, 15 * U, 16 * U, 17 * U, 18 * U, 0, U]
DU = [2 * U, 4 * U, 6 * U, 8 * U, 10 * U, 12 * U, 14 * U]
AU = [0, 2 * U, 4 * U, 6 * U, 8 * U, 10 * U, 12 * U]
TRV, TRK = 16 * U, 17 * U
MISC = 19 * U; CSB = MISC + 2048; STAT = MISC + 4096; KVBUF = MISC + 4096
LINES = [L for L in range(28) if L % 7 in (1, 3, 5)] + [L for L in range(28) if L % 7 in (0, 2, 4, 6)] + list(range(28, 36))
LU = [16, 17, 18, 14, 15, 0, 1, 2, 3, 4, 5, 6, 7, 8, 9, 10, 11, 12, 13,
      16, 17, 18, 14, 15, 0, 1, 2, 3, 4, 5, 6, 7, 8, 9, 10, 11]
OW = 4 * U
REDS, REDY = [4 * U, 15 * U], [0, 12 * U]
LOG = 32
RANGES = {'PHI': (MISC, MISC + 2048), 'STAT': (STAT, STAT + 4096), 'KVBUF': (KVBUF, KVBUF + 4096), 'TRV': (TRV, TRV + U), 'TRK': (TRK, TRK + 2 * U),
          'CS1': (CSB, CSB + 2048), 'CS2': (CSB, CSB + 2048), 'CS3': (CSB, CSB + 2048)}
for h_ in range(2):
    RANGES[f'REDS{h_}'] = (REDS[h_], REDS[h_] + 3 * U); RANGES[f'REDY{h_}'] = (REDY[h_], REDY[h_] + 3 * U)
for c in range(7):
    RANGES[f'X{c}'] = (XU(c), XU(c) + 2 * U); RANGES[f'C{c}'] = (CU[c], CU[c] + U)
    RANGES[f'D{c}'] = (DU[c], DU[c] + 2 * U); RANGES[f'A{c}'] = (AU[c], AU[c] + 2 * U)
for n in range(36): RANGES[f'L{n}'] = (LU[n] * U, LU[n] * U + U)

MF32 = 'v_mfma_f32_32x32x16_bf16'
MF16 = 'v_mfma_f32_16x16x32_bf16'

class P(list):
    def e(self, t, tok=None, obj=None): self.append(I(t, tok, obj)); return self

STAMPS = {}
DS = [a.split('=')[1] for a in ARGS if a.startswith('dstamp=')]
def stamp(p, name, rt=False):
    if DS and name == DS[0]: p.append(Group([I('s_memrealtime s[88:89]'), I('s_waitcnt lgkmcnt(0)')]))
    if DS and name == 'end':
        u = len(slow_paths)
        p.e('s_cmp_lg_u32 s2, 9'); p.e(f's_cbranch_scc1 L_nods{u}')
        p.e('s_sub_u32 s88, s88, s86'); p.e('s_lshl_b32 s88, s88, 2')
        p.e('s_memrealtime s[86:87]'); p.e('s_waitcnt lgkmcnt(0)'); p.e('s_add_u32 s88, s88, s86')
        p.e(f'L_ds{u}:'); p.e('s_memrealtime s[86:87]'); p.e('s_waitcnt lgkmcnt(0)'); p.e('s_sub_u32 s86, s88, s86'); p.e('s_cmp_gt_i32 s86, 0'); p.e(f's_cbranch_scc1 L_ds{u}')
        p.e(f'L_nods{u}:')
    if not DEBUG: return
    if opt('prew', 0) and name.startswith(('bP', 'b3', 'bX', 'pre')): return
    if opt('light', 0) and name not in ('karg', 'bX0', 'bX7', 'end1', 'b2_0', 'b3_0', 'b2_6', 'endA', 'bPopen', 'bP2', 'bP4', 'bP5', 'endP', 'end', 'rt_end'): return
    k = STAMPS.setdefault(name, len(STAMPS)); assert k < 64
    p.append(Group([I(f'{"s_memrealtime" if rt else "s_memtime"} s[84:85]'), I('s_waitcnt lgkmcnt(0)'), I(f'v_writelane_b32 v0, s84, {k}')]))
def dump(p):
    if not DEBUG: return
    stamp(p, 'rt_end', True)
    p.e(f's_lshl_b32 s84, s2, 3'); p.e(f's_add_u32 s84, s84, s{sW}'); p.e('s_lshl_b32 s84, s84, 8'); p.e(f's_add_u32 s84, s84, {DBGOFF}')
    p.e(f'v_lshlrev_b32 v31, 2, v{vLANE}')
    p.e(f'buffer_store_dword v0, v31, {srd(SWS)}, s84 offen')
    if opt('dbgwg', -1) >= 0:
        p.e(f's_lshl_b32 s84, s2, 3'); p.e(f's_add_u32 s84, s84, s{sW}')
        p.e(f's_cmp_lg_u32 s84, {opt("dbgwg", 0) * 8}')
        p.e(f's_cbranch_scc1 L_nodbg{len(slow_paths)}')
        p.e('s_load_dwordx2 s[90:91], s[0:1], 72'); p.e('v_readlane_b32 s86, v0, 0'); p.e('v_readlane_b32 s87, v0, 1'); p.e('s_waitcnt lgkmcnt(0)')
        p.e('v_subrev_u32 v30, s86, v0'); p.e('v_subrev_u32 v29, s87, v0')
        p.e(f'v_cmp_eq_u32 vcc, {STAMPS["rt_end"]}, v{vLANE}'); p.e('v_cndmask_b32 v30, v30, v29, vcc')
        p.e('global_store_dword v31, v30, s[90:91]')
        p.e(f'L_nodbg{len(slow_paths)}:')

def dma(p, s, voff, pre, m0base, m0const, tok):
    p.append(Group([I(f's_add_u32 m0, s{m0base}, {m0const}')] + [I(t) for t in pre] +
                   [I(f'buffer_load_dwordx4 v{voff}, {srd(s)}, s{sT0} offen lds', tok, tok)]))
def cidx(pos): return f's_bfe_u32 s{sT0}, s{sCH}, {hx((4 << 16) | (4 * pos))}'
def dma_X(p, c):
    dma(p, SX, vOX, [cidx(c), f's_lshl_b32 s{sT0}, s{sT0}, 7'], sW1K, XU(c), f'X{c}')
    dma(p, SX, vOX, [f's_add_u32 s{sT0}, s{sT0}, {64 * 896}'], sW1K, XU(c) + U, f'X{c}')
def dma_C(p, half, c):
    dma(p, SQKV, vOQ, [cidx(c), f's_mul_i32 s{sT0}, s{sT0}, {64 * 2688}', f's_add_u32 s{sT0}, s{sT0}, {896 * (1 + half)}'], sW1K, CU[c], f'C{c}')
def dma_D(p, half, c, solo=False):
    k26 = [cidx(c), f's_mul_i32 s{sT0}, s{sT0}, {64 * 2688}']; k35 = [cidx(c), f's_mul_i32 s{sT0}, s{sT0}, {64 * 3584}']
    if solo:
        if half == 0: return
        dma(p, SQKV, vOQ, k26, sT1K, DU[c], f'D{c}')
        dma(p, SG, vOR3, k35, sT1K, DU[c] + 4096, f'D{c}')
    if half == 0:
        dma(p, SQKV, vOQ, k26, sT1K, DU[c], f'D{c}')
        dma(p, SREM, vOR[0], k35, sREML, DU[c] + 4096, f'D{c}')
    else:
        dma(p, SREM, vOR[0], [] if solo else k35, sREML, DU[c] + 4096, f'D{c}')
        dma(p, SREM, vOR[1], [], sREML, DU[c] + 5120, f'D{c}')
def dma_A(p, pos, half, solo=None):
    k35 = [cidx(pos), f's_mul_i32 s{sT0}, s{sT0}, {64 * 3584}']; up = [f's_add_u32 s{sT0}, s{sT0}, {32 * 3584}']
    if solo is not None and half != solo: return
    for hh in ((0, 1) if solo is not None else (half,)):
        pre = (k35 if hh == 0 or solo is None else []) + (up if hh else [])
        dma(p, SG, vOA[0], pre, sT1K, AU[pos] + 4096 * hh, f'A{pos}')
        dma(p, SU, vOA[1], [], sT1K, AU[pos] + U + 4096 * hh, f'A{pos}')
def dma_L(p, n, half, solo=None):
    L = LINES[n]
    s, row = (SWD, L * 64) if L < 28 else (SWO, (L - 28) * 56)
    if solo is not None and half != solo: return
    for hh in ((0, 1) if solo is not None else (half,)):
        dma(p, s, vOW2, [f's_mov_b32 s{sT0}, {(row + 32 * hh) * 896}'], sT1K, LU[n] * U + 4096 * hh, f'L{n}')
def spread(slots, atoms, start, end):
    n = len(atoms)
    for k, x in enumerate(atoms): slots[start + (k * (end - start)) // n].append(x)
def mix(code, atoms, lead=0.0, tail=1.0):
    total = sum(x.cost for x in code); out = P(); acc = 0; k = 0; n = len(atoms)
    for x in code:
        while k < n and acc >= total * (lead + (tail - lead) * k / n): out.append(atoms[k]); k += 1
        out.append(x); acc += x.cost
    out.extend(atoms[k:])
    return out

slow_paths = []
def flag_load(p, vflag, vaddr, soff):
    p.e(f'buffer_load_dwordx2 {vr(vflag, 2)}, v{vaddr}, {srd(SWS)}, {soff} offen sc1')
def poll(p, uid, vflag, vaddr, soff):
    p.e(f'v_cmp_ne_u64 vcc, s[{sTAG}:{sTAG+1}], {vr(vflag, 2)}')
    p.e(f's_cbranch_vccnz L_slow_{uid}')
    p.e(f'L_res_{uid}:')
    q = P(); q.append(Reset())
    q.e(f'L_slow_{uid}:')
    q.e(f's_mov_b32 s{sSPIN}, 0x40000')
    q.e(f'L_spin_{uid}:')
    flag_load(q, vflag, vaddr, soff)
    q.e('s_waitcnt vmcnt(0)')
    q.e(f'v_cmp_ne_u64 vcc, s[{sTAG}:{sTAG+1}], {vr(vflag, 2)}')
    q.e(f's_cbranch_vccz L_res_{uid}')
    q.e(f's_sleep {opt("sleep", 2)}')
    q.e(f's_sub_u32 s{sSPIN}, s{sSPIN}, 1')
    q.e(f's_cmp_lg_u32 s{sSPIN}, 0')
    q.e(f's_cbranch_scc1 L_spin_{uid}')
    q.e(f's_branch L_res_{uid}')
    slow_paths.append(q)
def set_flag(p, soff, vt, off=0):
    p.append(Group([I(f'v_mov_b32 v{vt}, s{sTAG}'), I(f'v_mov_b32 v{vt+1}, s{sTAG+1}'),
        I(f's_mov_b64 exec, 1'),
        I(f'buffer_store_dwordx2 {vr(vt, 2)}, off, {srd(SWS)}, {soff} offset:{off} sc1'),
        I(f's_mov_b64 exec, -1')]))
def srd_consts(p, b, n):
    p.e(f's_mov_b32 s{b+2}, {n}'); p.e(f's_mov_b32 s{b+3}, 0x20000')

def prologue():
    p = P()
    p.e('s_cmp_ge_u32 s2, 256')
    p.e('s_cbranch_scc1 L_end')
    if DEBUG: p.e('s_memtime s[86:87]'); p.e('s_memrealtime s[88:89]')
    if DS: p.e('s_memrealtime s[86:87]')
    p.e(f's_load_dwordx4 s[{SX}:{SX+3}], s[0:1], 0')
    p.e(f's_getpc_b64 s[{sPC}:{sPC+1}]')
    p.e('L_pcbase:')
    p.e(f's_lshr_b32 s{sI}, s2, 3')
    p.e(f'v_lshrrev_b32 v48, 6, v0')
    p.e(f'v_and_b32 v49, 1, v0')
    p.e(f'v_lshl_or_b32 v49, v48, 1, v49')
    p.e(f's_lshl_b32 s{sT0}, s{sI}, 4')
    p.e(f'v_add_u32 v49, s{sT0}, v49')
    p.e(f'v_lshlrev_b32 v49, 7, v49')
    p.e(f'v_min_u32 v49, (L_codeend - L_pcbase - 4), v49')
    if opt('cpf', 1): p.e(f'global_load_dword v56, v49, s[{sPC}:{sPC+1}]')
    p.e(f'v_readfirstlane_b32 s{sW}, v48')
    p.e(f's_and_b32 s{sXI}, s2, 7')
    p.e(f'v_and_b32 v{vLANE}, 63, v0')
    p.e(f's_and_b32 s{sT0}, s{sXI}, 1')
    p.e(f's_lshl_b32 s{sT0}, s{sT0}, 3')
    p.e(f's_and_b32 s{sT1}, s{sI}, 7')
    p.e(f's_add_u32 s{sRB}, s{sT0}, s{sT1}')
    p.e(f's_lshr_b32 s{sT2}, s{sI}, 3')
    p.e(f's_lshr_b32 s{sT0}, s{sXI}, 1')
    p.e(f's_lshl_b32 s{sT0}, s{sT0}, 2')
    p.e(f's_add_u32 s{sH}, s{sT0}, s{sT2}')
    p.e(f'v_lshrrev_b32 v50, 3, v{vLANE}')
    p.e(f's_lshl_b32 s{sT2}, s{sT2}, 1')
    p.e(f's_add_u32 s{sT1}, s{sT1}, s{sT2}')
    p.e(f'v_lshrrev_b32 v51, 4, v{vLANE}')
    p.e(f's_sub_u32 s{sT2}, s{sT1}, 7')
    p.e(f's_cmp_ge_u32 s{sT1}, 7')
    p.e(f's_cselect_b32 s{sT1}, s{sT2}, s{sT1}')
    if opt('rot', 7) < 7: p.e(f's_and_b32 s{sT1}, s{sT1}, {opt("rot", 7)}')
    p.e(f'v_and_b32 v52, 7, v{vLANE}')
    p.e(f's_lshl_b32 s{sT1}, s{sT1}, 2')
    p.e(f's_mov_b32 s{sT2}, 0x06543210')
    p.e(f's_mov_b32 s{sT3}, 0x00654321')
    p.e(f's_lshr_b64 s[{sT2}:{sT3}], s[{sT2}:{sT3}], s{sT1}')
    p.e(f's_mov_b32 s{sCH}, s{sT2}')
    p.e(f's_lshl_b32 s{sW1K}, s{sW}, 10')
    p.e(f's_lshl_b32 s{sT0}, s{sRB}, 7')
    p.e(f's_lshl_b32 s{sT1}, s{sW}, 3')
    p.e(f's_add_u32 s{sT0}, s{sT0}, s{sT1}')
    p.e(f'v_add_u32 v{vOX}, s{sT0}, v50')
    p.e(f'v_mul_u32_u24 v{vOX}, 896, v{vOX}')
    p.e(f's_and_b32 s{sT1}, s{sW}, 1')
    p.e(f's_lshl_b32 s{sT1}, s{sT1}, 2')
    p.e(f'v_xor_b32 v51, s{sT1}, v51')
    p.e(f'v_xor_b32 v51, v51, v52')
    p.e(f'v_lshl_add_u32 v{vOX}, v51, 4, v{vOX}')
    srd_consts(p, SQKV, 448 * 2688)
    p.e('s_waitcnt lgkmcnt(0)')
    p.e(f's_mov_b32 s{SQKV}, s{SX+2}'); p.e(f's_mov_b32 s{SQKV+1}, s{SX+3}')
    srd_consts(p, SX, 1835008)
    if DEBUG:
        STAMPS['start'] = 0; STAMPS['rt_start'] = 1
        p.e('v_writelane_b32 v0, s86, 0'); p.e('v_writelane_b32 v0, s88, 1')
    stamp(p, 'karg')
    dma_X(p, 0)
    for b, off in ((SG, 40), (SU, 48), (SPHI, 16), (SWO, 24), (SWD, 56), (SOUT, 64), (SWS, 80)):
        p.e(f's_load_dwordx2 s[{b}:{b+1}], s[0:1], {off}')
    p.e(f's_and_b32 s{sTT}, s{sW}, 3')
    p.e(f's_cmp_ge_u32 s{sW}, 4')
    p.e('s_cbranch_scc1 L_half1')
    return p

def setup(half):
    e = P(); f = e; g = e
    f.e(f's_lshl_b32 s{sT1}, s{sTT}, 4')
    f.e(f'v_lshrrev_b32 v53, 2, v{vLANE}')
    f.e(f'v_add_u32 v53, s{sT1}, v53')
    f.e(f'v_mul_u32_u24 v{vOQ}, 2688, v53')
    f.e(f'v_and_b32 v53, 3, v{vLANE}')
    f.e(f'v_lshlrev_b32 v53, 4, v53')
    f.e(f'v_min_u32 v53, 40, v53')
    f.e(f's_mul_i32 s{sT1}, s{sH}, 56')
    f.e(f'v_add3_u32 v{vOQ}, v{vOQ}, v53, s{sT1}')
    f.e(f'v_and_b32 v53, 31, v{vLANE}')
    f.e(f'v_lshrrev_b32 v54, 5, v{vLANE}')
    f.e(f'v_bfe_u32 v49, v{vLANE}, 1, 3')
    f.e(f'v_xor_b32 v49, v49, v54')
    f.e(f'v_lshlrev_b32 v53, 7, v53')
    f.e(f's_lshl_b32 s{sT1}, s{sTT}, 12')
    f.e(f'v_add_u32 v53, s{sT1}, v53')
    f.e(f's_mov_b32 s{sONE2}, 0x3f803f80')
    for ks in range(4):
        f.e(f'v_xor_b32 v{24 + ks}, {2 * ks}, v49')
        f.e(f'v_lshl_add_u32 v{24 + ks}, v{24 + ks}, 4, v53')
    g.e(f'v_bfe_u32 v39, v{vLANE}, 4, 1')
    g.e(f'v_bfe_u32 v36, v{vLANE}, 2, 2')
    g.e(f'v_lshrrev_b32 v37, 5, v{vLANE}')
    g.e(f'v_and_b32 v38, 3, v{vLANE}')
    g.e(f'v_lshl_add_u32 v37, v37, 3, v36')
    g.e(f'v_lshlrev_b32 v{vTQ}, 6, v37')
    g.e(f'v_lshl_add_u32 v{vTQ}, v39, 5, v{vTQ}')
    g.e(f'v_lshl_add_u32 v{vTQ}, v38, 3, v{vTQ}')
    g.e(f'v_add_u32 v{vTQ}, {CU[0] + half * 4096}, v{vTQ}')
    g.e(f's_lshl_b32 s{sT1}, s{sTT}, 10')
    g.e(f'v_add_u32 v{vDU[0]}, s{sT1}, v{vTQ}')
    g.e(f'v_lshrrev_b32 v35, 2, v{vLANE}')
    g.e(f'v_xor_b32 v35, v35, v39')
    g.e(f'v_and_b32 v35, 1, v35')
    g.e(f'v_cmp_eq_u32 vcc, 0, v35')
    g.e(f'v_mov_b32 v35, s{sONE2}')
    g.e(f's_nop 0')
    g.e(f'v_cndmask_b32 v{ASEL}, 0, v35, vcc')
    for k in range(1, 4): g.e(f'v_mov_b32 v{ASEL + k}, v{ASEL}')
    f = P()
    for b, n in ((SG, 448 * 3584), (SU, 448 * 3584), (SPHI, 16 * 1568), (SWO, 448 * 896), (SWD, 1792 * 896), (SOUT, 1835008), (SWS, WS_SIZE)):
        srd_consts(f, b, n)
    f.e(f's_lshl_b32 s{sT1K}, s{sTT}, 10')
    f.e('s_waitcnt lgkmcnt(0)')
    if opt('wsoff', 0): f.append(Group([I(f's_add_u32 s{SWS}, s{SWS}, {opt("wsoff", 0) << 20}'), I(f's_addc_u32 s{SWS+1}, s{SWS+1}, 0')]))
    sl = [0, 1, 3, 2, 4, 5, 7, 6, 9, 8, 10, 11, 13, 12, 14, 15]
    lo = sum(sl[k] << (4 * k) for k in range(8)); hi = sum(sl[8 + k] << (4 * k) for k in range(8))
    f.e(f's_mov_b32 s{sT2}, {hx(lo)}')
    f.e(f's_mov_b32 s{sT3}, {hx(hi)}')
    f.e(f's_lshl_b32 s{sT1}, s{sH}, 2')
    f.e(f's_lshr_b64 s[{sT2}:{sT3}], s[{sT2}:{sT3}], s{sT1}')
    f.e(f's_and_b32 s{sJ}, s{sT2}, 15')
    f.e(f's_and_b32 s{sJM}, s{sJ}, 3')
    if half == 0:
        f.e(f's_mov_b32 s{SREM}, s{SG}'); f.e(f's_mov_b32 s{SREM+1}, s{SG+1}')
        f.e(f's_lshl_b32 s{sREML}, s{sTT}, 10')
        f.e(f's_lshl_b32 s{sT2}, s{sTT}, 6')
        f.e(f's_mov_b32 s{sT1}, 0')
    else:
        f.append(Group([I(f's_cmp_eq_u32 s{sTT}, 0'), I(f's_cselect_b32 s{SREM}, s{SG}, s{SU}'), I(f's_cselect_b32 s{SREM+1}, s{SG+1}, s{SU+1}'),
                        I(f's_cselect_b32 s{sT1}, 0, 4'), I(f's_cselect_b32 s{sT2}, 3, s{sTT}')]))
        f.e(f's_lshl_b32 s{sREML}, s{sTT}, 11')
        f.e(f's_add_u32 s{sREML}, s{sREML}, 4096')
        f.e(f's_lshl_b32 s{sT2}, s{sT2}, 7')
        f.e(f's_sub_u32 s{sT2}, s{sT2}, 128')
    srd_consts(f, SREM, 448 * 3584)
    f.e(f's_mul_i32 s{sT3}, s{sJ}, 224')
    for n in range(1 + 2 * half):
        if n == 1: f.e(f's_add_u32 s{sT2}, s{sT2}, 64')
        if n == 2: f.e(f's_lshl_b32 s{sT2}, s{sTT}, 6'); f.e(f's_mov_b32 s{sT1}, 0')
        f.e(f'v_add_u32 v53, s{sT2}, v{vLANE}')
        f.e(f'v_mul_u32_u24 v54, 683, v53')
        f.e(f'v_lshrrev_b32 v54, 12, v54')
        f.e(f'v_mul_u32_u24 v55, 6, v54')
        f.e(f'v_sub_u32 v55, v53, v55')
        f.e(f'v_xor_b32 v54, s{sT1}, v54')
        f.e(f'v_mul_u32_u24 v{(vOR + [vOR3])[n]}, 3584, v54')
        f.e(f'v_lshrrev_b32 v54, 1, v55')
        f.e(f'v_add_u32 v53, 4, v54')
        f.e(f'v_cmp_gt_u32 vcc, s{sJM}, v54')
        f.e(f'v_and_b32 v55, 1, v55')
        f.e(f'v_cndmask_b32 v54, v53, v54, vcc')
        f.e(f'v_lshl_or_b32 v54, v54, 1, v55')
        f.e(f'v_lshlrev_b32 v54, 4, v54')
        f.e(f'v_add3_u32 v{(vOR + [vOR3])[n]}, v{(vOR + [vOR3])[n]}, v54, s{sT3}')
    g = f
    g.e(f's_lshl_b32 s{sT1}, s{sTT}, 3')
    g.e(f'v_add_u32 v53, s{sT1}, v50')
    g.e(f'v_bfe_u32 v51, v{vLANE}, 4, 1')
    g.e(f'v_lshlrev_b32 v49, 1, v51')
    g.e(f'v_xor_b32 v49, v49, v52')
    g.e(f's_lshl_b32 s{sT2}, s{sJM}, 5')
    g.e(f's_add_u32 s{sT2}, s{sT2}, s{sT3}')
    g.e(f'v_mul_u32_u24 v{vOW2}, 3584, v53')
    g.e(f'v_add_u32 v{vOW2}, s{sT2}, v{vOW2}')
    g.e(f'v_lshl_add_u32 v{vOA[0]}, v49, 4, v{vOW2}')
    g.e(f'v_xor_b32 v49, 4, v49')
    g.e(f'v_lshl_add_u32 v{vOA[1]}, v49, 4, v{vOW2}')
    g.e(f's_mul_i32 s{sT2}, s{sI}, 37')
    g.e(f's_lshr_b32 s{sT2}, s{sT2}, 8')
    g.e(f's_mul_i32 s{sT3}, s{sT2}, 7')
    g.e(f's_sub_u32 s{sNG}, s{sI}, s{sT3}')
    g.e(f's_lshl_b32 s{sT3}, s{sXI}, 2')
    g.e(f's_add_u32 s{sT2}, s{sT2}, s{sT3}')
    g.e(f's_lshl_b32 s{sT2}, s{sT2}, 1')
    g.e(f's_add_u32 s{sT2K}, s{sT2}, {half}')
    g.e(f's_and_b32 s{sT2K}, s{sT2K}, {1 if opt("fakeH", 0) else 63}')
    if opt('fakeW', 0): g.e(f's_mov_b32 s{sNG}, 0')
    g.e(f'v_lshlrev_b32 v49, 2, v51')
    g.e(f'v_xor_b32 v49, v49, v52')
    g.e(f'v_mul_u32_u24 v53, 896, v53')
    g.e(f's_lshl_b32 s{sT2}, s{sNG}, 7')
    g.e(f'v_add_u32 v53, s{sT2}, v53')
    g.e(f'v_lshl_add_u32 v{vOW2}, v49, 4, v53')
    g.e(f'v_lshlrev_b32 v{vL16}, 4, v{vLANE}')
    g.e(f'v_cmp_lt_u32 vcc, 31, v{vLANE}')
    g.e(f'v_mov_b32 v{BM + 2}, 0')
    g.e(f'v_mov_b32 v{BM + 3}, 0')
    g.e(f'v_cndmask_b32 v{vGM}, 0, 1.0, vcc')
    g.e(f's_mov_b32 s{sC}, {hx(f2u(LOG2E))}')
    g.e(f's_mov_b32 s{sSEL0}, 0x00003f80')
    g.e(f's_mov_b32 s{sSEL1}, 0x3f800000')
    g.e(f's_lshl_b32 s{sT}, s{sRB}, 2')
    g.e(f's_add_u32 s{sT}, s{sT}, s{sTT}')
    g.e(f's_mul_i32 s{sHST}, s{sT}, {TBLK}')
    g.e(f's_add_u32 s{sHST}, s{sHST}, {HB}')
    g.e(f's_lshl_b32 s{sFLP}, s{sT}, 10')
    g.e(f's_lshl_b32 s{sT2}, s{sJ}, 3')
    g.e(f's_add_u32 s{sFLP}, s{sFLP}, s{sT2}')
    g.e(f's_add_u32 s{sFLP}, s{sFLP}, {HFL}')
    g.e(f's_mul_i32 s{sHLD}, s{sT2K}, {TBLK}')
    g.e(f's_lshl_b32 s{sT2}, s{sTT}, 10')
    g.e(f's_add_u32 s{sHLD}, s{sHLD}, s{sT2}')
    g.e(f's_add_u32 s{sHLD}, s{sHLD}, {HB}')
    g.e(f's_lshl_b32 s{sFLD}, s{sT2K}, 10')
    g.e(f's_add_u32 s{sFLD}, s{sFLD}, {HFL}')
    g.e(f's_lshr_b32 s{sFLA}, s{sTT}, 1')
    g.e(f's_add_u32 s{sFLA}, s{sFLA}, 2')
    g.e(f's_lshl_b32 s{sFLA}, s{sFLA}, 7')
    g.e(f's_add_u32 s{sFLA}, s{sFLA}, s{sFLD}')
    g.e(f's_lshl_b32 s{sKVFL}, s{sH}, 2')
    g.e(f's_add_u32 s{sKVFL}, s{sKVFL}, s{sTT}')
    g.e(f's_lshl_b32 s{sKVFL}, s{sKVFL}, 7')
    g.e(f's_add_u32 s{sKVFL}, s{sKVFL}, {KVFL}')
    g.e(f's_mov_b32 s{sT2}, {DU[0] + 4096}')
    for rd in range(2):
        g.e(f'v_xor_b32 v49, {rd}, v39')
        g.e(f'v_lshl_add_u32 v49, v49, 2, v37')
        g.e(f'v_mul_u32_u24 v49, 96, v49')
        g.e(f'v_mul_u32_u24 v{vTR[rd]}, 6144, v39')
        g.e(f'v_lshl_add_u32 v49, v38, 3, v49')
        g.e(f'v_add3_u32 v{vTR[rd]}, v{vTR[rd]}, v49, s{sT2}')
    g.e(f'v_lshrrev_b32 v49, 1, v36')
    g.e(f'v_lshl_or_b32 v49, v39, 1, v49')
    g.e(f'v_lshlrev_b32 v37, 7, v37')
    g.e(f'v_lshl_add_u32 v37, v39, 13, v37')
    g.e(f'v_lshl_add_u32 v37, v38, 3, v37')
    for t in range(2):
        g.e(f'v_xor_b32 v{vTA[t]}, {2 * half + t}, v49')
        g.e(f'v_lshl_add_u32 v{vTA[t]}, v{vTA[t]}, 5, v37')
    g.e(f's_mul_i32 s{sT1}, s{sTT}, 1536')
    g.e(f'v_add_u32 v{vDU[1]}, s{sT1}, v{vTR[0]}')
    g.e(f'v_add_u32 v{vDU[2]}, s{sT1}, v{vTR[1]}')
    return e, f

def touch(half, sT, vt, which=(0, 1, 2, 3)):
    g = P()
    g.e(f's_lshl_b32 s{sT}, s2, 2')
    g.e(f's_add_u32 s{sT}, s{sT}, s{sTT}')
    for k, (s, nl) in enumerate([((SG, 13), (SU, 13), (SWD, 13), (SWO, 4))[i_] for i_ in which]):
        g.e(f'v_min_u32 v{vt}, {nl - 1}, v{vLANE}')
        g.e(f'v_lshlrev_b32 v{vt}, 7, v{vt}')
        g.e(f's_mul_i32 s{sT0}, s{sT}, {nl * 128}')
        g.e(f'buffer_load_dword v{vt - 1}, v{vt}, {srd(s)}, s{sT0} offen'); g[-1].defs = []
    return g

def late_loads(half):
    g = P()
    g.e(f'buffer_load_dwordx2 v[44:45], off, {srd(SWS)}, 0 sc1', 'EP')
    if opt('tlb', 1):
        g.e(f's_add_u32 s{sT3}, s{sHST if half == 0 else sHLD}, {144 * 1024}')
        g.e(f'buffer_load_dword v42, off, {srd(SWS)}, s{sT3}'); g[-1].defs = []
        g.e(f's_mul_i32 s{sT3}, s{sT2K}, {32 * 896}')
        g.e(f'buffer_load_dword v42, off, {srd(SOUT)}, s{sT3}')
    return g

D1 = 56
def pass1(p, half):
    own = [2 * half, 2 * half + 1]
    NU = opt('nu', 3)
    st, rest = setup(half)
    kq = next(k for k, x in enumerate(st) if isinstance(x, Ins) and x.text.startswith(f'v_add3_u32 v{vOQ},')) + 1
    p.extend(st[:kq])
    at = P(); dma_C(at, half, 0)
    seq = [(k, c) for c in range(NU, 7) for k in 'XC'] if NU <= 5 else [('X', c) for c in range(NU, 7)] + [('C', 5), ('C', 6)]
    for c in range(1, NU):
        dma_X(at, c)
        if c < 5: dma_C(at, half, c)
    p.extend(mix(P(st[kq:]), at, 0.0, 0.9))
    parts = [[] for _ in range(7)]
    if opt('restup', 1): p.extend(rest)
    else: interleave(parts, rest, 0, min(4, opt('d0at', 2)) if NU > 3 else 4)
    if opt('tlb0', 0):
        for s_ in ((SG, SWD, SPHI) if half == 0 else (SU, SWO, SOUT)):
            p.e(f'buffer_load_dword v43, off, {srd(s_)}, 0'); p[-1].defs = []
        if half == 0:
            p.e(f'v_min_u32 v46, 5, v{vLANE}'); p.e(f'v_mul_u32_u24 v46, {13 * 148}, v46'); p.e(f'v_min_u32 v46, {63 * 148}, v46'); p.e(f'v_add_u32 v46, {(HB >> 10) + 144}, v46'); p.e('v_lshlrev_b32 v46, 10, v46')
            p.e(f'buffer_load_dword v43, v46, {srd(SWS)}, 0 offen'); p[-1].defs = []
        else:
            p.e(f's_mov_b32 s{sT1}, 0x1f0000'); p.e(f'buffer_load_dword v43, off, {srd(SWS)}, s{sT1}'); p[-1].defs = []
    if opt('tx', 0):
        s_, nl = (SX, 14) if half == 0 else (SQKV, 10)
        p.e(f's_lshl_b32 s{sT1}, s2, 2'); p.e(f's_add_u32 s{sT1}, s{sT1}, s{sTT}'); p.e(f's_mul_i32 s{sT1}, s{sT1}, {nl * 128}')
        p.e(f'v_min_u32 v46, {nl - 1}, v{vLANE}'); p.e('v_lshlrev_b32 v46, 7, v46')
        p.e(f'buffer_load_dword v43, v46, {srd(s_)}, s{sT1} offen'); p[-1].defs = []
    p.e('v_mov_b32 v28, 0'); p.e('v_mov_b32 v29, 0')
    stamp(p, 'setup')
    reg = lambda c, ks: XF + 16 * c + 4 * ks
    AB = [80, 96]
    def rds(c):
        q = P()
        if c == 4:
            for a in range(4): q.e(f'v_add_u32 v{24 + a}, 0x10000, v{24 + a}')
        if c == 5: q.e(f'v_add_u32 v{vTQ}, {hx(CU[5] - CU[0])}, v{vTQ}')
        base = CU[0] if c < 5 else CU[5]
        for ks in range(4):
            q.e(f'ds_read_b128 {vr(reg(c, ks), 4)}, v{24 + ks} offset:{XU(c) & 0xffff}', None, f'X{c}')
            for r in range(2): q.e(f'ds_read_b64_tr_b16 {vr(AB[c & 1] + 4 * ks + 2 * r, 2)}, v{vTQ} offset:{CU[c] - base + ks * 1024 + r * 256}', None, f'C{c}')
        return q
    def drd(c):
        q = P()
        if c == 5: q.e(f'v_add_u32 v{vDU[0]}, {hx(CU[5] - CU[0])}, v{vDU[0]}')
        for r in range(2): q.e(f'ds_read_b64_tr_b16 {vr(CFR + 2 * r, 2)}, v{vDU[0]} offset:{CU[c] - (CU[0] if c < 5 else CU[5]) + r * 256}', None, f'C{c}')
        return q
    p.append(WaitVm(['X0', 'C0'])); p.e('s_barrier'); stamp(p, 'bX0')
    p.extend(rds(0)); p.extend(drd(0))
    nd = 0
    for c in range(7):
        p.append(WaitDs())
        p.append(WaitVm([f'X{c+1}', f'C{c+1}'] if c < 6 else 'D0')); p.e('s_barrier'); stamp(p, f'bX{c+1}')
        mm = [I(f'{MF32} {vr(ACC1, 16)}, {vr(AB[c & 1] + 4 * ks, 4)}, {vr(reg(c, ks), 4)}, {"0" if c == 0 and ks == 0 else vr(ACC1, 16)}') for ks in range(4)]
        sl = [[m] for m in mm]
        sl[0].append(I(f'{MF16} {vr(D1, 4)}, {vr(ASEL, 4)}, {vr(CFR, 4)}, {"0" if c == 0 else vr(D1, 4)}'))
        if c < 6: interleave(sl, rds(c + 1) + drd(c + 1), 0, 4)
        else: sl[3].append(Pseudo('mark'))
        code = P(x for s_ in sl for x in s_)
        for ks in own:
            for k in range(4):
                r = reg(c, ks) + k
                code.e(f'v_dot2c_f32_bf16 v28, s{sONE2}, v{r}'); code.e(f'v_dot2c_f32_bf16 v29, v{r}, v{r}')
        code.extend(parts[c])
        at = P()
        took = 0
        while seq and took < 2:
            k_, c_ = seq.pop(0); took += 1
            (dma_X(at, c_) if k_ == 'X' else dma_C(at, half, c_))
        if (not took or c == 5) and c >= max(nd + 1, opt('d0at', 2)) and nd < 4:
            dma_D(at, half, nd); nd += 1
        if True:
            if c == 5 and half == 0:
                at.append(Group([I(f's_and_b32 s{sT1}, s{sW1K}, 1024'), I(f's_add_u32 m0, s{sT1}, {MISC}'), I(f's_mul_i32 s{sT0}, s{sH}, 1568'),
                    I(f's_add_u32 s{sT0}, s{sT0}, s{sT1}'), I(f'buffer_load_dwordx4 v{vL16}, {srd(SPHI)}, s{sT0} offen lds', 'PHI', 'PHI')]))
            if c == opt('tg', 6) and half == 1: at.append(Group(touch(half, sT5, 34, (0, 1))))
            if c == opt('tw', 6) and half == 1: at.append(Group(touch(half, sT5, 34, (2, 3))))
        if c == 4: at.append(Group(late_loads(half)))
        p.extend(mix(code, at, 0.05, 0.95))
    return nd

def stats_code(half):
    q = P()
    q.e('v_add_f32 v28, v28, v30'); q.e('v_add_f32 v29, v29, v31')
    q.e('v_permlane32_swap_b32 v28, v29')
    q.e('v_add_f32 v28, v28, v29')
    q.e(f'v_mul_f32 v28, {hx(f2u(1 / 448))}, v28')
    q.e('v_mov_b32 v29, v28')
    q.e('v_permlane32_swap_b32 v28, v29')
    q.e('v_fma_f32 v29, -v28, v28, v29')
    q.e('v_max_f32 v29, 0, v29')
    q.e('v_sub_f32 v28, 0, v28')
    q.e('v_cvt_pk_bf16_f32 v30, v28, v29')
    q.e('v_and_b32 v29, 0xffff0000, v30')
    q.e(f'v_add_f32 v29, {hx(f2u(1e-5))}, v29')
    q.e('v_and_b32 v30, 0xffff, v30')
    q.e('v_cvt_pk_bf16_f32 v29, v29, v29')
    q.e(f'v_cmp_gt_u32 vcc, 32, v{vLANE}')
    q.e('v_and_b32 v29, 0xffff0000, v29')
    q.e('v_sqrt_f32 v29, v29')
    q.e(f'v_cndmask_b32 v{BM + 1}, 0, v30, vcc')
    q.e('v_cvt_pk_bf16_f32 v29, v29, v29')
    q.e(f'v_lshl_or_b32 v{BM}, v{BM + 1}, 16, v{BM + 1}')
    q.e('v_and_b32 v29, 0xffff0000, v29')
    q.e('v_rcp_f32 v28, v29')
    q.e(f'v_mul_f32 v{vIR2}, v29, v29')
    if half == 0: q.e(f'v_mul_f32 v{vCR}, {hx(f2u(LOG2E))}, v28')
    else: q.e(f'v_mov_b32 v{vCR}, v29')
    K1 = -2 * math.sqrt(2 / math.pi) * LOG2E
    q.e(f'v_mul_f32 v{vK1}, {hx(f2u(K1))}, v28')
    q.e(f'v_mul_f32 v30, v28, v28')
    q.e(f'v_mul_f32 v{vK2}, {hx(f2u(0.044715))}, v{vK1}')
    q.e(f'v_mul_f32 v{vK2}, v{vK2}, v30')
    return q

def gelu_tile(acc, tmp, soff_code, tok, pk=False):
    q = P()
    if pk:
        T = lambda k: vr(tmp + 2 * k, 2); G = lambda k: vr(acc + 2 * k, 2); Uu = lambda k: vr(acc + 8 + 2 * k, 2)
        KK = vr(vK1, 2)
        for k in range(4): q.e(f'v_pk_mul_f32 {T(k)}, {G(k)}, {G(k)}')
        for k in range(4): q.e(f'v_pk_fma_f32 {T(k)}, {T(k)}, {KK}, {KK} op_sel:[0,1,0] op_sel_hi:[1,1,0]')
        for k in range(4): q.e(f'v_pk_mul_f32 {T(k)}, {T(k)}, {G(k)}')
        for k in range(8): q.e(f'v_exp_f32 v{tmp + k}, v{tmp + k}')
        for k in range(4): q.e(f'v_pk_mul_f32 {Uu(k)}, {G(k)}, {Uu(k)}')
        for k in range(4): q.e(f'v_pk_fma_f32 {T(k)}, {T(k)}, {vr(vIR2, 2)}, {vr(vIR2, 2)} op_sel_hi:[1,0,0]')
        for k in range(8): q.e(f'v_rcp_f32 v{tmp + k}, v{tmp + k}')
        for k in range(4): q.e(f'v_pk_mul_f32 {Uu(k)}, {Uu(k)}, {T(k)}')
    else:
        for h4 in range(0, 8, 4):
            t = [tmp + k for k in range(4)]; g = [acc + h4 + k for k in range(4)]; u = [acc + 8 + h4 + k for k in range(4)]
            for k in range(4): q.e(f'v_mul_f32 v{t[k]}, v{g[k]}, v{g[k]}')
            for k in range(4): q.e(f'v_fma_f32 v{t[k]}, v{t[k]}, v{vK2}, v{vK1}')
            for k in range(4): q.e(f'v_mul_f32 v{t[k]}, v{t[k]}, v{g[k]}')
            for k in range(4): q.e(f'v_exp_f32 v{t[k]}, v{t[k]}')
            for k in range(4): q.e(f'v_mul_f32 v{u[k]}, v{g[k]}, v{u[k]}')
            for k in range(4): q.e(f'v_fma_f32 v{t[k]}, v{t[k]}, v{vIR2}, v{vIR2}')
            for k in range(4): q.e(f'v_rcp_f32 v{t[k]}, v{t[k]}')
            for k in range(4): q.e(f'v_mul_f32 v{u[k]}, v{u[k]}, v{t[k]}')
    for k in range(4): q.e(f'v_cvt_pk_bf16_f32 v{acc + k}, v{acc + 8 + 2 * k}, v{acc + 9 + 2 * k}')
    q.append(Group(list(soff_code) + [I(f'buffer_store_dwordx4 {vr(acc, 4)}, v{vL16}, {srd(SWS)}, s{sT1} offen sc1', tok)]))
    return q

def softmax_pm(Pa, E, s0, scale_r=False, pk=False):
    q = P(); a, b, c, d = s0, s0 + 1, s0 + 2, s0 + 3
    q.e(f'v_max3_f32 v{a}, v{Pa}, v{Pa+1}, v{Pa+2}')
    q.e(f'v_max3_f32 v{b}, -v{Pa}, -v{Pa+1}, -v{Pa+2}')
    q.e(f'v_max3_f32 v{c}, v{Pa+3}, v{Pa+4}, v{Pa+5}')
    q.e(f'v_max3_f32 v{d}, -v{Pa+3}, -v{Pa+4}, -v{Pa+5}')
    for k in range(6, 16, 4):
        q.e(f'v_max3_f32 v{a}, v{a}, v{Pa+k}, v{Pa+k+1}')
        q.e(f'v_max3_f32 v{b}, v{b}, -v{Pa+k}, -v{Pa+k+1}')
        if k + 3 < 16:
            q.e(f'v_max3_f32 v{c}, v{c}, v{Pa+k+2}, v{Pa+k+3}')
            q.e(f'v_max3_f32 v{d}, v{d}, -v{Pa+k+2}, -v{Pa+k+3}')
    q.e(f'v_max_f32 v{a}, v{a}, v{c}')
    q.e(f'v_max_f32 v{b}, v{b}, v{d}')
    q.e(f'v_permlane32_swap_b32 v{a}, v{b}')
    q.e(f'v_max_f32 v{a}, v{a}, v{b}')
    q.e(f'v_mul_f32_e64 v{a}, -v{vCR}, v{a}')
    q.e(f'v_mov_b32 v{b}, v{a}')
    q.e(f'v_permlane32_swap_b32 v{a}, v{b}')
    AB = vr(a, 2); CD = vr(c, 2); CR = vr(vCR - 1, 2)
    if pk:
        for k in range(0, 16, 2):
            q.e(f'v_pk_fma_f32 {vr(E+k,2)}, {vr(Pa+k,2)}, {CR}, {AB} op_sel:[0,1,0] op_sel_hi:[1,1,0]')
            q.e(f'v_pk_fma_f32 {vr(Pa+k,2)}, {vr(Pa+k,2)}, {CR}, {AB} op_sel:[0,1,1] op_sel_hi:[1,1,1] neg_lo:[1,0,0] neg_hi:[1,0,0]')
        for k in range(16):
            q.e(f'v_exp_f32 v{E+k}, v{E+k}'); q.e(f'v_exp_f32 v{Pa+k}, v{Pa+k}')
        e2, f2, g2, h2 = vr(s0, 2), vr(s0 + 2, 2), vr(s0 + 4, 2), vr(s0 + 6, 2)
        q.e(f'v_pk_add_f32 {e2}, {vr(E,2)}, {vr(E+2,2)}'); q.e(f'v_pk_add_f32 {f2}, {vr(Pa,2)}, {vr(Pa+2,2)}')
        q.e(f'v_pk_add_f32 {g2}, {vr(E+12,2)}, {vr(E+14,2)}'); q.e(f'v_pk_add_f32 {h2}, {vr(Pa+12,2)}, {vr(Pa+14,2)}')
        for k in range(4, 12, 2):
            q.e(f'v_pk_add_f32 {e2}, {e2}, {vr(E+k,2)}'); q.e(f'v_pk_add_f32 {f2}, {f2}, {vr(Pa+k,2)}')
        GM = vr(vGM - 1, 2)
        q.e(f'v_pk_fma_f32 {e2}, {g2}, {GM}, {e2} op_sel:[0,1,0]'); q.e(f'v_pk_fma_f32 {f2}, {h2}, {GM}, {f2} op_sel:[0,1,0]')
        q.e(f'v_add_f32 v{a}, v{s0}, v{s0+1}'); q.e(f'v_add_f32 v{b}, v{s0+2}, v{s0+3}')
    else:
        for k in range(16):
            q.e(f'v_fma_f32 v{E+k}, v{Pa+k}, v{vCR}, v{a}')
            q.e(f'v_fma_f32 v{Pa+k}, -v{Pa+k}, v{vCR}, v{b}')
            if k:
                q.e(f'v_exp_f32 v{E+k-1}, v{E+k-1}'); q.e(f'v_exp_f32 v{Pa+k-1}, v{Pa+k-1}')
        q.e(f'v_exp_f32 v{E+15}, v{E+15}'); q.e(f'v_exp_f32 v{Pa+15}, v{Pa+15}')
        q.e(f'v_add_f32 v{a}, v{E}, v{E+1}'); q.e(f'v_add_f32 v{b}, v{Pa}, v{Pa+1}')
        q.e(f'v_add_f32 v{c}, v{E+12}, v{E+13}'); q.e(f'v_add_f32 v{d}, v{Pa+12}, v{Pa+13}')
        for k in range(2, 12):
            q.e(f'v_add_f32 v{a}, v{a}, v{E+k}'); q.e(f'v_add_f32 v{b}, v{b}, v{Pa+k}')
            if k in (2, 3):
                q.e(f'v_add_f32 v{c}, v{c}, v{E+12+k}'); q.e(f'v_add_f32 v{d}, v{d}, v{Pa+12+k}')
        q.e(f'v_fmac_f32 v{a}, v{c}, v{vGM}'); q.e(f'v_fmac_f32 v{b}, v{d}, v{vGM}')
    q.e(f'v_permlane32_swap_b32 v{a}, v{b}')
    q.e(f'v_add_f32 v{a}, v{a}, v{b}')
    if scale_r: q.e(f'v_mul_f32 v{a}, {hx(f2u(LOG2E))}, v{a}')
    q.e(f'v_rcp_f32 v{a}, v{a}')
    if scale_r: q.e(f'v_mul_f32 v{a}, v{a}, v{vCR}')
    q.e(f'v_mov_b32 v{b}, v{a}')
    q.e(f'v_permlane32_swap_b32 v{a}, v{b}')
    q.e(f'v_mul_f32 v{c}, v{a}, v{vGM}'); q.e(f'v_mul_f32 v{d}, v{b}, v{vGM}')
    for k in range(0, 16, 2):
        ra, rb = (a, b) if k < 12 else (c, d)
        if pk:
            S = AB if k < 12 else CD
            q.e(f'v_pk_mul_f32 {vr(E+k,2)}, {vr(E+k,2)}, {S} op_sel_hi:[1,0]')
            q.e(f'v_pk_mul_f32 {vr(Pa+k,2)}, {vr(Pa+k,2)}, {S} op_sel:[0,1] op_sel_hi:[1,1]')
        else:
            q.e(f'v_mul_f32 v{E+k}, v{E+k}, v{ra}'); q.e(f'v_mul_f32 v{E+k+1}, v{E+k+1}, v{ra}')
            q.e(f'v_mul_f32 v{Pa+k}, v{Pa+k}, v{rb}'); q.e(f'v_mul_f32 v{Pa+k+1}, v{Pa+k+1}, v{rb}')
        q.e(f'v_cvt_pk_bf16_f32 v{E + k // 2}, v{E+k}, v{E+k+1}')
        q.e(f'v_cvt_pk_bf16_f32 v{Pa + k // 2}, v{Pa+k}, v{Pa+k+1}')
    return q

vFL16, vFL32 = 23, 22

def hsoff(texts):
    return [I(t) for t in texts] + [I(f's_lshl_b32 s{sT1}, s{sT1}, 10'), I(f's_add_u32 s{sT1}, s{sT1}, s{sHST}')]
def rem_soff(r):
    return hsoff([f's_cmp_gt_u32 s{sJM}, {r}', f's_cselect_b32 s{sT1}, {r}, {r + 4}', f's_mul_i32 s{sT2}, s{sJ}, 7', f's_add_u32 s{sT1}, s{sT1}, s{sT2}'])

def wphi(q, W):
    q.e(f'ds_read_b64_tr_b16 {vr(W, 2)}, v31', None, 'PHI')
    q.e(f'ds_read_b64_tr_b16 {vr(W + 2, 2)}, v31 offset:{8 * 56}', None, 'PHI')
    q.e(f'ds_read_b64_tr_b16 {vr(W + 4, 2)}, v31 offset:{16 * 56}', None, 'PHI')
    q.e(f'ds_read_b64_tr_b16 {vr(W + 6, 2)}, v30 offset:{24 * 56}', None, 'PHI')
def wmask(q, W):
    q.append(Group([I(f'v_cmp_lt_u32 vcc, 31, v{vLANE}'), I(f'v_cndmask_b32 v{W + 6}, 0, v{W + 6}, vcc'), I(f'v_cndmask_b32 v{W + 7}, 0, v{W + 7}, vcc')]))
GDST = [64 + 4 * e for e in range(12)] + [36 + 4 * e for e in range(3)] + [XF + 96]
def gl(e): return Group([I(f'buffer_load_dwordx4 {vr(GDST[e], 4)}, v{vL16}, {srd(SWS)}, s{sT4} offen sc1'), I(f's_add_u32 s{sT4}, s{sT4}, 4096')])

def phase1_main(p, half, nd):
    mf = []
    n2 = 0
    for s in range(7):
        for ks in range(4):
            for t in range(2):
                pre = []
                isq = half == 0 and t == 0
                if ks == 0:
                    if isq: pre.append(I(f'v_add_u32 v{vTQ}, {hx(DU[s] - (DU[s-1] if s else CU[5]))}, v{vTQ}'))
                    elif s == 4 and (half == 0 or t == 0):
                        for a in vTR: pre.append(I(f'v_add_u32 v{a}, {hx(DU[4] - DU[0])}, v{a}'))
                if isq: rd = [(vTQ, ks * 1024 + r * 256, f'D{s}') for r in range(2)]
                else: rd = [(vTR[r], DU[s] - DU[s & 4] + ks * 1536 + (0 if half == 0 else 1 + t) * 32, f'D{s}') for r in range(2)]
                mf.append(dict(acc=ACC2 + 16 * t, xf=4 * s + ks, rd=rd, pre=pre, first=s == 0 and ks == 0))
    n3 = len(mf)
    for s in range(7):
        for ks in range(4):
            for t in range(2):
                pre = [I(f'v_add_u32 v{vTA[t]}, {hx(AU[4])}, v{vTA[t]}')] if ks == 0 and s == 4 else []
                mf.append(dict(acc=ACC3 + 16 * t, xf=4 * s + ks, rd=[(vTA[t], AU[s] - AU[s & 4] + ks * 2048 + r * 512, f'A{s}') for r in range(2)], pre=pre, first=s == 0 and ks == 0))
    NB = len(AFR); D = NB - 1
    def reads(n):
        q = list(mf[n]['pre']); b = AFR[n % NB]
        for r, (a, off, obj) in enumerate(mf[n]['rd']):
            assert 0 <= off < 65536
            q.append(I(f'ds_read_b64_tr_b16 {vr(b + 2 * r, 2)}, v{a} offset:{off}', None, obj))
        return q
    km = next(k for k, x in enumerate(p) if isinstance(x, Pseudo) and x.kind == 'mark')
    p[km:km + 1] = [x for n in range(D) for x in reads(n)]
    slots = []
    for n, m in enumerate(mf):
        acc = m['acc']
        sl = [I(f'{MF32} {vr(acc, 16)}, {vr(AFR[n % NB], 4)}, {vr(XF + 4 * m["xf"], 4)}, {"0" if m["first"] else vr(acc, 16)}')]
        if n + D < len(mf): sl += reads(n + D)
        slots.append(sl)
    def bar(n, tokwait, after, end, dswait=None, name=None):
        q = P()
        if dswait: q.append(WaitDs(dswait))
        if opt('prew', 0) and name.startswith('b2'): stamp(q, 'w' + name)
        if tokwait: q.append(WaitVm(tokwait))
        if opt('prew', 0) and name.startswith('b2'): stamp(q, 'v' + name)
        q.e('s_barrier'); stamp(q, name or f'b{n}')
        if dswait: slots[n].extend(q)
        else: slots[n][1:1] = q
        if after: spread(slots, after, n + 1 + (half if end - n > 3 else 0), end)
    BO = 8 - D - 1
    b2 = lambda s: n2 + 8 * s + BO
    b3 = lambda s: n3 + 8 * s + BO
    def duty(slot, rd, d16, first, pre=()):
        slots[slot].extend(list(pre) + [I(f'ds_read_b64_tr_b16 {vr(CFR + 2 * r, 2)}, v{a} offset:{off}', None, obj) for r, (a, off, obj) in enumerate(rd)])
        slots[slot + 2].insert(1, I(f'{MF16} {vr(d16, 4)}, {vr(ASEL, 4)}, {vr(CFR, 4)}, {"0" if first else vr(d16, 4)}'))
    vCS = 254
    def cs_write(slot, d16s, obj):
        for t, d in enumerate(d16s): slots[slot].append(I(f'ds_write_b32 v{vCS}, v{d} offset:{t * 512}', 'cs', obj))
    def cs_fix(slot, accs, obj):
        for t, acc in enumerate(accs):
            slots[slot + 3 * t].append(I(f'ds_read_b128 {vr(CFR, 4)}, v{vCS + 1} offset:{t * 512}', None, obj))
            q = P()
            q.e(f'v_add_f32 v{CFR}, v{CFR}, v{CFR + 1}'); q.e(f'v_add_f32 v{CFR + 2}, v{CFR + 2}, v{CFR + 3}')
            q.e(f'v_add_f32 v{CFR}, v{CFR}, v{CFR + 2}')
            q.e(f'v_and_b32 v{CFR + 1}, 0xffff0000, v{CFR}')
            q.e(f'v_sub_f32 v{CFR + 1}, v{CFR}, v{CFR + 1}')
            q.e(f'v_and_b32 v{CFR + 2}, 0xffff0000, v{CFR + 1}')
            q.e(f'v_perm_b32 v{ACS}, v{CFR + 1}, v{CFR}, s{sPERM}')
            q.e(f'v_sub_f32 v{CFR + 2}, v{CFR + 1}, v{CFR + 2}')
            q.e(f'v_lshrrev_b32 v{ACS + 1}, 16, v{CFR + 2}')
            slots[slot + 3 * t + 2].extend(q)
            slots[slot + 3 * t + 3].insert(1, I(f'{MF32} {vr(acc, 16)}, {vr(ACS, 4)}, {vr(BM, 4)}, {vr(acc, 16)}'))
    q = P()
    q.e(f'v_lshrrev_b32 v30, 1, v{vL16}')
    q.e(f's_lshr_b32 s{sT1}, s{sW1K}, 1')
    q.e(f's_add_u32 s{sT1}, s{sT1}, {STAT}')
    q.e(f'v_add_u32 v30, s{sT1}, v30')
    q.e(f's_mov_b32 s{sPERM}, 0x07060302')
    q.e(f'v_and_b32 v{vCS + 1}, 31, v{vLANE}')
    q.e(f'v_lshlrev_b32 v{vCS + 1}, 4, v{vCS + 1}')
    q.e(f'v_add_u32 v{vCS + 1}, {CSB + half * 1024}, v{vCS + 1}')
    q.e(f's_lshl_b32 s{sT1}, s{sTT}, 2'); q.e(f'v_add_u32 v{vCS}, s{sT1}, v{vCS + 1}')
    q.e(f'ds_write_b64 v30, v[28:29]', 'cs', 'STAT')
    q.e(f'ds_write_b32 v{vCS}, v{D1}', 'cs', 'CS1')
    q.e(f'v_xor_b32 v30, 2048, v30')
    stamp(p, 'end1')
    slots[0].append(Group(q))
    slots[b2(0) + 1].append(I(f'ds_read_b64 v[30:31], v30', None, 'STAT'))
    interleave(slots, stats_code(half), b2(0) + 3, b2(0) + 7)
    cs_fix(b2(0) + 5, [ACC1], 'CS1')
    E2 = b2(0) + 11
    D2 = [56, 60]; D3 = [8, 12]
    def dslots(n0, s):
        if n0 == n2 and s < 4: return [(1, 3), (12, 14), (16, 18), (21, 23)][s]
        return (n0 + 4, n0 + 6) if s == 0 else ((n0 + BO + 4, n0 + BO + 6) if s == 1 else (n0 + 8 * (s - 1) + BO + 1, n0 + 8 * (s - 1) + BO + 3))
    for s in range(7):
        for t in range(2):
            isq = half == 0 and t == 0
            pre = []
            if isq: pre = [I(f'v_add_u32 v{vDU[0]}, {hx(DU[s] - (DU[s-1] if s else CU[5]))}, v{vDU[0]}')]
            elif s == 4 and (half == 0 or t == 0): pre = [I(f'v_add_u32 v{a}, {hx(DU[4] - DU[0])}, v{a}') for a in vDU[1:]]
            if isq: rd = [(vDU[0], r * 256, f'D{s}') for r in range(2)]
            else: rd = [(vDU[1 + r], DU[s] - DU[s & 4] + (0 if half == 0 else 1 + t) * 32, f'D{s}') for r in range(2)]
            duty(dslots(n2, s)[t], rd, D2[t], s == 0, pre)
            pre = []
            if s == 0: pre = [I(f's_lshl_b32 s{sT3}, s{sTT}, 11'), I(f'v_add_u32 v{vDA[t]}, s{sT3}, v{vTA[t]}')]
            if s == 4: pre = [I(f'v_add_u32 v{vDA[t]}, {hx(AU[4])}, v{vDA[t]}')]
            duty(dslots(n3, s)[t], [(vDA[t], AU[s] - AU[s & 4] + r * 512, f'A{s}') for r in range(2)], D3[t], s == 0, pre)
    cs_write(b2(6) - 1, D2, 'CS2'); cs_fix(b2(6) + 1, [ACC2, ACC2 + 16], 'CS2')
    cs_write(b3(6) - 1, D3, 'CS3')
    E3 = n3 + 7
    q = P()
    q.e(f'v_readfirstlane_b32 s{sTAG}, v44'); q.e(f'v_readfirstlane_b32 s{sTAG+1}, v45')
    q.e(f's_add_u32 s{sTAG}, s{sTAG}, 0x9e3779b9'); q.e(f's_add_u32 s{sTAG+1}, s{sTAG+1}, 0x7f4a7c15')
    q.e('v_mov_b32 v42, 0')
    slots[0].extend(q)
    KB = opt('kb', 4)
    K = V = ACC1
    if half == 0:
        f = P()
        f.e(f'v_bfe_u32 v24, v{vLANE}, 2, 2')
        f.e(f'v_lshrrev_b32 v25, 5, v{vLANE}')
        f.e(f'v_bfe_u32 v26, v{vLANE}, 4, 1')
        f.e(f'v_and_b32 v27, 3, v{vLANE}')
        f.e(f'v_lshl_or_b32 v26, v26, 2, v27')
        f.e(f'v_subrev_u32 v27, 1, v26')
        f.e(f'v_mul_u32_u24 v44, 56, v24')
        f.append(Group([I(f'v_cmp_lt_u32 vcc, 5, v26'), I(f'v_cndmask_b32 v26, v26, v27, vcc')]))
        f.e(f'v_lshl_add_u32 v44, v26, 3, v44')
        f.e(f'v_add_u32 v44, {MISC}, v44')
        f.e(f'v_mul_u32_u24 v45, 224, v25')
        f.e(f'v_add_u32 v45, v44, v45')
        f.e(f'v_and_b32 v24, 31, v{vLANE}')
        f.append(Group([I(f's_lshl_b32 s{sT2}, s{sTT}, 5'), I(f'v_add_u32 v24, s{sT2}, v24')]))
        f.e(f'v_and_b32 v26, 9, v{vLANE}')
        f.e(f'v_bfe_u32 v27, v{vLANE}, 1, 1')
        f.e(f'v_lshl_or_b32 v26, v27, 2, v26')
        f.e(f'v_bfe_u32 v27, v{vLANE}, 2, 1')
        f.e(f'v_lshl_or_b32 v26, v27, 1, v26')
        f.e(f'v_xor_b32 v46, v26, v25')
        f.e(f'v_lshlrev_b32 v47, 7, v24')
        f.e(f'v_add_u32 v47, {TRK}, v47')
        interleave(slots, f, 1, b2(0) + 3)
        W = 48
        f = P()
        for k in range(4): f.e(f'v_mov_b32 v{(30, 31, 28, 29)[k]}, v{44 + k}')
        wphi(f, W); slots[b2(0) + 7].extend(f)
        f = P(); wmask(f, W)
        for k in range(8): f.e(f'v_cvt_pk_bf16_f32 v{K + k}, v{K + 2 * k}, v{K + 2 * k + 1}')
        f.e(f'{MF32} {vr(LOG, 16)}, {vr(W, 4)}, {vr(K, 4)}, 0')
        f.e(f'{MF32} {vr(LOG, 16)}, {vr(W + 4, 4)}, {vr(K + 4, 4)}, {vr(LOG, 16)}')
        f.append(Gap(2))
        f.extend(softmax_pm(LOG, K, 24, True))
        for ft, src in ((0, K), (1, LOG)):
            for i in range(4):
                f.e(f'v_xor_b32 v23, {8 * ft + 2 * i}, v28')
                f.e(f'v_lshl_add_u32 v23, v23, 3, v29')
                f.e(f'ds_write_b64 v23, {vr(src + 2 * i, 2)}', 'tr', 'TRK')
        interleave(slots, f, E2, b2(KB) + 1)
        interleave(slots, gelu_tile(ACC2 + 16, 24, rem_soff(0), 'HR'), E3, n3 + opt('g0end', 18))
        W = 100; Q = ACC2
        f = P(); wphi(f, W)
        for k in range(8): f.e(f'v_cvt_pk_bf16_f32 v{Q + k}, v{Q + 2 * k}, v{Q + 2 * k + 1}')
        wmask(f, W)
        f.e(f'{MF32} {vr(K, 16)}, {vr(W, 4)}, {vr(Q, 4)}, 0')
        f.e(f'{MF32} {vr(K, 16)}, {vr(W + 4, 4)}, {vr(Q + 4, 4)}, {vr(K, 16)}')
        f.append(Gap(2))
        f.extend(softmax_pm(K, Q, 24))
        interleave(slots, f, n3 + opt('g0end', 18), len(slots) - 4)
        q = P(); q.append(WaitVm('HR')); set_flag(q, f's{sFLP}', 28, 0)
        slots[n3 + opt('rf0', 30)].extend(q)
    else:
        f = P()
        f.e(f'v_bfe_u32 v24, v{vLANE}, 2, 2')
        f.e(f'v_lshrrev_b32 v25, 4, v{vLANE}')
        f.e(f'v_lshl_add_u32 v24, v25, 3, v24')
        f.e(f'v_and_b32 v25, 3, v{vLANE}')
        f.e(f'v_and_b32 v26, 9, v24')
        f.e(f'v_bfe_u32 v27, v24, 1, 1')
        f.e(f'v_lshl_or_b32 v26, v27, 2, v26')
        f.append(Group([I(f's_lshl_b32 s{sT2}, s{sTT}, 2'), I(f'v_or_b32 v27, s{sT2}, v25')]))
        f.e(f'v_xor_b32 v26, v26, v27')
        f.e(f'v_lshlrev_b32 v27, 7, v24')
        f.e(f'v_add_u32 v27, {TRK}, v27')
        f.e(f'v_lshl_add_u32 v28, v26, 3, v27')
        f.e(f'v_bfe_u32 v26, v24, 1, 3')
        f.e(f'v_xor_b32 v26, v26, v25')
        f.e(f'v_lshlrev_b32 v27, 6, v24')
        f.e(f'v_add_u32 v27, {TRV}, v27')
        f.e(f'v_lshl_add_u32 v29, v26, 3, v27')
        f.e(f'v_bfe_u32 v24, v{vLANE}, 4, 1')
        f.e(f'v_and_b32 v25, 15, v{vLANE}')
        f.e(f'v_lshl_or_b32 v24, v24, 5, v25')
        f.e(f'v_lshrrev_b32 v25, 5, v{vLANE}')
        f.e(f'v_lshlrev_b32 v26, 3, v25')
        f.e(f'v_lshl_or_b32 v23, v24, 4, v26')
        f.e(f's_lshl_b32 s{sT4}, s{sH}, 4')
        f.e(f's_add_u32 s{sT4}, s{sT4}, s{sRB}')
        f.e(f's_lshl_b32 s{sT4}, s{sT4}, 2')
        f.e(f's_add_u32 s{sT4}, s{sT4}, s{sTT}')
        f.e(f's_lshl_b32 s{sT4}, s{sT4}, 10')
        f.e(f's_add_u32 s{sT4}, s{sT4}, {KVP}')
        f.e(f's_lshl_b32 s{sT5}, s{sRB}, 3')
        f.e(f's_add_u32 s{sT5}, s{sT5}, s{sKVFL}')
        f.e(f'v_and_b32 v24, 31, v{vLANE}')
        f.append(Group([I(f's_lshl_b32 s{sT2}, s{sTT}, 5'), I(f'v_add_u32 v24, s{sT2}, v24')]))
        f.e(f'v_bfe_u32 v26, v{vLANE}, 1, 3')
        f.e(f'v_xor_b32 v26, v26, v25')
        f.e(f'v_lshlrev_b32 v27, 6, v24')
        f.e(f'v_add_u32 v27, {TRV}, v27')
        f.append(Group([I(f'v_cmp_lt_u32 vcc, 31, v{vLANE}'), I(f'v_cndmask_b32 v{V + 12}, v{vCR}, v{V + 12}, vcc')]))
        for k in range(8): f.e(f'v_cvt_pk_bf16_f32 v{V + k}, v{V + 2 * k}, v{V + 2 * k + 1}')
        for i in range(4):
            f.e(f'v_xor_b32 v24, {2 * i}, v26')
            f.e(f'v_lshl_add_u32 v24, v24, 3, v27')
            f.e(f'ds_write_b64 v24, {vr(V + 2 * i, 2)}', 'tr', 'TRV')
        f.e(f'v_xor_b32 v72, 16, v28')
        f.e(f'v_xor_b32 v73, 32, v29'); f.e(f'v_xor_b32 v74, 16, v29'); f.e(f'v_xor_b32 v75, 48, v29')
        interleave(slots, f, b2(0) + 8, b2(KB))
        f = P()
        KA, KB0, KB1, KD = ACC3, ACC3 + 4, ACC3 + 8, ACC3 + 12
        for kk in range(4):
            f.e(f'ds_read_b64_tr_b16 {vr(KA, 2)}, v28 offset:{kk * 4096}', None, 'TRK')
            f.e(f'ds_read_b64_tr_b16 {vr(KA + 2, 2)}, v72 offset:{kk * 4096 + 512}', None, 'TRK')
            f.e(f'ds_read_b64_tr_b16 {vr(KB0, 2)}, v29 offset:{kk * 2048}', None, 'TRV')
            f.e(f'ds_read_b64_tr_b16 {vr(KB0 + 2, 2)}, v74 offset:{kk * 2048 + 256}', None, 'TRV')
            f.e(f'ds_read_b64_tr_b16 {vr(KB1, 2)}, v73 offset:{kk * 2048}', None, 'TRV')
            f.e(f'ds_read_b64_tr_b16 {vr(KB1 + 2, 2)}, v75 offset:{kk * 2048 + 256}', None, 'TRV')
            f.append(Gap(2))
            f.e(f'{MF16} {vr(KD, 4)}, {vr(KA, 4)}, {vr(KB0, 4)}, {"0" if kk == 0 else vr(KD, 4)}')
            f.e(f'{MF16} {vr(KD + 4, 4)}, {vr(KA, 4)}, {vr(KB1, 4)}, {"0" if kk == 0 else vr(KD + 4, 4)}')
        f.append(Gap(2))
        for k in range(4): f.e(f'v_cvt_pk_bf16_f32 v{24 + k}, v{KD + 2 * k}, v{KD + 2 * k + 1}')
        f.e(f'buffer_store_dwordx2 v[24:25], v23, {srd(SWS)}, s{sT4} offen sc1', 'KV')
        f.e(f'buffer_store_dwordx2 v[26:27], v23, {srd(SWS)}, s{sT4} offen offset:256 sc1', 'KV')
        interleave(slots, f, b2(KB) + 1, b2(KB) + 12)
        q = P(); q.append(WaitVm('KV')); set_flag(q, f's{sT5}', 28); stamp(q, 'KVflag')
        slots[b2(KB) + 12 + opt('kvf', 8)].extend(q)
        GE = n3 + opt('g1end', 28); KP = n3 + opt('kp', 42)
        interleave(slots, gelu_tile(ACC2, 24, rem_soff(1), 'HR') + gelu_tile(ACC2 + 16, 24, rem_soff(2), 'HR'), E3, GE)
        f = P()
        f.e(f'v_and_b32 v{vFL16}, 15, v{vLANE}'); f.e(f'v_lshlrev_b32 v{vFL16}, 3, v{vFL16}')
        f.e(f's_lshl_b32 s{sT4}, s{sH}, 16'); f.e(f's_lshl_b32 s{sT2}, s{sTT}, 10')
        f.e(f's_add_u32 s{sT4}, s{sT4}, s{sT2}'); f.e(f's_add_u32 s{sT4}, s{sT4}, {KVP}')
        flag_load(f, 28, vFL16, f's{sKVFL}')
        slots[KP - 6].append(Group(f))
        q = P(); stamp(q, 'prekv'); poll(q, 'kv', 28, vFL16, f's{sKVFL}'); stamp(q, 'kvpoll')
        slots[KP].extend(q)
        q = P(); q.append(WaitVm('HR')); set_flag(q, f's{sFLP}', 24, 128)
        slots[GE + opt('rf1', 8)].extend(q)
        spread(slots, [gl(e) for e in range(12)], KP, len(slots))
    sched2 = [[f'D{k}' for k in range(nd, 4)], ['D4'], ['D5', 'A0'], ['D6', 'A1'], ['A2', 'A3'], ['A4'], ['A5']]
    for s in range(7):
        q = P()
        SO = opt('solo2', 1)
        for x in sched2[s]: (dma_D(q, half, int(x[1]), SO) if x[0] == 'D' else dma_A(q, int(x[1]), half, (1 if s <= KB else 0) if SO else None))
        if s + 10 == opt('tw', 6) and half == 0: q.append(Group(touch(half, sT3, 23, (2, 3))))
        if s == KB + 2:
            for n in range(3): dma_L(q, n, half, 0)
        bar(b2(s), ([f'D{s+1}', 'PHI'] if s == 0 else f'D{s+1}') if s < 6 else 'A0', q, b2(s + 1), dswait='tr' if s == KB else ('cs' if s in (0, 6) else None), name=f'b2_{s}')
    for s in range(7):
        q = P()
        if s == 0: dma_A(q, 6, half, 0)
        if s == KB + 2 - 7:
            for n in range(3): dma_L(q, n, half, 0)
        for n in (3 + 2 * s, 4 + 2 * s): dma_L(q, n, half, 0)
        bar(b3(s), f'A{s+1}' if s < 6 else None, q, min(b3(s + 1), len(slots)), dswait='cs' if s == 6 else None, name=f'b3_{s}')
    q = P()
    if half == 0: q.e(f'v_and_b32 v{vFL16}, 15, v{vLANE}'); q.e(f'v_lshlrev_b32 v{vFL16}, 3, v{vFL16}')
    q.e(f'v_and_b32 v{vFL32}, 31, v{vLANE}'); q.e(f'v_lshlrev_b32 v{vFL32}, 3, v{vFL32}')
    flag_load(q, 26, vFL32, f's{sFLD}')
    slots[len(slots) - 4].extend(q)
    for k in range(5): slots.append([I('s_nop 0')])
    cs_fix(b3(6) + 1, [ACC3, ACC3 + 16], 'CS3')
    for sl in slots: p.extend(x for x in sl if not (isinstance(x, Ins) and x.text == 's_nop 0' and sl.index(x) == 0))

NBR = 24
BR = [XF + 4 * k for k in range(NBR)]
SS = XF + 100
XR = XF + 108
def bload(k):
    return Group([I(f's_add_u32 s{sT1}, s{sHLD}, {LINES[k] * 4096}'),
                  I(f'buffer_load_dwordx4 {vr(BR[k % NBR], 4)}, v{vL16}, {srd(SWS)}, s{sT1} offen sc1')])

def att_late(half):
    K, Q = ACC1, ACC2
    f = P(); o = P(); o2 = P()
    if half == 0:
        KVF, NUM, PHQ, OP = [72, 76, 88, 92], 48, [80, 84, 64, 68], 72
        o.e(f'v_add_u32 v40, {KVBUF}, v{vL16}')
        for s in range(4): o.e(f'ds_read_b128 {vr(KVF[s], 4)}, v40 offset:{s * 1024}', None, 'KVBUF')
        o.append(Gap(2))
        for s in range(4): o.e(f'{MF32} {vr(NUM, 16)}, {vr(KVF[s], 4)}, {vr(PHQ[s], 4)}, {"0" if s == 0 else vr(NUM, 16)}')
        o2.e(f'v_add_f32 v40, {hx(f2u(1e-6))}, v{NUM + 12}')
        o2.e(f'v_rcp_f32 v40, v40')
        o2.e(f'v_mov_b32 v41, v40')
        o2.e(f'v_permlane32_swap_b32 v40, v41')
        o2.e(f'v_mul_f32 v41, v40, v{vGM}')
        for k in range(16): o2.e(f'v_mul_f32 v{NUM + k}, v{NUM + k}, v{40 if k < 12 else 41}')
        for k in range(8): o2.e(f'v_cvt_pk_bf16_f32 v{OP + k}, v{NUM + 2 * k}, v{NUM + 2 * k + 1}')
        o2.append(Group(hsoff([f's_lshl_b32 s{sT1}, s{sH}, 1', f's_add_u32 s{sT1}, s{sT1}, 112']) +
            [I(f'buffer_store_dwordx4 {vr(OP, 4)}, v{vL16}, {srd(SWS)}, s{sT1} offen sc1', 'O'),
             I(f'buffer_store_dwordx4 {vr(OP + 4, 4)}, v{vL16}, {srd(SWS)}, s{sT1} offen offset:1024 sc1', 'O')]))
    else:
        for k in range(8): f.e(f'v_mov_b32 v{SS + k}, 0')
        for e0 in range(0, 16, 4):
            blk = []
            for e in range(e0, e0 + 4):
                for k in range(4):
                    blk.append(I(f'v_dot2c_f32_bf16 v{SS + 2 * k}, s{sSEL0}, v{GDST[e] + k}'))
                    blk.append(I(f'v_dot2c_f32_bf16 v{SS + 2 * k + 1}, s{sSEL1}, v{GDST[e] + k}'))
            f.append(Group(blk))
        for k in range(4): f.e(f'v_cvt_pk_bf16_f32 v{SS + k}, v{SS + 2 * k}, v{SS + 2 * k + 1}')
        f.append(Group([I(f's_lshl_b32 s{sT2}, s{sTT}, 10'), I(f's_add_u32 s{sT2}, s{sT2}, {KVBUF}'), I(f'v_add_u32 v{SS + 4}, s{sT2}, v{vL16}')]))
        f.e(f'ds_write_b128 v{SS + 4}, {vr(SS, 4)}', 'kvb', 'KVBUF')
    return f, o, o2, 0

NBAR_KV = 0
def phase1_tail(p, half):
    stamp(p, 'endA')
    if opt('tprio', 1) == 2 - half: p.e('s_setprio 1')
    for t in range(2):
        so = hsoff([f's_mul_i32 s{sT1}, s{sJ}, 7', f's_add_u32 s{sT1}, s{sT1}, s{sJM}', f's_add_u32 s{sT1}, s{sT1}, {2 * half + t}'])
        code = gelu_tile(ACC3 + 16 * t, 112, so, 'HA', pk=True)
        if half == 1 and t == 1: code = mix(code, [gl(e) for e in range(12, 16)], 0.0, 0.6)
        p.extend(code)
    stamp(p, 'gelu')
    poll(p, f'R{half}', 26, vFL32, f's{sFLD}')
    stamp(p, 'Rpoll')
    NR1 = 0
    p.e(f's_cmp_ge_u32 s{sI}, 28')
    p.e(f's_cbranch_scc1 L_exit{half}')
    q = P(); q.append(Reset()); q.e(f'L_exit{half}:')
    q.e('s_waitcnt vmcnt(0) lgkmcnt(0)'); q.e('s_nop 7'); set_flag(q, f's{sFLP}', 24, 256 + 128 * half)
    f, o, o2, _ = att_late(half)
    q.extend(f); q.append(WaitDs()); q.e('s_barrier'); q.extend(o); q.extend(o2)
    if half == 0: q.e('s_waitcnt vmcnt(0)'); set_flag(q, f's{sFLP}', 24, 512)
    q.e('s_endpgm')
    slow_paths.append(q)
    return NR1

def phase2(p, half, NR1):
    AY, AS = 96, ACC3
    AR = [240, 244, 248, 252]
    vW = [[8, 9, 10], [11, 12, 13]]
    vO = [[14, 15], [16, 17]]
    vOUT = 18
    code = P()
    code.e(f'v_bfe_u32 v24, v{vLANE}, 2, 2')
    code.e(f'v_bfe_u32 v26, v{vLANE}, 4, 1')
    code.e(f'v_and_b32 v27, 2, v24')
    code.e(f'v_xor_b32 v26, v26, v27')
    code.e(f'v_and_b32 v27, 3, v{vLANE}')
    code.e(f'v_lshlrev_b32 v27, 3, v27')
    code.e(f'v_lshl_add_u32 v27, v24, 7, v27')
    code.e(f'v_lshl_add_u32 v27, v26, 5, v27')
    code.e(f'v_lshrrev_b32 v25, 5, v{vLANE}')
    code.e(f'v_lshl_add_u32 v26, v25, 9, v27')
    code.e(f's_lshl_b32 s{sT2}, s{sTT}, 11')
    code.e(f'v_add_u32 v{vW[0][0]}, s{sT2}, v26')
    code.e(f'v_xor_b32 v{vW[1][0]}, 64, v{vW[0][0]}')
    for nt in range(2):
        code.e(f'v_add_u32 v{vW[nt][1]}, 0x10000, v{vW[nt][0]}')
        code.e(f'v_add_u32 v{vW[nt][2]}, 0x20000, v{vW[nt][0]}')
    f, o, o2, _ = att_late(half)
    NR1 = opt('nr1', 8)
    p.extend(mix(P(code + f), [bload(k) for k in range(NR1)]))
    p.append(WaitDs())
    ks = []
    for n in range(36):
        u = LU[n]; isO = n >= 28
        if not isO: rd = [[(vW[nt][u // 8], (u % 8) * U + r * 1024) for r in range(2)] for nt in range(2)]
        else: rd = [[(vO[nt][r], u * U - OW) for r in range(2)] for nt in range(2)]
        ks.append(dict(acc=AS if isO else AY, first=n in (0, 28), rd=rd))
    NB = len(AR); D = NB - 1; BO = 8 - D - 1
    mf = [(k, nt) for k in range(36) for nt in range(2)]
    def reads(n):
        k, nt = mf[n]; b = AR[n % NB]
        return [I(f'ds_read_b64_tr_b16 {vr(b + 2 * r, 2)}, v{a} offset:{off}', None, f'L{k}') for r, (a, off) in enumerate(ks[k]['rd'][nt])]
    if opt('tprio', 1) == 2 - half: p.e('s_setprio 0')
    open_pos = len(p)
    p.append(WaitVm(['L0', 'L1', 'L2', 'L3'])); p.e('s_barrier')
    stamp(p, 'bPopen')
    for n in range(D): p.extend(reads(n))
    slots = []
    for n, (k, nt) in enumerate(mf):
        acc = ks[k]['acc'] + 16 * nt
        sl = [I(f'{MF32} {vr(acc, 16)}, {vr(AR[n % NB], 4)}, {vr(BR[k % NBR], 4)}, {"0" if ks[k]["first"] else vr(acc, 16)}')]
        if n + D < len(mf): sl += reads(n + D)
        slots.append(sl)
    bP = lambda s: 8 * s + BO
    q = P(); q.extend(bload(k) for k in range(NR1, 12)); dma_L(q, 17, half); dma_L(q, 18, half)
    spread(slots, q, 0, 6)
    q = P()
    q.e(f's_lshr_b32 s{sT2}, s{sTT}, 1')
    q.e(f's_mul_i32 s{sT2}, s{sT2}, {28 * 128}')
    q.e(f's_and_b32 s{sT3}, s{sTT}, 1')
    q.append(Group([I(f's_cmp_eq_u32 s{sT3}, 0'), I(f's_cselect_b64 vcc, -1, 0'), I(f'v_cndmask_b32 v27, v27, v26, vcc')]))
    q.e(f's_lshl_b32 s{sT3}, s{sT3}, 11')
    q.e(f's_add_u32 s{sT2}, s{sT2}, s{sT3}')
    q.e(f's_add_u32 s{sT2}, s{sT2}, {OW}')
    q.e(f'v_add_u32 v{vO[0][0]}, s{sT2}, v26')
    q.e(f's_add_u32 s{sT2}, s{sT2}, 1024')
    q.e(f'v_add_u32 v{vO[0][1]}, s{sT2}, v27')
    for r in range(2): q.e(f'v_xor_b32 v{vO[1][r]}, 64, v{vO[0][r]}')
    q.e(f'v_and_b32 v24, 31, v{vLANE}')
    q.e(f's_lshl_b32 s{sT2}, s{sT2K}, 5')
    q.e(f'v_add_u32 v24, s{sT2}, v24')
    q.e(f'v_mul_u32_u24 v24, 896, v24')
    q.e(f'v_lshl_add_u32 v24, v25, 4, v24')
    q.e(f's_lshl_b32 s{sT2}, s{sNG}, 7')
    q.e(f's_lshl_b32 s{sT3}, s{sTT}, 5')
    q.e(f's_add_u32 s{sT2}, s{sT2}, s{sT3}')
    q.e(f'v_add_u32 v{vOUT}, s{sT2}, v24')
    q.e(f's_add_u32 s{sT5}, s{sFLD}, 512')
    slots[0].append(Group(q))
    KVB = 'x'; BS = 0
    AFP = opt(f'afp{half}', (4, -1)[half]); OPOS = opt('opos', 44); A1 = opt('a1', 22)
    qa = P(); qa.append(WaitVm('HA')); set_flag(qa, f's{sFLP}', 28, 256 + 128 * half); stamp(qa, 'Aflag')
    if AFP >= 0: slots[AFP].extend(qa)
    else: p[open_pos:open_pos] = qa
    if o: interleave(slots, o, 1, 4); interleave(slots, o2, 6, 10)
    if half == 0:
        q = P(); q.append(WaitVm('O')); set_flag(q, f's{sFLP}', 24, 512); stamp(q, 'Oflag'); slots[10 + opt('ofl', 8)].extend(q)
    q = P(); flag_load(q, 28, vFL16, f's{sFLA}'); slots[A1 - opt('alead', 4)].extend(q)
    q = P(); stamp(q, 'preApoll'); poll(q, f'A{half}', 28, vFL16, f's{sFLA}'); stamp(q, 'Apoll'); slots[A1].extend(q)
    NA0 = opt('na0', 6)
    slots[A1].extend(bload(k) for k in range(12, 12 + NA0))
    spread(slots, [bload(k) for k in range(12 + NA0, 28)], A1 + 1, opt('aend', 40))
    q = P(); flag_load(q, 26, vFL16, f's{sT5}'); slots[OPOS - 4].extend(q)
    q = P(); stamp(q, 'preOpoll'); poll(q, f'O{half}', 26, vFL16, f's{sT5}'); stamp(q, 'Opoll')
    slots[OPOS].extend(q)
    spread(slots, [bload(k) for k in range(28, 36)], OPOS, OPOS + opt('ospan', 6))
    q = P(); q.e(f'buffer_load_dwordx4 {vr(XR, 4)}, v{vOUT}, {srd(SX)}, 0 offen'); slots[54].extend(q)
    q = P()
    for n in range(19, 36): dma_L(q, n, half)
    for n in range(19, 36):
        if BS and 15 + 4 * BS <= n < 19 + 4 * BS: continue
        slots[bP((n - 15) // 4) + 1 + (n - 15) % 4 * 2].append(q[n - 19])
    def red_addr(q, base, dstw, dstr):
        q.append(Group([I(f's_mul_i32 s{sT2}, s{sTT}, 6144'), I(f's_add_u32 s{sT2}, s{sT2}, {base}'), I(f'v_add_u32 v{dstr}, s{sT2}, v{vL16}')]))
        q.e(f'v_add_u32 v{dstw}, {base}, v{vL16}')
    def red_write(q, acc, own, aw, uid, obj):
        for kq in range(4):
            if kq < 3:
                q.e(f's_cmp_lg_u32 s{sTT}, {kq}'); q.e(f's_cbranch_scc1 L_red{uid}_{kq + 1}')
            for part in range(4):
                if part == kq: continue
                slot = kq if kq < part else kq - 1
                for hh in range(2):
                    q.e(f'ds_write_b128 v{aw}, {vr(acc + 8 * part + 4 * hh, 4)} offset:{part * 6144 + slot * 2048 + hh * 1024}', 'red' if kq == 0 else 'NOTRACK', obj)
            for k in range(0, 8, 2): q.e(f'v_mov_b64 {vr(own + k, 2)}, {vr(acc + 8 * kq + k, 2)}')
            if kq < 3: q.e(f's_branch L_red{uid}_4'); q.e(f'L_red{uid}_{kq + 1}:')
        q.e(f'L_red{uid}_4:')
    YO, SO, YR, SR, G, XU_ = 64, 72, 184, 128, 80, 88
    q = P(); red_addr(q, REDY[half], 24, 25); red_write(q, AY, YO, 24, f'Y{half}', f'REDY{half}'); slots[bP(7) + 1].extend(q)
    for s in range(9):
        q = P()
        if s < 8: q.append(WaitVm([f'L{4 * (s + 1) + i}' for i in range(4)]))
        ds = 'kvb' if s == KVB else ('red' if s == 8 else None)
        if ds: q.append(WaitDs(ds))
        q.e('s_barrier'); stamp(q, f'bP{s}')
        pos = bP(s) if s < 8 else 66
        if ds: slots[pos].extend(q)
        else: slots[pos][1:1] = q
    q = P()
    for src in range(3):
        for hh in range(2): q.e(f'ds_read_b128 {vr(YR + 8 * src + 4 * hh, 4)}, v25 offset:{src * 2048 + hh * 1024}', None, f'REDY{half}')
    red_addr(q, REDS[half], 24, 26)
    q.e(f'v_permlane32_swap_b32 v{XR}, v{XR + 2}')
    q.e(f'v_permlane32_swap_b32 v{XR + 1}, v{XR + 3}')
    for k in range(4):
        q.e(f'v_lshlrev_b32 v{XU_ + 2 * k}, 16, v{XR + k}')
        q.e(f'v_and_b32 v{XU_ + 2 * k + 1}, 0xffff0000, v{XR + k}')
    for k in range(8): q.e(f'v_add_f32 v{YR + 8 + k}, v{YR + 8 + k}, v{YR + 16 + k}')
    for k in range(8): q.e(f'v_add_f32 v{YO + k}, v{YO + k}, v{YR + k}')
    interleave(slots, q, 67, 72)
    for sl in slots: p.extend(sl)
    stamp(p, 'endP')
    pr = lambda b, k: vr(b + 2 * k, 2)
    for k in range(4): p.e(f'v_pk_add_f32 {pr(YO, k)}, {pr(YO, k)}, {pr(YR + 8, k)}')
    for k in range(4): p.e(f'v_pk_mul_f32 {pr(G, k)}, {pr(YO, k)}, s[{sC}:{sC+1}] op_sel_hi:[1,0] neg_lo:[1,0] neg_hi:[1,0]')
    p.append(WaitDs())
    p.e('s_nop 3')
    red_write(p, AS, SO, 24, f'S{half}', f'REDS{half}')
    for k in range(8): p.e(f'v_exp_f32 v{G + k}, v{G + k}')
    for k in range(4): p.e(f'v_pk_add_f32 {pr(G, k)}, {pr(G, k)}, 1.0 op_sel_hi:[1,0]')
    for k in range(8): p.e(f'v_rcp_f32 v{G + k}, v{G + k}')
    for k in range(4): p.e(f'v_pk_mul_f32 {pr(G, k)}, {pr(G, k)}, {pr(YO, k)}')
    p.append(WaitDs())
    p.e('s_barrier')
    stamp(p, 'bS')
    for src in range(3):
        for hh in range(2): p.e(f'ds_read_b128 {vr(SR + 8 * src + 4 * hh, 4)}, v26 offset:{src * 2048 + hh * 1024}', None, f'REDS{half}')
    for k in range(4): p.e(f'v_pk_fma_f32 {pr(XU_, k)}, {pr(SO, k)}, {pr(G, k)}, {pr(XU_, k)}')
    for src in range(3):
        for k in range(4): p.e(f'v_pk_fma_f32 {pr(XU_, k)}, {pr(SR + 8 * src, k)}, {pr(G, k)}, {pr(XU_, k)}')
    for k in range(4): p.e(f'v_cvt_pk_bf16_f32 v{G + k}, v{XU_ + 2 * k}, v{XU_ + 2 * k + 1}')
    p.e(f'v_permlane32_swap_b32 v{G}, v{G + 2}')
    p.e(f'v_permlane32_swap_b32 v{G + 1}, v{G + 3}')
    p.e(f'buffer_store_dwordx4 {vr(G, 4)}, v{vOUT}, {srd(SOUT)}, 0 offen')
    stamp(p, 'end'); dump(p)
    if half == 0:
        p.e(f's_or_b32 s{sT1}, s2, s{sW}')
        p.e(f's_cmp_lg_u32 s{sT1}, 0')
        p.e(f's_cbranch_scc1 L_end')
        set_flag(p, '0', 24)
    p.e('s_endpgm')

def build():
    pro = prologue()
    outs = []; fulls = []
    for half in range(2):
        p = P()
        nd = pass1(p, half); phase1_main(p, half, nd); nr = phase1_tail(p, half); phase2(p, half, nr)
        mark = I(f'L_half{half}:')
        full = finalize(list(pro) + [mark] + list(p)); fulls.append(full)
        outs.append(full[full.index(mark):])
    if not (opt('nobar', 0) or opt('nodma', 0)): check_lds(fulls, RANGES)
    print('dead-def check', all([check_dead(f, (0,)) for f in fulls]))
    assert len({sum(x.op == 's_barrier' for x in f) for f in fulls}) == 1
    pro_f = finalize(list(pro))
    slow = []
    for q in slow_paths: slow += finalize(list(q))
    hdr = open('recurrent_scan__linear_kernel_hedgehog__geglu_ffn__prompt.s.ref').read().split('\n')
    top = [l for l in hdr if l.startswith(';') and '@launch' not in l and 'Override' not in l and 'grid=ceil' not in l]
    s = '\n'.join(top) + '\n; @launch grid=(256,1,1) block=(512,1,1) lds=163840\n'
    s += f'.amdgcn_target "amdgcn-amd-amdhsa--gfx950"\n.text\n.globl {NAME}\n.p2align 8\n.type {NAME},@function\n{NAME}:\n'
    s += text(pro_f) + text(outs[0]) + text(outs[1]) + text(slow)
    s += 'L_end:\n    s_endpgm\nL_codeend:\n'
    s += f'''.section .rodata,"a"
.p2align 6
.amdhsa_kernel {NAME}
  .amdhsa_next_free_vgpr 256
  .amdhsa_next_free_sgpr 96
  .amdhsa_accum_offset 256
  .amdhsa_group_segment_fixed_size 0
  .amdhsa_kernarg_size 88
  .amdhsa_user_sgpr_count 2
  .amdhsa_user_sgpr_kernarg_segment_ptr 1
  .amdhsa_system_sgpr_workgroup_id_x 1
.end_amdhsa_kernel
'''
    return s

if __name__ == '__main__':
    open(sys.argv[1], 'w').write(build())
    if DEBUG: json.dump(STAMPS, open('stamps.json', 'w'))
```
